```python
import torch

def _softmax(x, axis=-1):
    return torch.softmax(x, dim=axis)
def _gelu(x):
    return torch.nn.functional.gelu(x, approximate="tanh")
def _silu(x):
    return torch.nn.functional.silu(x)
def _sigmoid(x):
    return torch.sigmoid(x)
def _layernorm(x, axis=-1, eps=1e-5):
    m = x.mean(dim=axis, keepdim=True)
    v = x.var(dim=axis, keepdim=True, unbiased=False)
    return (x - m) / torch.sqrt(v + eps)
def _scatter_add(tgt, idx, src, axis=0):
    return tgt.clone().index_add_(axis, idx, src)
def _segment_sum(src, seg, n):
    out = torch.zeros((n,) + src.shape[1:], dtype=src.dtype)
    return out.index_add_(0, seg, src)
def _pad(x, pw):
    flat = tuple(v for pair in reversed(pw) for v in pair)
    return torch.nn.functional.pad(x, flat)

kernel_name = 'gated_mix__softmax_full_mha__swiglu_ffn__prompt'

def setup_inputs():

    _w = (lambda a: (lambda t: t.to(torch.bfloat16) if t.is_floating_point() else t)(torch.as_tensor(a)))
    def _A_setup():
        B, S, D = 1, 2048, 1024
        return {
            "x": _w((lambda *s: torch.randn(*s, dtype=torch.bfloat16) * 0.05)(B, S, D)),
            "wqkv": _w((lambda *s: torch.randn(*s, dtype=torch.bfloat16) * 0.8)(D, 3 * D)),
            "wo": _w((lambda *s: torch.randn(*s, dtype=torch.bfloat16) * 0.05)(D, D)),
        }
    _A_in = _A_setup()

    def _B_setup():
        B, S, D, F = 1, 2048, 1024, 3584
        return {
            "x": _w((lambda *s: torch.randn(*s, dtype=torch.bfloat16) * 0.05)(B, S, D)),
            "w_gate": _w((lambda *s: torch.randn(*s, dtype=torch.bfloat16) * 0.1)(D, F)),
            "w_up": _w((lambda *s: torch.randn(*s, dtype=torch.bfloat16) * 0.1)(D, F)),
            "w_down": _w((lambda *s: torch.randn(*s, dtype=torch.bfloat16) * 0.1)(F, D)),
        }
    _B_in = _B_setup()

    return {
        "A_x": _A_in["x"],
        "A_wqkv": _A_in["wqkv"],
        "A_wo": _A_in["wo"],
        "B_x": _B_in["x"],
        "B_w_gate": _B_in["w_gate"],
        "B_w_up": _B_in["w_up"],
        "B_w_down": _B_in["w_down"],
        "gate_w": _w((lambda *s: torch.randn(*s, dtype=torch.bfloat16) * 0.05)(1024) * 16.0),
    }

def reference(A_x, A_wqkv, A_wo, B_x, B_w_gate, B_w_up, B_w_down, gate_w):
    def _A_ref(x, wqkv, wo):
        B, S, D = x.shape
        H = 32; Dh = D // H
        qkv = (lambda x, *d: x.permute(*d))((x @ wqkv).reshape(B, S, 3, H, Dh), 2, 0, 3, 1, 4)
        q, k, v = qkv[0], qkv[1], qkv[2]
        scale = Dh ** -0.5
        scores = torch.einsum("bhqd,bhkd->bhqk", q, k) * scale
        p = _softmax(scores, axis=-1)
        o = torch.einsum("bhqk,bhkd->bhqd", p, v)
        return (lambda x, *d: x.permute(*d))(o, 0, 2, 1, 3).reshape(B, S, D) @ wo

    def _B_ref(x, w_gate, w_up, w_down):
        g = _silu(x @ w_gate)
        u = x @ w_up
        return (g * u) @ w_down

    x = A_x
    g = _sigmoid((x * gate_w).sum(-1, keepdims=True))
    a = _A_ref(x, A_wqkv, A_wo)
    b = _B_ref(x, B_w_gate, B_w_up, B_w_down)
    return g * a + (1 - g) * b
```

```python
import re

TRANS = ('v_exp_f32', 'v_log_f32', 'v_rcp_f32', 'v_rsq_f32', 'v_sqrt_f32', 'v_sin_f32', 'v_cos_f32')

def split_ops(s):
    out, depth, cur = [], 0, ''
    for ch in s:
        if ch == '[': depth += 1
        if ch == ']': depth -= 1
        if ch == ',' and depth == 0:
            out.append(cur.strip()); cur = ''
        else:
            cur += ch
    if cur.strip(): out.append(cur.strip())
    return out

_reg = re.compile(r'^-?\|?(?:abs\()?([vsa])(?:(\d+)|\[(\d+):(\d+)\])\)?\|?$')
def regs_of(tok):
    tok = tok.strip()
    if tok in ('vcc',): return {('s', 106), ('s', 107)}
    if tok == 'vcc_lo': return {('s', 106)}
    if tok == 'vcc_hi': return {('s', 107)}
    if tok == 'm0': return {('m0', 0)}
    if tok == 'exec': return {('exec', 0)}
    m = _reg.match(tok)
    if not m: return set()
    k = m.group(1)
    if m.group(2) is not None: return {(k, int(m.group(2)))}
    return {(k, i) for i in range(int(m.group(3)), int(m.group(4)) + 1)}

class Ins:
    __slots__ = ('text', 'mn', 'kind', 'rd', 'wr', 'passes', 'srcA', 'srcB', 'srcC', 'dst', 'ws', 'misc')
    def __repr__(self): return self.text

def parse(text):
    t = text.split(';')[0].strip()
    i = Ins(); i.text = text; i.rd = set(); i.wr = set(); i.passes = 0; i.ws = 1; i.misc = {}
    i.srcA = i.srcB = i.srcC = i.dst = frozenset()
    if t.endswith(':') or t.startswith('.') or not t:
        i.mn = t; i.kind = 'label' if t.endswith(':') else 'dir'; i.ws = 0
        return i
    sp = t.split(None, 1)
    mn = sp[0]; rest = sp[1] if len(sp) > 1 else ''
    i.mn = mn
    ops = split_ops(rest)
    mods = ''
    if ops:
        parts = ops[-1].split(None, 1)
        if len(parts) > 1 and not parts[0].startswith('hwreg') :
            ops[-1] = parts[0]; mods = parts[1]
    i.misc['mods'] = mods
    R = [regs_of(o) for o in ops]
    if mn.startswith('v_mfma'):
        i.kind = 'mfma'
        i.passes = 8 if '32x32x16' in mn else 4 if '16x16x32' in mn else None
        assert i.passes
        i.dst = frozenset(R[0]); i.srcA = frozenset(R[1]); i.srcB = frozenset(R[2]); i.srcC = frozenset(R[3])
        i.wr = set(R[0]); i.rd = R[1] | R[2] | R[3]
    elif mn.startswith('v_'):
        i.kind = 'valu'
        base = mn
        for suf in ('_e32', '_e64', '_dpp', '_sdwa'):
            if base.endswith(suf): base = base[:-len(suf)]
        i.misc['base'] = base
        i.misc['dpp'] = mn.endswith('_dpp')
        if base.startswith('v_permlane'):
            i.wr = R[0] | R[1]; i.rd = R[0] | R[1]
        elif base.startswith('v_cmp'):
            i.wr = set(R[0]); i.rd = set().union(*R[1:])
        elif base in ('v_add_co_u32', 'v_sub_co_u32', 'v_addc_co_u32'):
            i.wr = R[0] | R[1]; i.rd = set().union(*R[2:])
        elif base == 'v_nop':
            pass
        else:
            i.wr = set(R[0]); i.rd = set().union(*R[1:]) if len(R) > 1 else set()
            if base in ('v_fmac_f32', 'v_dot2c_f32_bf16') or mn.endswith('_sdwa') or mn.endswith('_dpp'): i.rd |= R[0]
            if base == 'v_cndmask_b32' and len(R) == 3: i.rd |= regs_of('vcc')
    elif mn.startswith('ds_'):
        i.kind = 'ds'
        if mn.startswith('ds_read') or mn.startswith('ds_bpermute') or mn.startswith('ds_swizzle') or mn.startswith('ds_permute'):
            i.wr = set(R[0]); i.rd = set().union(*R[1:]); i.misc['load'] = True
        else:
            i.rd = set().union(*R); i.misc['load'] = False
    elif mn.startswith('buffer_') or mn.startswith('global_'):
        i.kind = 'vmem'
        lds = re.search(r'\blds\b', mods) is not None or 'load_lds' in mn
        i.misc['lds'] = lds
        if 'load' in mn and not lds:
            i.wr = set(R[0]); i.rd = set().union(*R[1:]); i.misc['load'] = True
        elif 'load' in mn:
            i.rd = set().union(*R) | {('m0', 0)}; i.misc['load'] = False
        elif mn in ('buffer_wbl2', 'buffer_inv'):
            i.misc['load'] = False
        else:
            i.rd = set().union(*R); i.misc['load'] = False
            data = R[0] if mn.startswith('buffer_') else R[1]
            i.misc['data'] = data
            i.misc['wide'] = ('x4' in mn or 'x3' in mn)
            if 'atomic' in mn and 'sc0' in mods:
                i.wr = set(R[0]); i.misc['load'] = True
    elif mn.startswith('s_'):
        i.kind = 'salu'
        if mn == 's_nop':
            i.ws = int(ops[0], 0) + 1; i.kind = 'nop'
        elif mn == 's_waitcnt':
            i.kind = 'wait'
            m = re.search(r'vmcnt\((\d+)\)', t); i.misc['vm'] = int(m.group(1)) if m else None
            m = re.search(r'lgkmcnt\((\d+)\)', t); i.misc['lgkm'] = int(m.group(1)) if m else None
        elif mn.startswith('s_cmp') or mn.startswith('s_cbranch') or mn in ('s_branch', 's_barrier', 's_endpgm', 's_setprio', 's_sleep', 's_bitcmp1_b32', 's_bitcmp0_b32'):
            i.rd = set().union(*R) if R else set()
            if mn.startswith('s_cbranch') or mn == 's_branch': i.kind = 'branch'
        elif mn.startswith('s_load') or mn.startswith('s_memtime') or mn.startswith('s_memrealtime') or mn.startswith('s_buffer_load') or mn.startswith('s_atomic'):
            i.kind = 'smem'; i.wr = set(R[0]); i.rd = set().union(*R[1:]) if len(R) > 1 else set()
        else:
            i.wr = set(R[0]); i.rd = set().union(*R[1:]) if len(R) > 1 else set()
            if 'saveexec' in mn: i.wr |= {('exec', 0)}
    else:
        raise ValueError('unknown instr ' + text)
    return i

def vg(s): return {r for r in s if r[0] in 'va'}
def sg(s): return {r for r in s if r[0] == 's'}

def need(p, c):
    n = 0
    if p.kind == 'valu':
        pw = vg(p.wr)
        if c.kind == 'mfma' and pw & c.rd: n = max(n, 2)
        if c.kind == 'valu':
            b = c.misc['base']
            if p.misc['base'] in TRANS and b not in TRANS and pw & c.rd: n = max(n, 1)
            if b in ('v_readfirstlane_b32', 'v_readlane_b32') and pw & c.rd: n = max(n, 1)
            if b.startswith('v_permlane') and pw & c.rd: n = max(n, 2)
            if c.misc['dpp'] and pw & c.rd: n = max(n, 2)
            if p.mn.endswith('_sdwa') and pw & (c.rd | c.wr): n = max(n, 1)
            if sg(p.wr) & c.rd: n = max(n, 4 if b in ('v_readlane_b32', 'v_writelane_b32') else 2)
            if p.misc['base'].startswith('v_dot') and b != p.misc['base'] and pw & (c.rd | c.wr): n = max(n, 3)
        if c.kind == 'vmem' and sg(p.wr) & c.rd: n = max(n, 5)
        if c.kind in ('salu', 'branch', 'smem') and sg(p.wr) & c.rd: n = max(n, 1)
    if p.kind == 'mfma':
        idx = {4: 0, 8: 1}[p.passes]
        if c.kind == 'mfma':
            if p.dst & c.srcC:
                if not (p.dst == c.srcC and p.passes == c.passes): n = max(n, (6, 10)[idx])
            if p.dst & (c.srcA | c.srcB): n = max(n, (8, 12)[idx])
            if p.dst & c.dst and not (p.dst == c.srcC and p.dst == c.dst and p.passes == c.passes): n = max(n, (8, 12)[idx])
        if c.kind == 'valu':
            if p.dst & (c.rd | c.wr): n = max(n, (8, 12)[idx])
            if p.srcC & c.wr: n = max(n, (3, 7)[idx])
        if c.kind in ('vmem', 'ds') and p.dst & (c.rd | c.wr): n = max(n, (8, 12)[idx])
        if c.kind in ('vmem', 'ds') and p.srcC & c.wr: n = max(n, (3, 7)[idx])
    if p.kind == 'salu' and ('m0', 0) in p.wr and c.kind == 'vmem' and c.misc.get('lds'): n = max(n, 1)
    if p.kind == 'vmem' and p.misc.get('wide') and p.misc.get('data'):
        if c.kind in ('valu', 'mfma') and p.misc['data'] & c.wr: n = max(n, 2)
        elif p.misc['data'] & c.wr: n = max(n, 1)
    if p.kind == 'ds' and not p.misc['load'] and ('b128' in p.mn or 'b96' in p.mn):
        if c.kind in ('valu', 'mfma') and vg(p.rd) & c.wr: n = max(n, 2)
    return n

MAXD = 13
def hazard_gap(hist, c):
    d = 0; miss = 0
    for p in reversed(hist):
        if d >= MAXD: break
        if p.ws:
            n = need(p, c)
            if n > d: miss = max(miss, n - d)
        d += p.ws
    return miss

class Asm:
    def __init__(self):
        self.ins = []
    def __call__(self, text):
        for line in text.split('\n'):
            line = line.strip()
            if not line or line.startswith(';'):
                continue
            c = parse(line)
            if c.ws:
                m = hazard_gap(self.ins[-40:], c)
                if m > 0:
                    self.ins.append(parse(f's_nop {m-1}'))
            self.ins.append(c)
    def label(self, n): self(f'{n}:')
    def text(self):
        out = []
        for i in self.ins:
            out.append(i.text if i.kind in ('label', 'dir') else '    ' + i.text)
        return '\n'.join(out) + '\n'
    def mark(self): return len(self.ins)

def check_seq(seq, name=''):
    errs = []
    hist = []
    lg = []
    vm = []
    smem = set()
    for c in seq:
        if not c.ws: continue
        m = hazard_gap(hist[-40:], c)
        if m > 0: errs.append(f'{name}: hazard {m} before {c.text}')
        touched = c.rd | c.wr
        for d in lg:
            if d and d & touched: errs.append(f'{name}: lgkm RAW/WAW {c.text}'); break
        for d in vm:
            if d and d & touched: errs.append(f'{name}: vmcnt RAW/WAW {c.text}'); break
        if smem & touched and c.kind != 'smem': errs.append(f'{name}: smem pending {c.text}')
        if c.kind == 'wait':
            if c.misc['vm'] is not None:
                n = c.misc['vm']; vm = vm[len(vm) - n:] if n < len(vm) and n > 0 else ([] if n == 0 else vm)
            if c.misc['lgkm'] is not None:
                n = c.misc['lgkm']
                if n == 0: smem = set()
                elif smem: errs.append(f'{name}: counted lgkm with smem pending {c.text}')
                lg = lg[len(lg) - n:] if n < len(lg) and n > 0 else ([] if n == 0 else lg)
        if c.kind == 'ds': lg.append(set(c.wr) if c.misc['load'] else None)
        if c.kind == 'vmem': vm.append(set(c.wr) if c.misc.get('load') else None)
        if c.kind == 'smem': smem |= c.wr
        hist.append(c)
    return errs

def interleave(main, side, start=0, end=None, per=1):
    end = len(main) if end is None else end
    n = len(side)
    slots = {}
    span = end - start
    for k, sitem in enumerate(side):
        pos = start + (k * span) // max(n, 1)
        slots.setdefault(pos, []).append(sitem)
    out = []
    for idx, m in enumerate(main):
        out.append(m)
        for sitem in slots.get(idx, []):
            out.extend(sitem if isinstance(sitem, list) else [sitem])
    return out

KD = """.section .rodata,"a"
.p2align 6
.amdhsa_kernel {name}
  .amdhsa_next_free_vgpr {vgpr}
  .amdhsa_next_free_sgpr {sgpr}
  .amdhsa_accum_offset {accum}
  .amdhsa_group_segment_fixed_size 0
  .amdhsa_kernarg_size 88
  .amdhsa_user_sgpr_count 2
  .amdhsa_user_sgpr_kernarg_segment_ptr 1
  .amdhsa_system_sgpr_workgroup_id_x 1
.end_amdhsa_kernel
"""
def kernel_text(name, asm, vgpr, sgpr, accum):
    return (f".text\n.globl {name}\n.p2align 8\n.type {name},@function\n{name}:\n" + asm.text() +
            KD.format(name=name, vgpr=vgpr, sgpr=sgpr, accum=accum))
```

```python
from asmlib import *

WS_QKV = 0
WS_OH = 0x1000000
WS_G = 0x2200000
OH_TB = 4608 * 64
LOG2E = 1.4426950408889634
import struct
def f2u(f): return struct.unpack('<I', struct.pack('<f', f))[0]
QSCALE = f2u(32 ** -0.5 * LOG2E)
NLOG2E = f2u(-LOG2E)

XBUF = [0, 32768]
WBUF = [65536, 65536 + 40960]
LDS_BYTES = 65536 + 81920

def acc(half, t, tb):
    idx = (t * 2 + half) * 8 + tb
    if idx < 52: return ('v', 48 + 4 * idx)
    return ('a', 4 * (idx - 52))
def rng(r, n=4): return f'{r[0]}[{r[1]}:{r[1]+n-1}]'
def xfrag(st, tb): return ('a', 112 + 72 * st + 4 * tb)
def wfrag(st, half, t): return ('a', 112 + 72 * st + 32 + 4 * (half * 5 + t))

V_XOFF = 1
V_WOFF = 9
V_XRD = 11
V_WRD = 13
V_OQ = 15
V_T = 16
S_X, S_WA, S_WB, S_WS = 4, 8, 12, 16
S_XK, S_WAK, S_WBK, S_WAI, S_WBI = 20, 21, 22, 23, 24
S_LX, S_LW, S_CNT, S_W, S_WR, S_WC, S_RB, S_CT = 25, 26, 27, 28, 29, 30, 31, 32
S_COL = 34
S_T = 40

def gen(name='k1_kernel', mfma=True, dma=True, stamp=False, sched=None):
    a = Asm()
    a(f'''
    s_cmp_ge_u32 s2, 256
    s_cbranch_scc1 {name}_end
    s_load_dwordx4 s[44:47], s[0:1], 0
    s_load_dwordx4 s[48:51], s[0:1], 32
    s_load_dwordx2 s[52:53], s[0:1], 56
    s_load_dwordx2 s[54:55], s[0:1], 80
    v_lshrrev_b32 v16, 6, v0
    v_and_b32 v0, 63, v0
    v_readfirstlane_b32 s{S_W}, v16
    s_and_b32 s{S_T}, s2, 7
    s_lshr_b32 s{S_T+1}, s2, 3
    s_and_b32 s{S_RB}, s{S_T+1}, 7
    s_lshr_b32 s{S_T+1}, s{S_T+1}, 3
    s_lshl_b32 s{S_CT}, s{S_T+1}, 3
    s_add_u32 s{S_CT}, s{S_CT}, s{S_T}
    s_lshr_b32 s{S_WR}, s{S_W}, 1
    s_and_b32 s{S_WC}, s{S_W}, 1
    ''')
    if stamp:
        a('s_memtime s[90:91]\ns_memrealtime s[92:93]')
    a(f'''
    s_mul_i32 s{S_T}, s{S_CT}, 320
    s_mul_i32 s{S_T+1}, s{S_CT}, 160
    s_sub_u32 s{S_T+1}, s{S_T+1}, 1536
    s_cmp_eq_u32 s{S_CT}, 9
    s_cselect_b32 s{S_T+1}, 0, s{S_T+1}
    s_cmp_lt_u32 s{S_CT}, 9
    s_cselect_b32 s{S_COL}, s{S_T}, s{S_T+1}
    s_add_u32 s{S_COL+1}, s{S_COL}, 64
    s_add_u32 s{S_T+2}, s{S_T}, 160
    s_cmp_lt_u32 s{S_CT}, 9
    s_cselect_b32 s{S_COL+2}, s{S_T+2}, s{S_T+1}
    s_add_u32 s{S_COL+3}, s{S_COL+2}, 64
    s_cmp_eq_u32 s{S_CT}, 9
    s_cselect_b32 s{S_COL+1}, 2880, s{S_COL+1}
    s_cselect_b32 s{S_COL+3}, 2976, s{S_COL+3}
    s_waitcnt lgkmcnt(0)
    {'s_memtime s[78:79]' if stamp else ''}
    s_mov_b32 s{S_X}, s44
    s_mov_b32 s{S_X+1}, s45
    s_mov_b32 s{S_X+2}, {2048*1024*2}
    s_mov_b32 s{S_X+3}, 0x20000
    s_mov_b32 s{S_WS}, s54
    s_mov_b32 s{S_WS+1}, s55
    s_mov_b32 s{S_WS+2}, 0x10000000
    s_mov_b32 s{S_WS+3}, 0x20000
    s_mov_b32 s56, s52
    s_mov_b32 s57, s53
    s_mov_b32 s58, 2048
    s_mov_b32 s59, 0x20000
    ''')
    a(f'''
    v_lshlrev_b32 v16, 4, v0
    s_lshl_b32 s{S_T}, s2, 3
    s_lshl_b32 s{S_T+1}, s{S_W}, 1
    s_add_u32 s60, s{S_T}, s{S_T+1}
    s_lshl_b32 s61, s60, 11
    buffer_load_dwordx4 v[20:23], v16, s[56:59], 0 offen
    buffer_load_dwordx4 v[24:27], v16, s[56:59], 0 offen offset:1024
    buffer_load_dwordx4 v[28:31], v16, s[{S_X}:{S_X+3}], s61 offen
    buffer_load_dwordx4 v[32:35], v16, s[{S_X}:{S_X+3}], s61 offen offset:1024
    buffer_load_dwordx4 v[36:39], v16, s[{S_X}:{S_X+3}], s61 offen offset:2048
    buffer_load_dwordx4 v[40:43], v16, s[{S_X}:{S_X+3}], s61 offen offset:3072
    ''')
    a(f'''
    s_movk_i32 s68, 7168
    s_cmp_eq_u32 s{S_WC}, 0
    s_cselect_b32 s62, s48, s50
    s_cselect_b32 s63, s49, s51
    s_cselect_b32 s64, s{S_COL}, s{S_COL+2}
    s_cselect_b32 s65, s{S_COL+1}, s{S_COL+3}
    s_cmp_lt_u32 s{S_CT}, 9
    s_cselect_b32 s{S_WA}, s46, s62
    s_cselect_b32 s{S_WA+1}, s47, s63
    s_cselect_b32 s66, 6144, s68
    s_mov_b32 s{S_WA+3}, 0x20000
    s_cmp_lt_u32 s{S_CT}, 10
    s_cselect_b32 s{S_WB}, s46, s62
    s_cselect_b32 s{S_WB+1}, s47, s63
    s_cselect_b32 s67, 6144, s68
    s_mov_b32 s{S_WB+3}, 0x20000
    s_lshl_b32 s{S_WA+2}, s66, 10
    s_lshl_b32 s{S_WB+2}, s67, 10
    s_lshl_b32 s{S_WAI}, s66, 5
    s_lshl_b32 s{S_WBI}, s67, 5
    s_mov_b32 s{S_XK}, 0
    s_mov_b32 s{S_WAK}, 0
    s_mov_b32 s{S_WBK}, 0
    s_lshl_b32 s{S_LX}, s{S_W}, 13
    s_mul_i32 s{S_LW}, s{S_WR}, 10240
    s_mul_i32 s{S_T}, s{S_WC}, 5120
    s_add_u32 s{S_LW}, s{S_LW}, s{S_T}
    ''')
    a(f'''
    v_lshrrev_b32 v17, 2, v0
    s_lshl_b32 s{S_T}, s{S_WR}, 4
    v_add_u32 v17, s{S_T}, v17
    v_lshrrev_b32 v18, 5, v0
    v_lshlrev_b32 v18, 1, v18
    v_and_b32 v19, 3, v0
    v_xor_b32 v18, v18, v19
    v_lshlrev_b32 v18, 4, v18
    v_mul_lo_u32 v{V_WOFF}, v17, s66
    v_mul_lo_u32 v{V_WOFF+1}, v17, s67
    s_lshl_b32 s64, s64, 1
    s_lshl_b32 s65, s65, 1
    v_add3_u32 v{V_WOFF}, v{V_WOFF}, v18, s64
    v_add3_u32 v{V_WOFF+1}, v{V_WOFF+1}, v18, s65
    ''')
    a(f'''
    v_lshrrev_b32 v17, 3, v0
    s_lshl_b32 s{S_T}, s{S_RB}, 8
    s_lshl_b32 s{S_T+1}, s{S_W}, 6
    s_add_u32 s{S_T}, s{S_T}, s{S_T+1}
    v_add_u32 v17, s{S_T}, v17
    v_lshlrev_b32 v17, 11, v17
    v_and_b32 v18, 7, v0
    v_lshrrev_b32 v19, 4, v0
    v_xor_b32 v18, v18, v19
    v_lshlrev_b32 v18, 4, v18
    v_add_u32 v17, v17, v18
    v_xor_b32 v18, 64, v17
    ''')
    for i in range(8):
        a(f'v_add_u32 v{V_XOFF+i}, {i*16384}, v{17 if i % 2 == 0 else 18}')

    def dma_x(buf):
        L = []
        for i in range(8):
            L.append([f's_add_u32 m0, s{S_LX}, {XBUF[buf] + i*1024}',
                      f'buffer_load_dwordx4 v{V_XOFF+i}, s[{S_X}:{S_X+3}], s{S_XK} offen lds'])
        L[-1].append(f's_add_u32 s{S_XK}, s{S_XK}, 128')
        return L
    def dma_w(buf, ks):
        L = []
        for q in range(5):
            g = 0 if q < 2 else 1
            io = (q - 2 * g) * 64
            srd = S_WA if g == 0 else S_WB
            ko = S_WAK if g == 0 else S_WBK
            L.append([f's_add_u32 m0, s{S_LW}, {WBUF[buf] + ks*20480 + q*1024 - io}',
                      f'buffer_load_dwordx4 v{V_WOFF+g}, s[{srd}:{srd+3}], s{ko} offen offset:{io} lds'])
        L[1].append(f's_add_u32 s{S_WAK}, s{S_WAK}, s{S_WAI}')
        L[4].append(f's_add_u32 s{S_WBK}, s{S_WBK}, s{S_WBI}')
        return L
    def flat(L): return [x for it in L for x in it]
    if not dma:
        dma_x = lambda buf: []
        dma_w = lambda buf, ks: []
    for blk in (dma_x(0), dma_w(0, 0), dma_w(0, 1), dma_w(1, 0), dma_x(1)):
        for l in flat(blk): a(l)

    if stamp: a('s_memtime s[80:81]')
    a(f'''
    v_and_b32 v17, 15, v0
    v_lshrrev_b32 v18, 4, v0
    v_lshrrev_b32 v19, 1, v17
    v_xor_b32 v19, v19, v18
    v_lshlrev_b32 v19, 4, v19
    v_lshl_add_u32 v19, v17, 7, v19
    s_lshl_b32 s{S_T}, s{S_WR}, 14
    v_add_u32 v{V_XRD}, s{S_T}, v19
    v_xor_b32 v{V_XRD+1}, 64, v{V_XRD}
    v_lshrrev_b32 v19, 5, v0
    v_mul_u32_u24 v19, 10240, v19
    v_and_b32 v44, 1, v18
    v_lshlrev_b32 v45, 9, v44
    v_add_u32 v19, v19, v45
    v_xor_b32 v44, s{S_WC}, v44
    v_lshlrev_b32 v44, 5, v44
    v_add_u32 v19, v19, v44
    v_lshrrev_b32 v44, 2, v17
    v_lshlrev_b32 v44, 6, v44
    v_add_u32 v19, v19, v44
    v_and_b32 v44, 3, v17
    v_lshlrev_b32 v44, 3, v44
    v_add_u32 v19, v19, v44
    v_add_u32 v{V_WRD}, {WBUF[0]}, v19
    v_add_u32 v{V_WRD+1}, {WBUF[1]}, v19
    ''')
    for r in range(48, 256): a(f'v_mov_b32 v{r}, 0')
    for r in range(112): a(f'v_accvgpr_write_b32 a{r}, 0')
    if stamp: a('s_memtime s[82:83]')
    a(f's_waitcnt vmcnt({31 if dma else 0})')
    if stamp: a('s_memtime s[84:85]')
    a('v_mov_b32 v44, 0\nv_mov_b32 v45, 0')
    for j in range(8):
        a(f'v_dot2_f32_bf16 v44, v{28+j}, v{20+j}, v44')
        a(f'v_dot2_f32_bf16 v45, v{36+j}, v{20+j}, v45')
    for d in ('quad_perm:[1,0,3,2] row_mask:0xf', 'quad_perm:[2,3,0,1] row_mask:0xf', 'row_half_mirror row_mask:0xf', 'row_mirror row_mask:0xf',
              'row_bcast:15 row_mask:0xa', 'row_bcast:31 row_mask:0xc'):
        a(f'v_add_f32_dpp v44, v44, v44 {d} bank_mask:0xf')
        a(f'v_add_f32_dpp v45, v45, v45 {d} bank_mask:0xf')
    a(f'''
    v_mul_f32 v44, {NLOG2E:#x}, v44
    v_mul_f32 v45, {NLOG2E:#x}, v45
    v_exp_f32 v44, v44
    v_exp_f32 v45, v45
    v_add_f32 v44, 1.0, v44
    v_add_f32 v45, 1.0, v45
    v_rcp_f32 v44, v44
    v_rcp_f32 v45, v45
    s_lshl_b32 s61, s60, 2
    s_add_u32 s61, s61, {WS_G:#x}
    v_mov_b32 v46, 0
    s_mov_b32 exec_lo, 0
    s_mov_b32 exec_hi, 0x80000000
    buffer_store_dwordx2 v[44:45], v46, s[{S_WS}:{S_WS+3}], s61 offen
    s_mov_b64 exec, -1
    ''')

    def reads(buf, ks, st):
        L = []
        xs = [f'ds_read_b128 {rng(xfrag(st, tb))}, v{V_XRD+ks} offset:{XBUF[buf] + tb*2048}' for tb in range(8)]
        ws = []
        for t in range(5):
            for half in range(2):
                r = wfrag(st, half, t)
                for h in range(2):
                    ws.append(f'ds_read_b64_tr_b16 {r[0]}[{r[1]+2*h}:{r[1]+2*h+1}], v{V_WRD+buf} offset:{ks*20480 + half*5120 + t*1024 + h*256}')
        return ws[:2] + xs + ws[2:]
    def mfmas(st):
        L = []
        for t in range(5):
            for half in range(2):
                for tb in range(8):
                    c = rng(acc(half, t, tb))
                    L.append(f'v_mfma_f32_16x16x32_bf16 {c}, {rng(wfrag(st, half, t))}, {rng(xfrag(st, tb))}, {c}')
        return L if mfma else ['s_nop 0'] * 80

    a(f's_waitcnt vmcnt({19 if dma else 0})\ns_barrier')
    if stamp: a('s_memtime s[86:87]')
    for l in reads(0, 0, 0): a(l)
    a(f's_mov_b32 s{S_CNT}, 7')
    if stamp: a('s_memtime s[88:89]')
    def step(st, wait, rd, dm, barrier=True):
        a(wait)
        if barrier: a('s_barrier')
        body = mfmas(st)
        rs, re_, ds, de = sched if sched else (1, 57, 2, 74)
        slots = {}
        for k, it in enumerate(rd):
            slots.setdefault(rs + k * (re_ - rs) // max(len(rd), 1), []).append([it])
        for k, it in enumerate(dm):
            slots.setdefault(ds + k * (de - ds) // max(len(dm), 1), []).append(it)
        for idx, m in enumerate(body):
            pre = [it for it in slots.get(idx, []) if it[0].startswith('s_add_u32 m0')]
            for it in pre: a(it[0])
            a(m)
            for it in slots.get(idx, []):
                for l in (it[1:] if it in pre else it): a(l)
    V = (lambda n: n) if dma else (lambda n: 0)
    m0 = a.mark()
    a.label(f'{name}_loop')
    first = True
    for p in range(2):
        step(0, f's_waitcnt vmcnt({V(13)}) lgkmcnt(0)', reads(p, 1, 1), dma_w(1 - p, 1) + dma_w(p, 0))
        step(1, f's_waitcnt vmcnt({V(10)}) lgkmcnt(0)', reads(1 - p, 0, 0), dma_x(p))
    a(f's_sub_u32 s{S_CNT}, s{S_CNT}, 1\ns_cmp_lg_u32 s{S_CNT}, 0\ns_cbranch_scc1 {name}_loop')
    m1 = a.mark()
    step(0, f's_waitcnt vmcnt({V(13)}) lgkmcnt(0)', reads(0, 1, 1), dma_w(1, 1))
    step(1, f's_waitcnt vmcnt({V(5)}) lgkmcnt(0)', reads(1, 0, 0), [])
    step(0, f's_waitcnt vmcnt(0) lgkmcnt(0)', reads(1, 1, 1), [])
    step(1, f's_waitcnt lgkmcnt(0)', [], [], barrier=False)
    m2 = a.mark()
    if stamp:
        a('s_memtime s[94:95]')

    a(f'''
    v_lshlrev_b32 v1, 4, v0
    s_mov_b32 s70, {NLOG2E:#x}
    s_mov_b32 s71, {NLOG2E:#x}
    s_lshl_b32 s{S_T}, s{S_RB}, 3
    s_lshl_b32 s{S_T+1}, s{S_WR}, 2
    s_add_u32 s{S_T}, s{S_T}, s{S_T+1}
    s_mul_i32 s72, s{S_T}, {OH_TB}
    s_lshl_b32 s{S_T+1}, s{S_COL}, 6
    s_add_u32 s72, s72, s{S_T+1}
    s_lshl_b32 s{S_T+1}, s{S_WC}, 10
    s_add_u32 s72, s72, s{S_T+1}
    s_add_u32 s72, s72, {WS_OH + 1024*64}
    s_lshl_b32 s73, s{S_T}, 10
    s_lshl_b32 s{S_T+1}, s{S_WC}, 16
    s_add_u32 s73, s73, s{S_T+1}
    ''')
    def getv(r, tmp):
        if r[0] == 'v': return r[1]
        for j in range(4): a(f'v_accvgpr_read_b32 v{tmp+j}, a{r[1]+j}')
        return tmp
    for t in range(5):
        a(f's_cmp_lt_u32 s{S_CT}, {9 if t < 2 else 10}\ns_cbranch_scc1 {name}_q{t}')
        for tbp in range(4):
            G = [getv(acc(0, t, 2*tbp + i), 4 + 8*i) for i in range(2)]
            U = [getv(acc(1, t, 2*tbp + i), 8 + 8*i) for i in range(2)]
            E = [20 + 12*(tbp % 2) + 4*i for i in range(2)]
            O = 28 + 12*(tbp % 2)
            for i in range(2):
                for j in (0, 2): a(f'v_pk_mul_f32 v[{E[i]+j}:{E[i]+j+1}], v[{G[i]+j}:{G[i]+j+1}], s[70:71]')
            for i in range(2):
                for j in range(4): a(f'v_exp_f32 v{E[i]+j}, v{E[i]+j}')
            for i in range(2):
                for j in (0, 2): a(f'v_pk_mul_f32 v[{U[i]+j}:{U[i]+j+1}], v[{G[i]+j}:{G[i]+j+1}], v[{U[i]+j}:{U[i]+j+1}]')
            for i in range(2):
                for j in (0, 2): a(f'v_pk_add_f32 v[{E[i]+j}:{E[i]+j+1}], v[{E[i]+j}:{E[i]+j+1}], 1.0 op_sel_hi:[1,0]')
            for i in range(2):
                for j in range(4): a(f'v_rcp_f32 v{E[i]+j}, v{E[i]+j}')
            a(f's_add_u32 s74, s72, {t*2048 + tbp*OH_TB}')
            for i in range(2):
                for j in (0, 2): a(f'v_pk_mul_f32 v[{U[i]+j}:{U[i]+j+1}], v[{U[i]+j}:{U[i]+j+1}], v[{E[i]+j}:{E[i]+j+1}]')
            for i in range(2):
                for j in range(2): a(f'v_cvt_pk_bf16_f32 v{O+2*i+j}, v{U[i]+2*j}, v{U[i]+2*j+1}')
            a(f'v_permlane16_swap_b32 v{O}, v{O+2}\nv_permlane16_swap_b32 v{O+1}, v{O+3}')
            a(f'buffer_store_dwordx4 v[{O}:{O+3}], v1, s[{S_WS}:{S_WS+3}], s74 offen')
        a(f's_branch {name}_n{t}')
        a.label(f'{name}_q{t}')
        a('s_nop 7')
        for half in range(2):
            g = 2*half + (0 if t < 2 else 1)
            a(f'''
            s_lshr_b32 s75, s{S_COL+g}, 5
            s_add_u32 s75, s75, {t - (0 if t < 2 else 2)}
            s_cmp_lt_u32 s75, 32
            s_cselect_b32 s76, {QSCALE:#x}, 1.0
            s_mov_b32 s77, s76
            s_lshl_b32 s75, s75, 17
            s_add_u32 s75, s75, s73
            ''')
            for tbp in range(4):
                X = [getv(acc(half, t, 2*tbp + i), 4 + 4*i + 8*(tbp % 2)) for i in range(2)]
                O = 28 + 4*(tbp % 4)
                for i in range(2):
                    for j in (0, 2): a(f'v_pk_mul_f32 v[{X[i]+j}:{X[i]+j+1}], v[{X[i]+j}:{X[i]+j+1}], s[76:77]')
                a(f's_add_u32 s74, s75, {WS_QKV + tbp*1024}')
                for i in range(2):
                    for j in range(2): a(f'v_cvt_pk_bf16_f32 v{O+2*i+j}, v{X[i]+2*j}, v{X[i]+2*j+1}')
                a(f'v_permlane16_swap_b32 v{O}, v{O+2}\nv_permlane16_swap_b32 v{O+1}, v{O+3}')
                a(f'buffer_store_dwordx4 v[{O}:{O+3}], v1, s[{S_WS}:{S_WS+3}], s74 offen')
        a.label(f'{name}_n{t}')
        a('s_nop 1')
    if stamp:
        a(f'''
        s_waitcnt vmcnt(0)
        s_memtime s[96:97]
        s_memrealtime s[98:99]
        s_waitcnt lgkmcnt(0)
        v_mov_b32 v4, s90
        v_mov_b32 v5, s94
        v_mov_b32 v6, s96
        v_mov_b32 v7, s92
        v_mov_b32 v8, s98
        v_mov_b32 v9, s88
        v_mov_b32 v10, 0
        s_lshl_b32 s74, s2, 2
        s_add_u32 s74, s74, s{S_W}
        s_lshl_b32 s74, s74, 6
        v_mov_b32 v12, s78
        v_mov_b32 v13, s80
        v_mov_b32 v14, s82
        v_mov_b32 v15, s84
        v_mov_b32 v16, s86
        s_add_u32 s74, s74, 0x8000000
        s_mov_b32 exec_lo, 1
        s_mov_b32 exec_hi, 0
        buffer_store_dwordx4 v[4:7], v10, s[{S_WS}:{S_WS+3}], s74 offen
        buffer_store_dwordx2 v[8:9], v10, s[{S_WS}:{S_WS+3}], s74 offen offset:16
        buffer_store_dwordx4 v[12:15], v10, s[{S_WS}:{S_WS+3}], s74 offen offset:32
        buffer_store_dword v16, v10, s[{S_WS}:{S_WS+3}], s74 offen offset:48
        ''')
    a.label(f'{name}_end')
    a('s_endpgm')
    tr = a.ins[:m1] + a.ins[m0:m1] + a.ins[m1:]
    errs = check_seq(tr, name)
    for e in errs[:20]: print('CHECK', e)
    return kernel_text(name, a, 512, 102, 256), LDS_BYTES

if __name__ == '__main__':
    txt, lds = gen(stamp=True)
    hdr = f'; @launch kernel=k1_kernel grid=(256,1,1) block=(256,1,1) lds={lds}\n.amdgcn_target "amdgcn-amd-amdhsa--gfx950"\n'
    open('k1t.s', 'w').write(hdr + txt)
```

```python
from asmlib import *
from k1 import WS_QKV, WS_OH, WS_G, OH_TB

RING = 4
CH = 16384
PRIV = RING * CH
LDS_BYTES = PRIV + 8 * 4096

V_L16 = 1
V_VOFF = 2
V_VOFF2 = 3
V_VRD = 4
V_G = 6
V_T = 8
Q = 16
ONES = 24
L = 28
O = 32
CM = 48
S = [64, 80]
P = [96, 104]
KF = [112, 120]
VF = [128, 136]
NV = 144
S_WS = 4
S_W, S_HD, S_TB, S_KB, S_VB, S_LD, S_CNT, S_T = 8, 9, 10, 11, 12, 13, 14, 16

def r4(b): return f'v[{b}:{b+3}]'
def r16(b): return f'v[{b}:{b+15}]'

def gen(name='k2_kernel', stamp=False, force_slow=False, barriers=True):
    a = Asm()
    a(f'''
    s_cmp_ge_u32 s2, 256
    s_cbranch_scc1 {name}_end
    s_load_dwordx2 s[20:21], s[0:1], 80
    v_lshrrev_b32 v8, 6, v0
    v_and_b32 v0, 63, v0
    v_readfirstlane_b32 s{S_W}, v8
    s_and_b32 s{S_T}, s2, 7
    s_lshr_b32 s{S_T+1}, s2, 3
    s_lshr_b32 s{S_T+2}, s{S_T+1}, 3
    s_lshl_b32 s{S_HD}, s{S_T}, 2
    s_add_u32 s{S_HD}, s{S_HD}, s{S_T+2}
    s_and_b32 s{S_T+1}, s{S_T+1}, 7
    s_lshl_b32 s{S_TB}, s{S_T+1}, 3
    s_add_u32 s{S_TB}, s{S_TB}, s{S_W}
    v_lshlrev_b32 v{V_L16}, 4, v0
    ''')
    if stamp: a('s_memtime s[90:91]\ns_memrealtime s[92:93]')
    a(f'''
    s_and_b32 s{S_T}, s{S_W}, 1
    s_lshr_b32 s{S_T+1}, s{S_W}, 1
    s_lshl_b32 s{S_KB}, s{S_HD}, 17
    s_lshl_b32 s{S_T+2}, s{S_T}, 16
    s_add_u32 s{S_KB}, s{S_KB}, s{S_T+2}
    s_lshl_b32 s{S_T+2}, s{S_T+1}, 10
    s_add_u32 s{S_KB}, s{S_KB}, s{S_T+2}
    s_add_u32 s{S_VB}, s{S_KB}, {WS_QKV + 64*131072}
    s_add_u32 s{S_KB}, s{S_KB}, {WS_QKV + 32*131072}
    s_lshl_b32 s{S_LD}, s{S_W}, 10
    v_lshrrev_b32 v8, 5, v0
    s_lshl_b32 s{S_T+2}, s{S_T}, 1
    v_add_u32 v9, s{S_T+2}, v8
    v_lshlrev_b32 v9, 6, v9
    v_xor_b32 v{V_VOFF}, v{V_L16}, v9
    v_xor_b32 v{V_VOFF2}, 128, v{V_VOFF}
    s_waitcnt lgkmcnt(0)
    s_mov_b32 s{S_WS}, s20
    s_mov_b32 s{S_WS+1}, s21
    s_mov_b32 s{S_WS+2}, 0x10000000
    s_mov_b32 s{S_WS+3}, 0x20000
    ''')
    srd = f's[{S_WS}:{S_WS+3}]'
    def dma(slot):
        return [[f's_add_u32 m0, s{S_LD}, {slot*CH}', f'buffer_load_dwordx4 v{V_L16}, {srd}, s{S_KB} offen lds', f's_add_u32 s{S_KB}, s{S_KB}, 4096'],
                [f's_add_u32 m0, s{S_LD}, {slot*CH + 8192}', f'buffer_load_dwordx4 v{V_VOFF}, {srd}, s{S_VB} offen lds', f's_add_u32 s{S_VB}, s{S_VB}, 4096']]
    a(f'''
    s_lshl_b32 s{S_T}, s{S_HD}, 17
    s_lshl_b32 s{S_T+1}, s{S_TB}, 10
    s_add_u32 s{S_T}, s{S_T}, s{S_T+1}
    s_add_u32 s{S_T+1}, s{S_T}, 65536
    buffer_load_dwordx4 {r4(Q)}, v{V_L16}, {srd}, s{S_T} offen
    buffer_load_dwordx4 {r4(Q+4)}, v{V_L16}, {srd}, s{S_T+1} offen
    v_and_b32 v8, 31, v0
    v_lshlrev_b32 v8, 2, v8
    s_lshl_b32 s{S_T+2}, s{S_TB}, 7
    s_add_u32 s{S_T+2}, s{S_T+2}, {WS_G:#x}
    buffer_load_dword v{V_G}, v8, {srd}, s{S_T+2} offen
    ''')
    for sl in range(2):
        for it in dma(sl):
            for l in it: a(l)
    a(f'''
    v_bfe_u32 v8, v0, 4, 1
    v_lshrrev_b32 v9, 5, v0
    v_bfe_u32 v10, v0, 1, 1
    v_bfe_u32 v11, v0, 2, 2
    v_and_b32 v12, 1, v0
    v_lshlrev_b32 v13, 10, v8
    v_lshl_add_u32 v13, v10, 9, v13
    v_lshl_add_u32 v13, v8, 7, v13
    v_xor_b32 v9, v9, v10
    v_lshl_add_u32 v13, v9, 6, v13
    v_lshl_add_u32 v13, v11, 4, v13
    v_lshl_add_u32 v13, v12, 3, v13
    v_add_u32 v{V_VRD}, 8192, v13
    v_xor_b32 v{V_VRD+1}, 128, v{V_VRD}
    ''')
    a(f'''
    v_bfe_u32 v9, v0, 2, 1
    v_xor_b32 v9, v9, v8
    v_and_b32 v10, 3, v0
    v_or_b32 v9, v9, v10
    v_cmp_eq_u32 vcc, 0, v9
    v_mov_b32 v10, 0x3f803f80
    v_cndmask_b32 v{ONES}, 0, v10, vcc
    v_cndmask_b32 v{ONES+1}, 0, v10, vcc
    v_cndmask_b32 v{ONES+2}, 0, v10, vcc
    v_cndmask_b32 v{ONES+3}, 0, v10, vcc
    ''')
    for r in range(4): a(f'v_mov_b32 v{L+r}, 0')
    for r in range(16): a(f'v_mov_b32 v{O+r}, 0')

    def kread(blk, base=None):
        off = ((blk >> 2) % RING) * CH + (blk & 3) * 2048
        return [f'ds_read_b128 {r4(KF[blk & 1] + 4*kk)}, v{V_L16} offset:{off + kk*1024}' for kk in range(2)]
    def vread(blk):
        off = ((blk >> 2) % RING) * CH + (blk & 3) * 2048
        return [f'ds_read_b64_tr_b16 v[{VF[blk & 1] + 4*m + 2*rr}:{VF[blk & 1] + 4*m + 2*rr + 1}], v{V_VRD+rr} offset:{off + m*256}' for m in range(2) for rr in range(2)]
    def qk(blk, c):
        s = S[blk & 1]; k = KF[blk & 1]
        return [f'v_mfma_f32_32x32x16_bf16 {r16(s)}, {r4(k)}, {r4(Q)}, {c}',
                f'v_mfma_f32_32x32x16_bf16 {r16(s)}, {r4(k+4)}, {r4(Q+4)}, {r16(s)}']
    def rowmax(s, dst, tmp):
        a(f'v_max3_f32 v{dst}, v{s}, v{s+1}, v{s+2}')
        a(f'v_max3_f32 v{tmp}, v{s+3}, v{s+4}, v{s+5}')
        for j in range(6, 14, 4):
            a(f'v_max3_f32 v{dst}, v{dst}, v{s+j}, v{s+j+1}')
            a(f'v_max3_f32 v{tmp}, v{tmp}, v{s+j+2}, v{s+j+3}')
        a(f'v_max3_f32 v{dst}, v{dst}, v{s+14}, v{s+15}')
        a(f'v_max_f32 v{dst}, v{dst}, v{tmp}')
        a(f'v_mov_b32 v{tmp}, v{dst}')
        a(f'v_permlane32_swap_b32 v{dst}, v{tmp}')
        a(f'v_max_f32 v{dst}, v{dst}, v{tmp}')

    a('s_waitcnt vmcnt(2)\ns_barrier')
    for it in dma(2):
        for l in it: a(l)
    for l in kread(0) + kread(1): a(l)
    for r in range(8): a(f'v_mov_b32 v{P[1]+r}, 0')
    for r in range(8): a(f'v_mov_b32 v{VF[1]+r}, 0')
    a('s_waitcnt lgkmcnt(2)')
    for l in qk(0, '0'): a(l)
    rowmax(S[0], 8, 9)
    for r in range(16): a(f'v_sub_f32 v{CM+r}, 0, v8')
    for r in range(16): a(f'v_sub_f32 v{S[0]+r}, v{S[0]+r}, v8')
    a(f's_mov_b32 s{S_CNT}, 4')
    if stamp: a('s_memtime s[88:89]\ns_waitcnt lgkmcnt(0)')

    def summ(pp): return f'v_mfma_f32_16x16x32_bf16 {r4(L)}, {r4(ONES)}, {r4(pp)}, {r4(L)}'
    def pv(vf, pp): return f'v_mfma_f32_32x32x16_bf16 {r16(O)}, {r4(vf)}, {r4(pp)}, {r16(O)}'
    def body(i, last_iter=False):
        s = S[i & 1]; p = P[i & 1]; pp = P[(i - 1) & 1]; vf = VF[(i - 1) & 1]
        final = last_iter and i == 15
        ex = lambda j: f'v_exp_f32 v{s+j}, v{s+j}'
        cv = lambda j: f'v_cvt_pk_bf16_f32 v{p+j}, v{s+2*j}, v{s+2*j+1}'
        q = qk(i + 1, r16(CM)) if not final else [None, None]
        sync = ((i + 2) & 3) == 0 and not (last_iter and i >= 14)
        rd_k = kread(i + 2) if not (last_iter and i >= 14) else []
        rd_v = vread(i)
        a('s_waitcnt lgkmcnt(0)')
        if q[0]: a(q[0])
        a(ex(0)); a(rd_v[0]); a(ex(1)); a(rd_v[1]); a(ex(2)); a(ex(3))
        a(pv(vf, pp))
        a(ex(4)); a(rd_v[2]); a(ex(5)); a(rd_v[3]); a(ex(6)); a(ex(7))
        a(summ(pp))
        for j in range(0, 4): a(cv(j))
        if q[1]: a(q[1])
        if sync:
            c = (i + 2) >> 2
            nxt = not (last_iter and c >= 2)
            a(f's_waitcnt vmcnt({2 if not (last_iter and c == 3) else 0})')
            if barriers: a('s_barrier')
            d = dma((c + 2) % RING) if nxt else [[], []]
        else:
            d = [[], []]
        a(ex(8))
        if rd_k: a(rd_k[0])
        a(ex(9))
        if rd_k: a(rd_k[1])
        if d[0]: a(d[0][0])
        a(ex(10))
        for l in d[0][1:]: a(l)
        a(ex(11))
        a(pv(vf + 4, pp + 4))
        if d[1]: a(d[1][0])
        a(ex(12))
        for l in d[1][1:]: a(l)
        for j in range(13, 16): a(ex(j))
        a(summ(pp + 4))
        for j in range(4, 8): a(cv(j))
    m0 = a.mark()
    a.label(f'{name}_loop')
    for i in range(16): body(i)
    a(f's_sub_u32 s{S_CNT}, s{S_CNT}, 1\ns_cmp_lg_u32 s{S_CNT}, 1\ns_cbranch_scc1 {name}_loop')
    m1 = a.mark()
    for i in range(16): body(i, last_iter=True)
    a('s_waitcnt lgkmcnt(0)')
    for h in range(2):
        a(summ(P[1] + 4*h)); a(pv(VF[1] + 4*h, P[1] + 4*h))
    if stamp: a('s_memtime s[94:95]')
    a(f'v_mov_b32 v8, 0x207\nv_mov_b32 v9, 0x5f800000\nv_cmp_nlt_f32 s[22:23], v{L}, v9')
    for r in range(16):
        a(f'v_cmp_class_f32 vcc, v{O+r}, v8')
        a('s_or_b64 s[22:23], s[22:23], vcc')
    if force_slow:
        a(f's_branch {name}_slow')
    a(f's_cmp_lg_u64 s[22:23], 0\ns_cbranch_scc1 {name}_slow')
    a.label(f'{name}_fin')
    a(f'''
    v_rcp_f32 v8, v{L}
    s_mul_i32 s{S_T}, s{S_TB}, {OH_TB}
    s_lshl_b32 s{S_T+1}, s{S_HD}, 11
    s_add_u32 s{S_T}, s{S_T}, s{S_T+1}
    s_add_u32 s{S_T}, s{S_T}, {WS_OH:#x}
    v_mul_f32 v8, v8, v{V_G}
    ''')
    for r in range(16): a(f'v_mul_f32 v{O+r}, v{O+r}, v8')
    for j in range(8): a(f'v_cvt_pk_bf16_f32 v{S[0]+j}, v{O+2*j}, v{O+2*j+1}')
    for pr in range(2):
        b = S[0] + 4*pr
        a(f'v_permlane32_swap_b32 v{b}, v{b+2}\nv_permlane32_swap_b32 v{b+1}, v{b+3}')
        a(f'buffer_store_dwordx4 {r4(b)}, v{V_L16}, {srd}, s{S_T} offen offset:{pr*1024}')
    if stamp:
        a(f'''
        s_waitcnt vmcnt(0)
        s_memtime s[96:97]
        s_memrealtime s[98:99]
        s_waitcnt lgkmcnt(0)
        v_mov_b32 v4, s90
        v_mov_b32 v5, s94
        v_mov_b32 v6, s96
        v_mov_b32 v7, s92
        v_mov_b32 v8, s98
        v_mov_b32 v9, s88
        v_mov_b32 v10, 0
        s_lshl_b32 s74, s2, 3
        s_add_u32 s74, s74, s{S_W}
        s_lshl_b32 s74, s74, 5
        s_add_u32 s74, s74, 0x8100000
        s_mov_b32 exec_lo, 1
        s_mov_b32 exec_hi, 0
        buffer_store_dwordx4 v[4:7], v10, {srd}, s74 offen
        buffer_store_dwordx2 v[8:9], v10, {srd}, s74 offen offset:16
        ''')
    a.label(f'{name}_end')
    a('s_endpgm')
    m2 = a.mark()
    a.label(f'{name}_slow')
    M, AL, T2 = 8, 9, 10
    a(f'''
    s_lshl_b32 s{S_KB}, s{S_HD}, 17
    s_add_u32 s{S_VB}, s{S_KB}, {WS_QKV + 64*131072}
    s_add_u32 s{S_KB}, s{S_KB}, {WS_QKV + 32*131072}
    s_lshl_b32 s{S_LD}, s{S_W}, 12
    s_add_u32 s{S_LD}, s{S_LD}, {PRIV}
    s_and_b32 s{S_T}, s{S_W}, 1
    s_lshl_b32 s{S_T}, s{S_T}, 7
    v_xor_b32 v{V_VOFF}, s{S_T}, v{V_VOFF}
    v_xor_b32 v{V_VOFF2}, 128, v{V_VOFF}
    v_add_u32 v12, s{S_LD}, v{V_L16}
    s_sub_u32 s{S_T}, s{S_LD}, {8192 - 2048}
    v_add_u32 v13, s{S_T}, v{V_VRD}
    v_add_u32 v14, s{S_T}, v{V_VRD+1}
    v_mov_b32 v{M}, 0xff800000
    s_mov_b32 s{S_CNT}, 64
    ''')
    for r in range(4): a(f'v_mov_b32 v{L+r}, 0')
    for r in range(16): a(f'v_mov_b32 v{O+r}, 0')
    s0 = a.mark()
    a.label(f'{name}_sloop')
    a(f'''
    s_add_u32 s{S_T}, s{S_KB}, 65536
    s_add_u32 s{S_T+1}, s{S_VB}, 65536
    s_add_u32 m0, s{S_LD}, 0
    buffer_load_dwordx4 v{V_L16}, {srd}, s{S_KB} offen lds
    s_add_u32 m0, s{S_LD}, 1024
    buffer_load_dwordx4 v{V_L16}, {srd}, s{S_T} offen lds
    s_add_u32 m0, s{S_LD}, 2048
    buffer_load_dwordx4 v{V_VOFF}, {srd}, s{S_VB} offen lds
    s_add_u32 m0, s{S_LD}, 3072
    buffer_load_dwordx4 v{V_VOFF2}, {srd}, s{S_T+1} offen lds
    s_add_u32 s{S_KB}, s{S_KB}, 1024
    s_add_u32 s{S_VB}, s{S_VB}, 1024
    s_waitcnt vmcnt(0)
    ds_read_b128 {r4(KF[0])}, v12
    ds_read_b128 {r4(KF[0]+4)}, v12 offset:1024
    ''')
    for m in range(2):
        for rr in range(2):
            a(f'ds_read_b64_tr_b16 v[{VF[0] + 4*m + 2*rr}:{VF[0] + 4*m + 2*rr + 1}], v{13+rr} offset:{m*256}')
    a('s_waitcnt lgkmcnt(0)')
    for l in qk(0, '0'): a(l)
    rowmax(S[0], AL, T2)
    a(f'''
    v_max_f32 v{T2}, v{AL}, v{M}
    v_sub_f32 v{AL}, v{M}, v{T2}
    v_exp_f32 v{AL}, v{AL}
    v_mov_b32 v{M}, v{T2}
    ''')
    for r in range(16): a(f'v_sub_f32 v{S[0]+r}, v{S[0]+r}, v{M}')
    for r in range(16): a(f'v_exp_f32 v{S[0]+r}, v{S[0]+r}')
    for r in range(4): a(f'v_mul_f32 v{L+r}, v{L+r}, v{AL}')
    for r in range(16): a(f'v_mul_f32 v{O+r}, v{O+r}, v{AL}')
    for j in range(8): a(f'v_cvt_pk_bf16_f32 v{P[0]+j}, v{S[0]+2*j}, v{S[0]+2*j+1}')
    for m in range(2):
        a(f'v_mfma_f32_16x16x32_bf16 {r4(L)}, {r4(ONES)}, {r4(P[0]+4*m)}, {r4(L)}')
        a(f'v_mfma_f32_32x32x16_bf16 {r16(O)}, {r4(VF[0]+4*m)}, {r4(P[0]+4*m)}, {r16(O)}')
    a(f's_nop 15\ns_sub_u32 s{S_CNT}, s{S_CNT}, 1\ns_cmp_lg_u32 s{S_CNT}, 0\ns_cbranch_scc1 {name}_sloop')
    s1 = a.mark()
    a(f's_branch {name}_fin')
    tr = a.ins[:m1] + a.ins[m0:m1] + a.ins[m1:m2]
    errs = check_seq(tr, name) + check_seq(a.ins[m2:s1] + a.ins[s0:s1], name + '_slow')
    for e in errs[:20]: print('CHECK', e)
    return kernel_text(name, a, NV, 102, NV), LDS_BYTES

if __name__ == '__main__':
    import k1, sys
    t1, l1 = k1.gen(stamp=True)
    t2, l2 = gen(stamp=True, force_slow='--slow' in sys.argv, barriers='--nobar' not in sys.argv)
    hdr = (f'; @launch kernel=k1_kernel grid=(256,1,1) block=(256,1,1) lds={l1}\n'
           f'; @launch kernel=k2_kernel grid=(256,1,1) block=(512,1,1) lds={l2}\n.amdgcn_target "amdgcn-amd-amdhsa--gfx950"\n')
    open('k2s.s' if '--slow' in sys.argv else 'k2n.s' if '--nobar' in sys.argv else 'k2t.s', 'w').write(hdr + t1 + t2)
```

```python
from asmlib import *
from k1 import WS_OH, WS_G, OH_TB

R = 6
SB = 16384 + 8192
LDS_BYTES = R * SB
NDMA = 6
V_L16, V_WOFF, V_ARD, V_WRD, V_AB, V_WB = 1, 2, 3, 4, 6, 7
V_G = 10
ACC = [16, 48]
FR = [80, 104]
NV = 128
S_WS, S_WD, S_OUT = 4, 8, 12
S_W, S_WR, S_WQ, S_RB, S_CB, S_AK, S_WK, S_LA, S_LW, S_SLOT, S_DS, S_CNT, S_RS, S_T = 16, 17, 18, 19, 20, 21, 22, 23, 24, 25, 26, 27, 28, 30

def r4(b): return f'v[{b}:{b+3}]'

def gen(name='k3_kernel', stamp=False):
    a = Asm()
    a(f'''
    s_cmp_ge_u32 s2, 256
    s_cbranch_scc1 {name}_end
    s_load_dwordx2 s[40:41], s[0:1], 16
    s_load_dwordx2 s[42:43], s[0:1], 48
    s_load_dwordx2 s[44:45], s[0:1], 64
    s_load_dwordx2 s[46:47], s[0:1], 80
    v_lshrrev_b32 v8, 6, v0
    v_and_b32 v0, 63, v0
    v_readfirstlane_b32 s{S_W}, v8
    s_and_b32 s{S_T}, s2, 7
    s_lshr_b32 s{S_T+1}, s2, 3
    s_lshr_b32 s{S_T+2}, s{S_T}, 2
    s_and_b32 s{S_T+3}, s{S_T}, 3
    s_and_b32 s{S_RB}, s{S_T+1}, 7
    s_lshr_b32 s{S_CB}, s{S_T+1}, 3
    s_lshl_b32 s{S_T+2}, s{S_T+2}, 3
    s_add_u32 s{S_RB}, s{S_RB}, s{S_T+2}
    s_lshl_b32 s{S_T+3}, s{S_T+3}, 2
    s_add_u32 s{S_CB}, s{S_CB}, s{S_T+3}
    s_lshr_b32 s{S_WR}, s{S_W}, 1
    s_and_b32 s{S_WQ}, s{S_W}, 1
    v_lshlrev_b32 v{V_L16}, 4, v0
    ''')
    if stamp: a('s_memtime s[90:91]\ns_memrealtime s[92:93]')
    a(f'''
    s_lshl_b32 s{S_T}, s{S_RB}, 2
    s_add_u32 s{S_T}, s{S_T}, s{S_W}
    s_mul_i32 s{S_AK}, s{S_T}, {OH_TB}
    s_add_u32 s{S_AK}, s{S_AK}, {WS_OH:#x}
    s_mov_b32 s{S_WK}, 0
    s_lshl_b32 s{S_LA}, s{S_W}, 12
    s_lshl_b32 s{S_LW}, s{S_W}, 11
    s_add_u32 s{S_LW}, s{S_LW}, 16384
    v_lshrrev_b32 v8, 2, v0
    s_lshl_b32 s{S_T}, s{S_W}, 4
    v_add_u32 v8, s{S_T}, v8
    v_lshlrev_b32 v8, 11, v8
    v_lshrrev_b32 v9, 5, v0
    v_lshlrev_b32 v9, 1, v9
    v_and_b32 v10, 3, v0
    v_xor_b32 v9, v9, v10
    v_lshlrev_b32 v9, 4, v9
    s_lshl_b32 s{S_T}, s{S_CB}, 7
    v_add3_u32 v{V_WOFF}, v8, v9, s{S_T}
    s_mov_b32 s{S_SLOT}, 0
    s_mov_b32 s{S_DS}, 0
    s_waitcnt lgkmcnt(0)
    s_mov_b32 s{S_WS}, s46
    s_mov_b32 s{S_WS+1}, s47
    s_mov_b32 s{S_WS+2}, 0x10000000
    s_mov_b32 s{S_WS+3}, 0x20000
    s_mov_b32 s{S_WD}, s40
    s_mov_b32 s{S_WD+1}, s41
    s_mov_b32 s{S_WD+2}, {1024*2048}
    s_mov_b32 s{S_WD+3}, 0x20000
    s_mov_b32 s{S_OUT}, s44
    s_mov_b32 s{S_OUT+1}, s45
    s_mov_b32 s{S_OUT+2}, {2048*2048}
    s_mov_b32 s{S_OUT+3}, 0x20000
    ''')
    ws = f's[{S_WS}:{S_WS+3}]'; wd = f's[{S_WD}:{S_WD+3}]'
    a(f'''
    v_and_b32 v8, 15, v0
    v_lshlrev_b32 v8, 2, v8
    s_lshl_b32 s{S_T}, s{S_RB}, 9
    s_lshl_b32 s{S_T+1}, s{S_WR}, 8
    s_add_u32 s{S_T}, s{S_T}, s{S_T+1}
    s_add_u32 s{S_T}, s{S_T}, {WS_G:#x}
    ''')
    for tb in range(4): a(f'buffer_load_dword v{V_G+tb}, v8, {ws}, s{S_T} offen offset:{tb*64}')
    def dma():
        L = [[f's_add_u32 m0, s{S_LA}, s{S_SLOT}', f'buffer_load_dwordx4 v{V_L16}, {ws}, s{S_AK} offen lds']]
        for j in range(1, 4): L.append([f'buffer_load_dwordx4 v{V_L16}, {ws}, s{S_AK} offen offset:{j*1024} lds'])
        L.append([f's_add_u32 m0, s{S_LW}, s{S_SLOT}', f's_add_u32 s{S_AK}, s{S_AK}, 4096', f'buffer_load_dwordx4 v{V_WOFF}, {wd}, s{S_WK} offen lds'])
        L.append([f's_add_u32 m0, m0, {1024-64}', f's_add_u32 s{S_DS}, s{S_DS}, 1', f'buffer_load_dwordx4 v{V_WOFF}, {wd}, s{S_WK} offen offset:64 lds',
                  f's_add_u32 s{S_WK}, s{S_WK}, {64*2048}',
                  f's_cmp_eq_u32 s{S_DS}, 16',
                  f's_cselect_b32 s{S_WK}, 0, s{S_WK}',
                  f's_cselect_b32 s{S_WD}, s42, s{S_WD}',
                  f's_cselect_b32 s{S_WD+1}, s43, s{S_WD+1}',
                  f's_cselect_b32 s{S_WD+2}, {3584*2048}, s{S_WD+2}',
                  f's_add_u32 s{S_SLOT}, s{S_SLOT}, {SB}',
                  f's_cmp_eq_u32 s{S_SLOT}, {R*SB}',
                  f's_cselect_b32 s{S_SLOT}, 0, s{S_SLOT}'])
        return L
    for st in range(R):
        for it in dma():
            for l in it: a(l)
    a(f'''
    v_and_b32 v8, 15, v0
    v_lshrrev_b32 v9, 4, v0
    v_lshlrev_b32 v14, 9, v9
    v_lshl_add_u32 v14, v8, 4, v14
    s_lshl_b32 s{S_T}, s{S_WR}, 13
    v_add_u32 v{V_AB}, s{S_T}, v14
    v_lshrrev_b32 v14, 5, v0
    v_lshlrev_b32 v14, 11, v14
    v_and_b32 v15, 1, v9
    v_lshl_add_u32 v14, v15, 9, v14
    v_lshl_add_u32 v14, v15, 5, v14
    v_lshrrev_b32 v15, 2, v8
    v_lshl_add_u32 v14, v15, 6, v14
    v_and_b32 v15, 3, v8
    v_lshl_add_u32 v14, v15, 3, v14
    s_lshl_b32 s{S_T}, s{S_WQ}, 10
    s_add_u32 s{S_T}, s{S_T}, 16384
    v_add_u32 v{V_WB}, s{S_T}, v14
    v_xor_b32 v{V_WB+1}, 32, v{V_WB}
    v_mov_b32 v{V_ARD}, v{V_AB}
    v_mov_b32 v{V_WRD}, v{V_WB}
    v_mov_b32 v{V_WRD+1}, v{V_WB+1}
    s_mov_b32 s{S_RS}, 0
    ''')
    for r in range(ACC[0], ACC[0] + 64): a(f'v_mov_b32 v{r}, 0')
    def reads(ks, st):
        f = FR[st]
        ws_ = [f'ds_read_b64_tr_b16 v[{f+16+4*par+2*h}:{f+16+4*par+2*h+1}], v{V_WRD+par} offset:{ks*4096 + h*256}' for par in range(2) for h in range(2)]
        xs = [f'ds_read_b128 {r4(f+4*tb)}, v{V_ARD} offset:{(tb>>1)*4096 + ks*2048 + (tb&1)*256}' for tb in range(4)]
        return ws_[:2] + xs + ws_[2:]
    def mfmas(st, ac):
        f = FR[st]
        return [f'v_mfma_f32_16x16x32_bf16 {r4(ACC[ac]+16*par+4*tb)}, {r4(f+16+4*par)}, {r4(f+4*tb)}, {r4(ACC[ac]+16*par+4*tb)}' for par in range(2) for tb in range(4)]
    a(f's_waitcnt vmcnt({NDMA*(R-1)})\ns_barrier')
    for l in reads(0, 0): a(l)
    if stamp: a('s_memtime s[88:89]')
    marks = []
    for ac, n in ((0, 16), (1, 56)):
        a(f's_mov_b32 s{S_CNT}, {n}')
        m0 = a.mark()
        a.label(f'{name}_loop{ac}')
        a('s_waitcnt lgkmcnt(0)')
        rd = reads(1, 1); mm = mfmas(0, ac)
        for i in range(8): a(rd[i]); a(mm[i])
        a(f'''
        s_add_u32 s{S_RS}, s{S_RS}, {SB}
        s_cmp_eq_u32 s{S_RS}, {R*SB}
        s_cselect_b32 s{S_RS}, 0, s{S_RS}
        s_waitcnt vmcnt({NDMA*(R-2)}) lgkmcnt(0)
        s_barrier
        v_add_u32 v{V_ARD}, s{S_RS}, v{V_AB}
        v_add_u32 v{V_WRD}, s{S_RS}, v{V_WB}
        v_add_u32 v{V_WRD+1}, s{S_RS}, v{V_WB+1}
        ''')
        rd = reads(0, 0); mm = mfmas(1, ac); dm = dma()
        for i in range(8):
            a(rd[i]); a(mm[i])
            if i < 6:
                for l in dm[i]: a(l)
        a(f's_sub_u32 s{S_CNT}, s{S_CNT}, 1\ns_cmp_lg_u32 s{S_CNT}, 0\ns_cbranch_scc1 {name}_loop{ac}')
        marks.append((m0, a.mark()))
    if stamp: a('s_memtime s[94:95]')
    a(f'''
    s_waitcnt lgkmcnt(0)
    v_and_b32 v8, 15, v0
    v_lshrrev_b32 v9, 4, v0
    v_lshlrev_b32 v8, 11, v8
    v_and_b32 v14, 1, v9
    v_lshl_add_u32 v8, v14, 5, v8
    v_lshrrev_b32 v14, 1, v9
    v_lshl_add_u32 v8, v14, 4, v8
    s_lshl_b32 s{S_T}, s{S_RB}, 18
    s_lshl_b32 s{S_T+1}, s{S_WR}, 17
    s_add_u32 s{S_T}, s{S_T}, s{S_T+1}
    s_lshl_b32 s{S_T+1}, s{S_CB}, 7
    s_add_u32 s{S_T}, s{S_T}, s{S_T+1}
    s_lshl_b32 s{S_T+1}, s{S_WQ}, 6
    s_add_u32 s{S_T}, s{S_T}, s{S_T+1}
    ''')
    for tb in range(4): a(f'v_sub_f32 v{V_G+tb}, 1.0, v{V_G+tb}')
    for tb in range(4):
        o = FR[0] + 4*tb
        for par in range(2):
            for j in range(4):
                a(f'v_fmac_f32 v{ACC[0]+16*par+4*tb+j}, v{V_G+tb}, v{ACC[1]+16*par+4*tb+j}')
        for par in range(2):
            for j in range(2):
                b = ACC[0]+16*par+4*tb+2*j
                a(f'v_cvt_pk_bf16_f32 v{o+2*par+j}, v{b}, v{b+1}')
        a(f'v_permlane16_swap_b32 v{o}, v{o+2}\nv_permlane16_swap_b32 v{o+1}, v{o+3}')
        a(f'buffer_store_dwordx4 {r4(o)}, v8, s[{S_OUT}:{S_OUT+3}], s{S_T} offen')
        a(f's_add_u32 s{S_T}, s{S_T}, {16*2048}')
    a('s_waitcnt vmcnt(0)')
    if stamp:
        a(f'''
        s_memtime s[96:97]
        s_memrealtime s[98:99]
        s_waitcnt lgkmcnt(0)
        v_mov_b32 v4, s90
        v_mov_b32 v5, s94
        v_mov_b32 v6, s96
        v_mov_b32 v7, s92
        v_mov_b32 v8, s98
        v_mov_b32 v9, s88
        v_mov_b32 v10, 0
        s_lshl_b32 s74, s2, 3
        s_add_u32 s74, s74, s{S_W}
        s_lshl_b32 s74, s74, 5
        s_add_u32 s74, s74, 0x8200000
        s_mov_b32 exec_lo, 1
        s_mov_b32 exec_hi, 0
        buffer_store_dwordx4 v[4:7], v10, {ws}, s74 offen
        buffer_store_dwordx2 v[8:9], v10, {ws}, s74 offen offset:16
        ''')
    a.label(f'{name}_end')
    a('s_endpgm')
    (a0, a1), (b0, b1) = marks
    tr = a.ins[:a1] + a.ins[a0:a1] + a.ins[a1:b1] + a.ins[b0:b1] + a.ins[b1:]
    for e in check_seq(tr, name)[:20]: print('CHECK', e)
    return kernel_text(name, a, NV, 102, NV), LDS_BYTES
```

```python
import sys, k1, k2, k3
stamp = '--stamp' in sys.argv
t1, l1 = k1.gen(stamp=stamp); t2, l2 = k2.gen(stamp=stamp); t3, l3 = k3.gen(stamp=stamp)
ref = open('gated_mix__softmax_full_mha__swiglu_ffn__prompt.s.ref').read().split('\n')
head = [l for l in ref if l.startswith(';') and '@launch' not in l and 'Override launch' not in l and 'grid=ceil' not in l]
hdr = '\n'.join(head) + '\n'
hdr += f'; @launch kernel=k1_kernel grid=(256,1,1) block=(256,1,1) lds={l1}\n'
hdr += f'; @launch kernel=k2_kernel grid=(256,1,1) block=(512,1,1) lds={l2}\n'
hdr += f'; @launch kernel=k3_kernel grid=(256,1,1) block=(256,1,1) lds={l3}\n'
hdr += '.amdgcn_target "amdgcn-amd-amdhsa--gfx950"\n'
out = sys.argv[1] if len(sys.argv) > 1 and not sys.argv[1].startswith('--') else 'gated_mix__softmax_full_mha__swiglu_ffn__prompt.s'
open(out, 'w').write(hdr + t1 + t2 + t3)
```

```python
from asmlib import *
from k1 import WS_QKV, WS_OH, WS_G, OH_TB

WS_PART = 0x2400000
RING = 4
CH = 16384
LDS_BYTES = 81920
NV = 128

def r4(b): return f'v[{b}:{b+3}]'
def r16(b): return f'v[{b}:{b+15}]'

def stamp_out(a, srd, s_w, base, idsub=0):
    a(f'''
    s_waitcnt vmcnt(0)
    s_memtime s[96:97]
    s_memrealtime s[98:99]
    s_waitcnt lgkmcnt(0)
    v_mov_b32 v4, s90
    v_mov_b32 v5, s94
    v_mov_b32 v6, s96
    v_mov_b32 v7, s92
    v_mov_b32 v8, s98
    v_mov_b32 v9, s88
    v_mov_b32 v10, 0
    s_sub_u32 s74, s2, {idsub}
    s_lshl_b32 s74, s74, 3
    s_add_u32 s74, s74, s{s_w}
    s_lshl_b32 s74, s74, 5
    s_add_u32 s74, s74, {base:#x}
    s_mov_b32 exec_lo, 1
    s_mov_b32 exec_hi, 0
    buffer_store_dwordx4 v[4:7], v10, {srd}, s74 offen
    buffer_store_dwordx2 v[8:9], v10, {srd}, s74 offen offset:16
    ''')

def attention(a, name, stamp, force_slow, prio):
    V_L16, V_VOFF, V_VOFF2, V_VRD, V_PF = 1, 2, 3, 4, 6
    Q, ONES, L, O, CM = 16, 24, 28, 32, 48
    S = [64, 80]
    P, KF, VF = 96, 104, 112
    S_WS = 4
    S_W, S_HD, S_TB, S_KB, S_VB, S_LD, S_CNT, S_T = 8, 9, 10, 11, 12, 13, 14, 16
    a(f'''
    s_load_dwordx2 s[20:21], s[0:1], 80
    s_load_dwordx2 s[24:25], s[0:1], 16
    v_lshrrev_b32 v8, 6, v0
    v_and_b32 v0, 63, v0
    v_readfirstlane_b32 s{S_W}, v8
    s_and_b32 s{S_T}, s2, 7
    s_lshr_b32 s{S_T+1}, s2, 3
    s_lshr_b32 s{S_T+2}, s{S_T+1}, 3
    s_lshl_b32 s{S_HD}, s{S_T}, 2
    s_add_u32 s{S_HD}, s{S_HD}, s{S_T+2}
    s_and_b32 s{S_T+1}, s{S_T+1}, 7
    s_lshl_b32 s{S_TB}, s{S_T+1}, 3
    s_add_u32 s{S_TB}, s{S_TB}, s{S_W}
    v_lshlrev_b32 v{V_L16}, 4, v0
    ''')
    if prio: a(f's_setprio {prio}')
    if stamp: a('s_memtime s[90:91]\ns_memrealtime s[92:93]')
    a(f'''
    s_and_b32 s{S_T}, s{S_W}, 1
    s_lshr_b32 s{S_T+1}, s{S_W}, 1
    s_lshl_b32 s{S_KB}, s{S_HD}, 17
    s_lshl_b32 s{S_T+2}, s{S_T}, 16
    s_add_u32 s{S_KB}, s{S_KB}, s{S_T+2}
    s_lshl_b32 s{S_T+2}, s{S_T+1}, 10
    s_add_u32 s{S_KB}, s{S_KB}, s{S_T+2}
    s_add_u32 s{S_VB}, s{S_KB}, {WS_QKV + 64*131072}
    s_add_u32 s{S_KB}, s{S_KB}, {WS_QKV + 32*131072}
    s_lshl_b32 s{S_LD}, s{S_W}, 10
    v_lshrrev_b32 v8, 5, v0
    s_lshl_b32 s{S_T+2}, s{S_T}, 1
    v_add_u32 v9, s{S_T+2}, v8
    v_lshlrev_b32 v9, 6, v9
    v_xor_b32 v{V_VOFF}, v{V_L16}, v9
    s_waitcnt lgkmcnt(0)
    s_mov_b32 s{S_WS}, s20
    s_mov_b32 s{S_WS+1}, s21
    s_mov_b32 s{S_WS+2}, 0x10000000
    s_mov_b32 s{S_WS+3}, 0x20000
    s_mov_b32 s26, {1024*2048}
    s_mov_b32 s27, 0x20000
    ''')
    srd = f's[{S_WS}:{S_WS+3}]'
    def dma(slot):
        return [[f's_add_u32 m0, s{S_LD}, {slot*CH}', f'buffer_load_dwordx4 v{V_L16}, {srd}, s{S_KB} offen lds', f's_add_u32 s{S_KB}, s{S_KB}, 4096'],
                [f's_add_u32 m0, s{S_LD}, {slot*CH + 8192}', f'buffer_load_dwordx4 v{V_VOFF}, {srd}, s{S_VB} offen lds', f's_add_u32 s{S_VB}, s{S_VB}, 4096']]
    a(f'''
    s_lshl_b32 s{S_T}, s{S_HD}, 17
    s_lshl_b32 s{S_T+1}, s{S_TB}, 10
    s_add_u32 s{S_T}, s{S_T}, s{S_T+1}
    s_add_u32 s{S_T+1}, s{S_T}, 65536
    buffer_load_dwordx4 {r4(Q)}, v{V_L16}, {srd}, s{S_T} offen
    buffer_load_dwordx4 {r4(Q+4)}, v{V_L16}, {srd}, s{S_T+1} offen
    ''')
    for sl in range(2):
        for it in dma(sl):
            for l in it: a(l)
    a(f'''
    v_bfe_u32 v8, v0, 4, 1
    v_lshrrev_b32 v9, 5, v0
    v_bfe_u32 v10, v0, 1, 1
    v_bfe_u32 v11, v0, 2, 2
    v_and_b32 v12, 1, v0
    v_lshlrev_b32 v13, 10, v8
    v_lshl_add_u32 v13, v10, 9, v13
    v_lshl_add_u32 v13, v8, 7, v13
    v_xor_b32 v9, v9, v10
    v_lshl_add_u32 v13, v9, 6, v13
    v_lshl_add_u32 v13, v11, 4, v13
    v_lshl_add_u32 v13, v12, 3, v13
    v_add_u32 v{V_VRD}, 8192, v13
    v_xor_b32 v{V_VRD+1}, 128, v{V_VRD}
    v_bfe_u32 v9, v0, 2, 1
    v_xor_b32 v9, v9, v8
    v_and_b32 v10, 3, v0
    v_or_b32 v9, v9, v10
    v_cmp_eq_u32 vcc, 0, v9
    v_mov_b32 v10, 0x3f803f80
    v_cndmask_b32 v{ONES}, 0, v10, vcc
    v_cndmask_b32 v{ONES+1}, 0, v10, vcc
    v_cndmask_b32 v{ONES+2}, 0, v10, vcc
    v_cndmask_b32 v{ONES+3}, 0, v10, vcc
    ''')
    for r in range(4): a(f'v_mov_b32 v{L+r}, 0')
    for r in range(16): a(f'v_mov_b32 v{O+r}, 0')
    for r in range(8): a(f'v_mov_b32 v{P+r}, 0')
    for r in range(8): a(f'v_mov_b32 v{VF+r}, 0')

    def off(blk): return ((blk >> 2) % RING) * CH + (blk & 3) * 2048
    def kread(blk, kk): return f'ds_read_b128 {r4(KF + 4*kk)}, v{V_L16} offset:{off(blk) + kk*1024}'
    def vread(blk, m): return [f'ds_read_b64_tr_b16 v[{VF + 4*m + 2*rr}:{VF + 4*m + 2*rr + 1}], v{V_VRD+rr} offset:{off(blk) + m*256}' for rr in range(2)]
    def qk(blk, c):
        s = S[blk & 1]
        return [f'v_mfma_f32_32x32x16_bf16 {r16(s)}, {r4(KF)}, {r4(Q)}, {c}',
                f'v_mfma_f32_32x32x16_bf16 {r16(s)}, {r4(KF+4)}, {r4(Q+4)}, {r16(s)}']
    def rowmax(s, dst, tmp):
        a(f'v_max3_f32 v{dst}, v{s}, v{s+1}, v{s+2}')
        a(f'v_max3_f32 v{tmp}, v{s+3}, v{s+4}, v{s+5}')
        for j in range(6, 14, 4):
            a(f'v_max3_f32 v{dst}, v{dst}, v{s+j}, v{s+j+1}')
            a(f'v_max3_f32 v{tmp}, v{tmp}, v{s+j+2}, v{s+j+3}')
        a(f'v_max3_f32 v{dst}, v{dst}, v{s+14}, v{s+15}')
        a(f'v_max_f32 v{dst}, v{dst}, v{tmp}')
        a(f'v_mov_b32 v{tmp}, v{dst}')
        a(f'v_permlane32_swap_b32 v{dst}, v{tmp}')
        a(f'v_max_f32 v{dst}, v{dst}, v{tmp}')

    a('s_waitcnt vmcnt(2)\ns_barrier')
    for it in dma(2):
        for l in it: a(l)
    a(kread(0, 0)); a(kread(0, 1))
    a('s_waitcnt lgkmcnt(0)')
    for l in qk(0, '0'): a(l)
    a(kread(1, 0)); a(kread(1, 1))
    rowmax(S[0], 8, 9)
    for r in range(16): a(f'v_sub_f32 v{CM+r}, 0, v8')
    for r in range(16): a(f'v_sub_f32 v{S[0]+r}, v{S[0]+r}, v8')
    a(f's_mov_b32 s{S_CNT}, 4')
    a('s_waitcnt lgkmcnt(0)')
    if stamp: a('s_memtime s[88:89]\ns_waitcnt lgkmcnt(0)')

    def summ(pp): return f'v_mfma_f32_16x16x32_bf16 {r4(L)}, {r4(ONES)}, {r4(pp)}, {r4(L)}'
    def pv(vf, pp): return f'v_mfma_f32_32x32x16_bf16 {r16(O)}, {r4(vf)}, {r4(pp)}, {r16(O)}'
    def body(i, last_iter=False):
        s = S[i & 1]
        final = last_iter and i == 15
        nok = last_iter and i >= 14
        ex = lambda j: f'v_exp_f32 v{s+j}, v{s+j}'
        cv = lambda j: f'v_cvt_pk_bf16_f32 v{P+j}, v{s+2*j}, v{s+2*j+1}'
        q = qk(i + 1, r16(CM)) if not final else [None, None]
        sync = ((i + 2) & 3) == 0 and not nok
        prevk = 0 if (last_iter and i == 15) else 1
        d = [[], []]
        if sync:
            c = (i + 2) >> 2
            nxt = not (last_iter and c >= 2)
            a(f's_waitcnt vmcnt({2 if not (last_iter and c == 3) else 0}) lgkmcnt({2 + prevk})')
            a('s_barrier')
            if nxt: d = dma((c + 2) % RING)
        else:
            a(f's_waitcnt lgkmcnt({2 + prevk})')
        if q[0]: a(q[0])
        a(ex(0))
        if not nok: a(kread(i + 2, 0))
        a(ex(1))
        if d[0]: a(d[0][0])
        a(ex(2))
        for l in d[0][1:]: a(l)
        a(ex(3))
        a(pv(VF, P))
        rv = vread(i, 0)
        a(ex(4)); a(rv[0]); a(ex(5)); a(rv[1]); a(ex(6)); a(ex(7))
        a(summ(P))
        for j in range(0, 4): a(cv(j))
        a(f's_waitcnt lgkmcnt({2 + (0 if nok else 1)})')
        if q[1]: a(q[1])
        a(ex(8))
        if not nok: a(kread(i + 2, 1))
        a(ex(9))
        if d[1]: a(d[1][0])
        a(ex(10))
        for l in d[1][1:]: a(l)
        a(ex(11))
        a(pv(VF + 4, P + 4))
        rv = vread(i, 1)
        a(ex(12)); a(rv[0]); a(ex(13)); a(rv[1]); a(ex(14)); a(ex(15))
        a(summ(P + 4))
        for j in range(4, 8): a(cv(j))
    m0 = a.mark()
    a.label(f'{name}_loop')
    for i in range(16): body(i)
    a(f's_sub_u32 s{S_CNT}, s{S_CNT}, 1\ns_cmp_lg_u32 s{S_CNT}, 1\ns_cbranch_scc1 {name}_loop')
    m1 = a.mark()
    a(f'''
    s_lshl_b32 s{S_T}, s2, 13
    s_add_u32 s{S_T}, s{S_T}, s{S_LD}
    ''')
    for i in range(16):
        body(i, last_iter=True)
        if i == 11: a(f'buffer_load_dword v{V_PF}, v{V_L16}, s[24:27], s{S_T} offen')
    a('s_waitcnt lgkmcnt(0)')
    for h in range(2):
        a(summ(P + 4*h)); a(pv(VF + 4*h, P + 4*h))
    if stamp: a('s_memtime s[94:95]')
    a('s_barrier')
    a(f'v_mov_b32 v8, 0x207\nv_mov_b32 v9, 0x5f800000\nv_cmp_nlt_f32 s[22:23], v{L}, v9')
    for r in range(16):
        a(f'v_cmp_class_f32 vcc, v{O+r}, v8')
        a('s_or_b64 s[22:23], s[22:23], vcc')
    if force_slow: a(f's_branch {name}_slow')
    a(f's_cmp_lg_u64 s[22:23], 0\ns_cbranch_scc1 {name}_slow')
    a.label(f'{name}_fin')
    a(f'''
    v_rcp_f32 v8, v{L}
    s_mul_i32 s{S_T}, s{S_TB}, {OH_TB}
    s_lshl_b32 s{S_T+1}, s{S_HD}, 11
    s_add_u32 s{S_T}, s{S_T}, s{S_T+1}
    s_add_u32 s{S_T}, s{S_T}, {WS_OH:#x}
    ''')
    for r in range(16): a(f'v_mul_f32 v{O+r}, v{O+r}, v8')
    for j in range(8): a(f'v_cvt_pk_bf16_f32 v{S[0]+j}, v{O+2*j}, v{O+2*j+1}')
    for pr in range(2):
        b = S[0] + 4*pr
        a(f'v_permlane32_swap_b32 v{b}, v{b+2}\nv_permlane32_swap_b32 v{b+1}, v{b+3}')
        a(f'buffer_store_dwordx4 {r4(b)}, v{V_L16}, {srd}, s{S_T} offen offset:{pr*1024}')
    if stamp: stamp_out(a, srd, S_W, 0x8100000)
    a('s_endpgm')
    m2 = a.mark()
    a.label(f'{name}_slow')
    M, AL, T2 = 8, 9, 10
    a(f'''
    s_lshl_b32 s{S_KB}, s{S_HD}, 17
    s_add_u32 s{S_VB}, s{S_KB}, {WS_QKV + 64*131072}
    s_add_u32 s{S_KB}, s{S_KB}, {WS_QKV + 32*131072}
    s_lshl_b32 s{S_LD}, s{S_W}, 12
    s_and_b32 s{S_T}, s{S_W}, 1
    s_lshl_b32 s{S_T}, s{S_T}, 7
    v_xor_b32 v{V_VOFF}, s{S_T}, v{V_VOFF}
    v_xor_b32 v{V_VOFF2}, 128, v{V_VOFF}
    v_add_u32 v12, s{S_LD}, v{V_L16}
    s_sub_u32 s{S_T}, s{S_LD}, {8192 - 2048}
    v_add_u32 v13, s{S_T}, v{V_VRD}
    v_add_u32 v14, s{S_T}, v{V_VRD+1}
    v_mov_b32 v{M}, 0xff800000
    s_mov_b32 s{S_CNT}, 64
    ''')
    for r in range(4): a(f'v_mov_b32 v{L+r}, 0')
    for r in range(16): a(f'v_mov_b32 v{O+r}, 0')
    s0 = a.mark()
    a.label(f'{name}_sloop')
    a(f'''
    s_add_u32 s{S_T}, s{S_KB}, 65536
    s_add_u32 s{S_T+1}, s{S_VB}, 65536
    s_add_u32 m0, s{S_LD}, 0
    buffer_load_dwordx4 v{V_L16}, {srd}, s{S_KB} offen lds
    s_add_u32 m0, s{S_LD}, 1024
    buffer_load_dwordx4 v{V_L16}, {srd}, s{S_T} offen lds
    s_add_u32 m0, s{S_LD}, 2048
    buffer_load_dwordx4 v{V_VOFF}, {srd}, s{S_VB} offen lds
    s_add_u32 m0, s{S_LD}, 3072
    buffer_load_dwordx4 v{V_VOFF2}, {srd}, s{S_T+1} offen lds
    s_add_u32 s{S_KB}, s{S_KB}, 1024
    s_add_u32 s{S_VB}, s{S_VB}, 1024
    s_waitcnt vmcnt(0)
    ds_read_b128 {r4(KF)}, v12
    ds_read_b128 {r4(KF+4)}, v12 offset:1024
    ''')
    for m in range(2):
        for rr in range(2):
            a(f'ds_read_b64_tr_b16 v[{VF + 4*m + 2*rr}:{VF + 4*m + 2*rr + 1}], v{13+rr} offset:{m*256}')
    a('s_waitcnt lgkmcnt(0)')
    for l in qk(0, '0'): a(l)
    rowmax(S[0], AL, T2)
    a(f'''
    v_max_f32 v{T2}, v{AL}, v{M}
    v_sub_f32 v{AL}, v{M}, v{T2}
    v_exp_f32 v{AL}, v{AL}
    v_mov_b32 v{M}, v{T2}
    ''')
    for r in range(16): a(f'v_sub_f32 v{S[0]+r}, v{S[0]+r}, v{M}')
    for r in range(16): a(f'v_exp_f32 v{S[0]+r}, v{S[0]+r}')
    for r in range(4): a(f'v_mul_f32 v{L+r}, v{L+r}, v{AL}')
    for r in range(16): a(f'v_mul_f32 v{O+r}, v{O+r}, v{AL}')
    for j in range(8): a(f'v_cvt_pk_bf16_f32 v{P+j}, v{S[0]+2*j}, v{S[0]+2*j+1}')
    for m in range(2):
        a(summ(P + 4*m)); a(pv(VF + 4*m, P + 4*m))
    a(f's_nop 15\ns_sub_u32 s{S_CNT}, s{S_CNT}, 1\ns_cmp_lg_u32 s{S_CNT}, 0\ns_cbranch_scc1 {name}_sloop')
    s1 = a.mark()
    a(f's_branch {name}_fin')
    tr = a.ins[:m1] + a.ins[m0:m1] + a.ins[m1:m2]
    return check_seq(tr, name) + check_seq(a.ins[m2:s1] + a.ins[s0:s1], name + '_slow')

def down(a, name, stamp, prio):
    R, SB = 5, 16384
    V_L16, V_WOFF, V_AB, V_WB, V_ARD, V_WRD = 1, 2, 3, 4, 5, 6
    ACC = 16
    FR = [48, 72]
    S_A, S_WD, S_WS = 4, 8, 12
    S_W, S_WR, S_WQ, S_RB, S_CB, S_KH, S_AK, S_WK, S_LA, S_LW, S_SLOT, S_CNT, S_RS, S_T = 16, 17, 18, 19, 20, 21, 22, 23, 24, 25, 26, 27, 28, 30
    st = a.mark()
    a(f'''
    s_load_dwordx2 s[42:43], s[0:1], 48
    s_load_dwordx2 s[46:47], s[0:1], 80
    v_lshrrev_b32 v8, 6, v0
    v_and_b32 v0, 63, v0
    v_readfirstlane_b32 s{S_W}, v8
    s_and_b32 s{S_T}, s2, 7
    s_lshr_b32 s{S_T+1}, s2, 3
    s_and_b32 s{S_T+1}, s{S_T+1}, 31
    s_and_b32 s{S_KH}, s{S_T}, 1
    s_lshr_b32 s{S_T}, s{S_T}, 1
    s_lshl_b32 s{S_RB}, s{S_T}, 2
    s_lshr_b32 s{S_T+2}, s{S_T+1}, 3
    s_add_u32 s{S_RB}, s{S_RB}, s{S_T+2}
    s_and_b32 s{S_CB}, s{S_T+1}, 7
    s_lshr_b32 s{S_WR}, s{S_W}, 2
    s_and_b32 s{S_WQ}, s{S_W}, 3
    v_lshlrev_b32 v{V_L16}, 4, v0
    ''')
    if prio: a(f's_setprio {prio}')
    if stamp: a('s_memtime s[90:91]\ns_memrealtime s[92:93]')
    a(f'''
    s_lshl_b32 s{S_T}, s{S_RB}, 2
    s_lshr_b32 s{S_T+1}, s{S_W}, 1
    s_add_u32 s{S_T}, s{S_T}, s{S_T+1}
    s_mul_i32 s{S_AK}, s{S_T}, {OH_TB}
    s_mul_i32 s{S_T}, s{S_KH}, {1792*64}
    s_add_u32 s{S_AK}, s{S_AK}, s{S_T}
    s_add_u32 s{S_AK}, s{S_AK}, {WS_OH + 1024*64}
    s_add_u32 s{S_T+3}, s{S_AK}, {1792*64}
    s_and_b32 s{S_T}, s{S_W}, 1
    s_lshl_b32 s{S_T}, s{S_T}, 10
    s_add_u32 s{S_AK}, s{S_AK}, s{S_T}
    s_mul_i32 s{S_WK}, s{S_KH}, {1792*2048}
    s_add_u32 s{S_T+4}, s{S_WK}, {1792*2048}
    s_lshl_b32 s{S_LA}, s{S_W}, 10
    s_add_u32 s{S_LW}, s{S_LA}, 8192
    v_lshrrev_b32 v8, 2, v0
    s_lshl_b32 s{S_T}, s{S_WR}, 4
    v_add_u32 v8, s{S_T}, v8
    v_lshlrev_b32 v8, 11, v8
    v_and_b32 v9, 3, v0
    v_lshlrev_b32 v9, 4, v9
    s_lshl_b32 s{S_T}, s{S_CB}, 8
    s_lshl_b32 s{S_T+1}, s{S_WQ}, 6
    s_add_u32 s{S_T}, s{S_T}, s{S_T+1}
    v_add3_u32 v{V_WOFF}, v8, v9, s{S_T}
    s_mov_b32 s{S_SLOT}, 0
    s_waitcnt lgkmcnt(0)
    s_mov_b32 s{S_A}, s46
    s_mov_b32 s{S_A+1}, s47
    s_mov_b32 s{S_A+2}, s{S_T+3}
    s_mov_b32 s{S_A+3}, 0x20000
    s_mov_b32 s{S_WD}, s42
    s_mov_b32 s{S_WD+1}, s43
    s_mov_b32 s{S_WD+2}, s{S_T+4}
    s_mov_b32 s{S_WD+3}, 0x20000
    s_mov_b32 s{S_WS}, s46
    s_mov_b32 s{S_WS+1}, s47
    s_mov_b32 s{S_WS+2}, 0x10000000
    s_mov_b32 s{S_WS+3}, 0x20000
    ''')
    sa = f's[{S_A}:{S_A+3}]'; wd = f's[{S_WD}:{S_WD+3}]'; ws = f's[{S_WS}:{S_WS+3}]'
    def dma():
        return [f's_add_u32 m0, s{S_LA}, s{S_SLOT}', f's_add_u32 s{S_T}, s{S_LW}, s{S_SLOT}',
                f'buffer_load_dwordx4 v{V_L16}, {sa}, s{S_AK} offen lds',
                f's_mov_b32 m0, s{S_T}', f's_add_u32 s{S_AK}, s{S_AK}, 2048',
                f'buffer_load_dwordx4 v{V_WOFF}, {wd}, s{S_WK} offen lds',
                f's_add_u32 s{S_WK}, s{S_WK}, {32*2048}',
                f's_add_u32 s{S_SLOT}, s{S_SLOT}, {SB}',
                f's_cmp_eq_u32 s{S_SLOT}, {R*SB}',
                f's_cselect_b32 s{S_SLOT}, 0, s{S_SLOT}']
    for s_ in range(R):
        for l in dma(): a(l)
    a(f'''
    s_lshl_b32 s{S_T}, s{S_WR}, 12
    v_add_u32 v{V_AB}, s{S_T}, v{V_L16}
    v_lshrrev_b32 v8, 5, v0
    v_lshlrev_b32 v8, 9, v8
    v_bfe_u32 v9, v0, 2, 2
    v_lshl_add_u32 v8, v9, 6, v8
    v_bfe_u32 v9, v0, 4, 1
    v_lshl_add_u32 v8, v9, 5, v8
    v_and_b32 v9, 3, v0
    v_lshl_add_u32 v8, v9, 3, v8
    s_lshl_b32 s{S_T}, s{S_WQ}, 10
    s_add_u32 s{S_T}, s{S_T}, 8192
    v_add_u32 v{V_WB}, s{S_T}, v8
    s_mov_b32 s{S_RS}, {SB}
    s_mov_b32 s{S_CNT}, 28
    ''')
    for r in range(ACC, ACC + 32): a(f'v_mov_b32 v{r}, 0')
    def reads(st_, va, vw):
        f = FR[st_]; L = []
        for j in range(2):
            b = f + 12*j
            L += [f'ds_read_b64_tr_b16 v[{b+2*rr}:{b+2*rr+1}], v{vw} offset:{j*4096 + rr*256}' for rr in range(2)]
            L += [f'ds_read_b128 {r4(b+4+4*t)}, v{va} offset:{t*2048 + j*1024}' for t in range(2)]
        return L
    def mfmas(st_):
        f = FR[st_]
        return [f'v_mfma_f32_32x32x16_bf16 {r16(ACC+16*t)}, {r4(f+12*j)}, {r4(f+12*j+4+4*t)}, {r16(ACC+16*t)}' for j in range(2) for t in range(2)]
    a(f's_waitcnt vmcnt({2*(R-1)})\ns_barrier')
    for l in reads(0, V_AB, V_WB): a(l)
    if stamp: a('s_memtime s[88:89]')
    m0 = a.mark()
    a.label(f'{name}_loop')
    for u in range(2):
        a(f'''
        v_add_u32 v{V_ARD}, s{S_RS}, v{V_AB}
        v_add_u32 v{V_WRD}, s{S_RS}, v{V_WB}
        s_add_u32 s{S_RS}, s{S_RS}, {SB}
        s_cmp_eq_u32 s{S_RS}, {R*SB}
        s_cselect_b32 s{S_RS}, 0, s{S_RS}
        s_waitcnt vmcnt({2*(R-2)}) lgkmcnt(0)
        s_barrier
        ''')
        rd = reads(1 - u, V_ARD, V_WRD); mm = mfmas(u); dm = dma()
        a(mm[0])
        for l in rd[0:4]: a(l)
        a(mm[1])
        for l in rd[4:8]: a(l)
        a(mm[2])
        for l in dm: a(l)
        a(mm[3])
    a(f's_sub_u32 s{S_CNT}, s{S_CNT}, 1\ns_cmp_lg_u32 s{S_CNT}, 0\ns_cbranch_scc1 {name}_loop')
    m1 = a.mark()
    if stamp: a('s_memtime s[94:95]')
    a(f'''
    s_lshl_b32 s{S_T}, s{S_KH}, 6
    s_lshl_b32 s{S_T+1}, s{S_RB}, 2
    s_add_u32 s{S_T}, s{S_T}, s{S_T+1}
    s_lshl_b32 s{S_T+1}, s{S_WR}, 1
    s_add_u32 s{S_T}, s{S_T}, s{S_T+1}
    s_lshl_b32 s{S_T}, s{S_T}, 5
    s_lshl_b32 s{S_T+1}, s{S_CB}, 2
    s_add_u32 s{S_T}, s{S_T}, s{S_T+1}
    s_add_u32 s{S_T}, s{S_T}, s{S_WQ}
    s_lshl_b32 s{S_T}, s{S_T}, 11
    s_add_u32 s{S_T}, s{S_T}, {WS_PART:#x}
    s_add_u32 s{S_T+1}, s{S_T}, {32*2048}
    s_waitcnt lgkmcnt(0)
    ''')
    for t in range(2):
        o = 96 + 8*t
        for j in range(8): a(f'v_cvt_pk_bf16_f32 v{o+j}, v{ACC+16*t+2*j}, v{ACC+16*t+2*j+1}')
        for h in range(2): a(f'buffer_store_dwordx4 {r4(o+4*h)}, v{V_L16}, {ws}, s{S_T+t} offen offset:{h*1024}')
    a('s_waitcnt vmcnt(0)')
    if stamp: stamp_out(a, ws, S_W, 0x8300000, 256)
    a('s_endpgm')
    return check_seq(a.ins[st:m1] + a.ins[m0:m1] + a.ins[m1:], name)

def gen(name='k2_kernel', stamp=False, force_slow=False, prio_a=0, prio_g=1, only=None):
    a = Asm()
    a(f'''
    s_cmp_ge_u32 s2, 512
    s_cbranch_scc1 {name}_end
    s_cmp_ge_u32 s2, 256
    s_cbranch_scc1 {name + ('_end' if only == 'a' else '_down')}
    ''')
    if only == 'g': a(f's_branch {name}_end')
    errs = attention(a, name, stamp, force_slow, prio_a)
    a.label(f'{name}_down')
    errs += down(a, name + '_d', stamp, prio_g)
    a.label(f'{name}_end')
    a('s_endpgm')
    for e in errs[:20]: print('CHECK', e)
    return kernel_text(name, a, NV, 102, NV), LDS_BYTES
```

```python
from asmlib import *
from k1 import WS_OH, WS_G, OH_TB
from k2f import WS_PART, stamp_out

LDS_BYTES = 131072
D = 8
AR = D + 2
NV = 256
def r4(b): return f'v[{b}:{b+3}]'
def r16(b): return f'v[{b}:{b+15}]'

def gen(name='k3_kernel', stamp=False):
    V_L16, V_WOFF, V_WRD, V_WRD2, V_G, V_O = 1, 2, 3, 4, 5, 6
    ACC = 16
    PT = 48
    A0 = 80
    WF = 240
    S_WS, S_WO, S_OUT = 4, 8, 12
    S_W, S_RB, S_CB, S_AK, S_WK, S_LW, S_T = 16, 17, 18, 19, 20, 21, 24
    a = Asm()
    a(f'''
    s_cmp_ge_u32 s2, 256
    s_cbranch_scc1 {name}_end
    s_load_dwordx2 s[40:41], s[0:1], 16
    s_load_dwordx2 s[44:45], s[0:1], 64
    s_load_dwordx2 s[46:47], s[0:1], 80
    v_lshrrev_b32 v8, 6, v0
    v_and_b32 v0, 63, v0
    v_readfirstlane_b32 s{S_W}, v8
    s_and_b32 s{S_T}, s2, 7
    s_lshr_b32 s{S_T+1}, s2, 3
    s_lshl_b32 s{S_RB}, s{S_T}, 1
    s_lshr_b32 s{S_T+2}, s{S_T+1}, 4
    s_add_u32 s{S_RB}, s{S_RB}, s{S_T+2}
    s_and_b32 s{S_CB}, s{S_T+1}, 15
    v_lshlrev_b32 v{V_L16}, 4, v0
    ''')
    if stamp: a('s_memtime s[90:91]\ns_memrealtime s[92:93]')
    a(f'''
    s_lshl_b32 s{S_T}, s{S_RB}, 2
    s_add_u32 s{S_T}, s{S_T}, s{S_W}
    s_mul_i32 s{S_AK}, s{S_T}, {OH_TB}
    s_add_u32 s{S_AK}, s{S_AK}, {WS_OH:#x}
    s_lshl_b32 s{S_WK}, s{S_W}, 15
    s_lshl_b32 s{S_LW}, s{S_W}, 11
    v_lshrrev_b32 v8, 2, v0
    v_lshlrev_b32 v8, 11, v8
    v_and_b32 v9, 3, v0
    v_lshlrev_b32 v9, 4, v9
    s_lshl_b32 s{S_T+1}, s{S_CB}, 7
    v_add3_u32 v{V_WOFF}, v8, v9, s{S_T+1}
    s_lshl_b32 s{S_T+2}, s{S_T}, 16
    s_lshl_b32 s{S_T+3}, s{S_CB}, 12
    s_add_u32 s{S_T+2}, s{S_T+2}, s{S_T+3}
    s_add_u32 s{S_T+2}, s{S_T+2}, {WS_PART:#x}
    s_add_u32 s{S_T+3}, s{S_T+2}, {64*32*2048}
    s_lshl_b32 s{S_T+4}, s{S_T}, 7
    s_add_u32 s{S_T+4}, s{S_T+4}, {WS_G:#x}
    v_and_b32 v8, 31, v0
    v_lshlrev_b32 v9, 2, v8
    s_waitcnt lgkmcnt(0)
    s_mov_b32 s{S_WS}, s46
    s_mov_b32 s{S_WS+1}, s47
    s_mov_b32 s{S_WS+2}, 0x10000000
    s_mov_b32 s{S_WS+3}, 0x20000
    s_mov_b32 s{S_WO}, s40
    s_mov_b32 s{S_WO+1}, s41
    s_mov_b32 s{S_WO+2}, {1024*2048}
    s_mov_b32 s{S_WO+3}, 0x20000
    s_mov_b32 s{S_OUT}, s44
    s_mov_b32 s{S_OUT+1}, s45
    s_mov_b32 s{S_OUT+2}, {2048*2048}
    s_mov_b32 s{S_OUT+3}, 0x20000
    ''')
    ws = f's[{S_WS}:{S_WS+3}]'; wo = f's[{S_WO}:{S_WO+3}]'
    def group(i):
        ar = A0 + 16 * (i % AR)
        L = [f's_add_u32 m0, s{S_LW}, {i*8192}',
             f'buffer_load_dwordx4 {r4(ar)}, v{V_L16}, {ws}, s{S_AK} offen',
             f'buffer_load_dwordx4 v{V_WOFF}, {wo}, s{S_WK} offen lds',
             f's_add_u32 m0, s{S_LW}, {i*8192 + 1024 - 64}',
             f'buffer_load_dwordx4 {r4(ar+4)}, v{V_L16}, {ws}, s{S_AK} offen offset:1024',
             f'buffer_load_dwordx4 v{V_WOFF}, {wo}, s{S_WK} offen offset:64 lds',
             f'buffer_load_dwordx4 {r4(ar+8)}, v{V_L16}, {ws}, s{S_AK} offen offset:2048',
             f'buffer_load_dwordx4 {r4(ar+12)}, v{V_L16}, {ws}, s{S_AK} offen offset:3072',
             f's_add_u32 s{S_AK}, s{S_AK}, 4096',
             f's_add_u32 s{S_WK}, s{S_WK}, {64*2048}']
        return L
    for i in range(D):
        for l in group(i): a(l)
    a(f'''
    v_lshrrev_b32 v10, 5, v0
    v_lshlrev_b32 v10, 9, v10
    v_bfe_u32 v11, v0, 2, 2
    v_lshl_add_u32 v10, v11, 6, v10
    v_bfe_u32 v11, v0, 4, 1
    v_lshl_add_u32 v10, v11, 5, v10
    v_and_b32 v11, 3, v0
    v_lshl_add_u32 v{V_WRD}, v11, 3, v10
    v_add_u32 v{V_WRD2}, 65536, v{V_WRD}
    v_lshlrev_b32 v{V_O}, 11, v8
    v_lshrrev_b32 v10, 5, v0
    v_lshl_add_u32 v{V_O}, v10, 4, v{V_O}
    ''')
    for r in range(ACC, ACC + 32): a(f'v_mov_b32 v{r}, 0')
    def wread(k16):
        f = WF + 8 * (k16 & 1)
        base = k16 * 2048
        v = V_WRD if base < 65536 else V_WRD2
        return [f'ds_read_b64_tr_b16 v[{f+4*q+2*rr}:{f+4*q+2*rr+1}], v{v} offset:{(base & 65535) + q*1024 + rr*256}' for q in range(2) for rr in range(2)]
    if stamp: a('s_memtime s[88:89]\ns_waitcnt lgkmcnt(0)')
    NEXTRA = 9
    for i in range(16):
        ahead = min(i + D, 16) - (i + 1)
        extra = NEXTRA if i + D > 16 else 0
        a(f's_waitcnt vmcnt({6*ahead + extra})\ns_barrier')
        for l in wread(4*i): a(l)
        side = group(i + D) if i + D < 16 else []
        if i + D == 16:
            side = [f'buffer_load_dword v{V_G}, v9, {ws}, s{S_T+4} offen']
            for sp in range(2):
                for q in range(2):
                    for h in range(2):
                        side.append(f'buffer_load_dwordx4 {r4(PT+16*sp+8*q+4*h)}, v{V_L16}, {ws}, s{S_T+2+sp} offen offset:{q*2048+h*1024}')
        for j in range(4):
            k16 = 4*i + j
            if j < 3:
                for l in wread(k16 + 1): a(l)
                a('s_waitcnt lgkmcnt(4)')
            else:
                a('s_waitcnt lgkmcnt(0)')
            f = WF + 8 * (k16 & 1); ar = A0 + 16 * (i % AR) + 4*j
            for q in range(2):
                a(f'v_mfma_f32_32x32x16_bf16 {r16(ACC+16*q)}, {r4(f+4*q)}, {r4(ar)}, {r16(ACC+16*q)}')
            n = (len(side) + 3) // 4
            for l in side[j*n:(j+1)*n]: a(l)
    if stamp: a('s_memtime s[94:95]')
    a(f'''
    s_lshl_b32 s{S_T}, s{S_T}, 16
    s_add_u32 s{S_T}, s{S_T}, s{S_T+1}
    s_waitcnt vmcnt(0)
    v_sub_f32 v7, 1.0, v{V_G}
    s_mov_b32 s{S_T+5}, 0xffff0000
    ''')
    T = A0
    for q in range(2):
        for j in range(8):
            p0 = PT + 8*q + j; p1 = PT + 16 + 8*q + j
            t = T + 4*(j & 3)
            a(f'''
            v_lshlrev_b32 v{t}, 16, v{p0}
            v_lshlrev_b32 v{t+1}, 16, v{p1}
            v_and_b32 v{t+2}, s{S_T+5}, v{p0}
            v_and_b32 v{t+3}, s{S_T+5}, v{p1}
            v_add_f32 v{t}, v{t}, v{t+1}
            v_add_f32 v{t+2}, v{t+2}, v{t+3}
            v_mul_f32 v{t}, v{t}, v7
            v_mul_f32 v{t+2}, v{t+2}, v7
            v_fmac_f32 v{t}, v{V_G}, v{ACC+16*q+2*j}
            v_fmac_f32 v{t+2}, v{V_G}, v{ACC+16*q+2*j+1}
            v_cvt_pk_bf16_f32 v{T+32+8*q+j}, v{t}, v{t+2}
            ''')
        for pr in range(2):
            b = T + 32 + 8*q + 4*pr
            a(f'v_permlane32_swap_b32 v{b}, v{b+2}\nv_permlane32_swap_b32 v{b+1}, v{b+3}')
            a(f'buffer_store_dwordx4 {r4(b)}, v{V_O}, s[{S_OUT}:{S_OUT+3}], s{S_T} offen offset:{q*64+pr*32}')
    if stamp: stamp_out(a, ws, S_W, 0x8200000)
    a.label(f'{name}_end')
    a('s_endpgm')
    for e in check_seq(a.ins, name)[:20]: print('CHECK', e)
    return kernel_text(name, a, NV, 102, NV), LDS_BYTES
```

```python
import sys, k1, k2f, k3f
stamp = '--stamp' in sys.argv
kw = {}
for x in sys.argv:
    if x.startswith('--pa='): kw['prio_a'] = int(x[5:])
    if x.startswith('--pg='): kw['prio_g'] = int(x[5:])
    if x.startswith('--only='): kw['only'] = x[7:]
    if x == '--slow': kw['force_slow'] = True
t1, l1 = k1.gen(stamp=stamp); t2, l2 = k2f.gen(stamp=stamp, **kw); t3, l3 = k3f.gen(stamp=stamp)
ref = open('gated_mix__softmax_full_mha__swiglu_ffn__prompt.s.ref').read().split('\n')
head = [l for l in ref if l.startswith(';') and '@launch' not in l and 'Override launch' not in l and 'grid=ceil' not in l]
hdr = '\n'.join(head) + '\n'
hdr += f'; @launch kernel=k1_kernel grid=(256,1,1) block=(256,1,1) lds={l1}\n'
hdr += f'; @launch kernel=k2_kernel grid=(512,1,1) block=(512,1,1) lds={l2}\n'
hdr += f'; @launch kernel=k3_kernel grid=(256,1,1) block=(256,1,1) lds={l3}\n'
hdr += '.amdgcn_target "amdgcn-amd-amdhsa--gfx950"\n'
out = sys.argv[1] if len(sys.argv) > 1 and not sys.argv[1].startswith('--') else 'gated_mix__softmax_full_mha__swiglu_ffn__prompt.s'
open(out, 'w').write(hdr + t1 + t2 + t3)
```

```python
from asmlib import *
import struct

WS_QKV = 0
WS_OH = 0x1000000
WS_G = 0x2200000
WS_FLAG = 0x2300000
OH_TB = 4608 * 64
LOG2E = 1.4426950408889634
def f2u(f): return struct.unpack('<I', struct.pack('<f', f))[0]
QSCALE = f2u(32 ** -0.5 * LOG2E)
NLOG2E = f2u(-LOG2E)

XBUF = [0, 32768]
WBUF = [65536, 65536 + 40960]
LDS_BYTES = 65536 + 81920

def acc(half, t, tb):
    idx = (t * 2 + half) * 8 + tb
    if idx < 52: return ('v', 48 + 4 * idx)
    return ('a', 4 * (idx - 52))
def rng(r, n=4): return f'{r[0]}[{r[1]}:{r[1]+n-1}]'
def xfrag(st, tb): return ('a', 112 + 72 * st + 4 * tb)
def wfrag(st, half, t): return ('a', 112 + 72 * st + 32 + 4 * (half * 5 + t))

V_XOFF = 1
V_WOFF = 9
V_XRD = 12
V_WRD = 14
V_PF = 16
V_PD = 17
S_X, S_WA, S_WB, S_WC4, S_WS, S_PF = 4, 8, 12, 16, 20, 24
S_XK, S_WK, S_WI = 28, 29, 32
S_LX, S_LW, S_CNT, S_W, S_WR, S_WC, S_RB, S_CT, S_PK, S_PI = 35, 36, 37, 38, 39, 40, 41, 42, 43, 44
S_F0, S_N3, S_N4, S_ODD, S_HS = 45, 46, 47, 48, 49
S_PS, S_PM = 3, 57
S_T = 50
import os
PD = int(os.environ.get("PD", "1"))

def gen(name='k1_kernel', stamp=False, sched=None, store_mod='', code_from=None, code_to=None, pf=True):
    a = Asm()
    a(f'''
    s_cmp_ge_u32 s2, 256
    s_cbranch_scc1 {name}_end
    s_load_dwordx4 s[60:63], s[0:1], 0
    s_load_dwordx8 s[64:71], s[0:1], 32
    s_load_dwordx2 s[72:73], s[0:1], 80
    v_lshrrev_b32 v16, 6, v0
    v_and_b32 v0, 63, v0
    v_readfirstlane_b32 s{S_W}, v16
    s_and_b32 s{S_T}, s2, 7
    s_lshr_b32 s{S_T+1}, s2, 3
    s_and_b32 s{S_RB}, s{S_T+1}, 7
    s_lshr_b32 s{S_T+1}, s{S_T+1}, 3
    s_lshl_b32 s{S_CT}, s{S_T}, 2
    s_add_u32 s{S_CT}, s{S_CT}, s{S_T+1}
    s_lshr_b32 s{S_WR}, s{S_W}, 1
    s_and_b32 s{S_WC}, s{S_W}, 1
    ''')
    if stamp: a('s_memtime s[90:91]\ns_memrealtime s[92:93]')
    a(f'''
    s_and_b32 s{S_ODD}, s{S_CT}, 1
    s_lshr_b32 s{S_T}, s{S_CT}, 1
    s_mul_i32 s{S_F0}, s{S_T}, 224
    s_lshl_b32 s{S_T+1}, s{S_ODD}, 7
    s_add_u32 s{S_F0}, s{S_F0}, s{S_T+1}
    s_mul_i32 s{S_N4}, s{S_T}, 192
    s_add_u32 s{S_N3}, s{S_N4}, 64
    s_add_u32 s{S_N4}, s{S_N4}, s{S_T+1}
    s_movk_i32 s{S_T+2}, 7168
    s_cmp_eq_u32 s{S_ODD}, 1
    s_cselect_b32 s{S_T+3}, 6144, s{S_T+2}
    s_lshl_b32 s{S_T+4}, s{S_WC}, 5
    s_add_u32 s{S_T+5}, s{S_N3}, s{S_T+4}
    s_add_u32 s{S_T+6}, s{S_F0}, 96
    s_cmp_eq_u32 s{S_ODD}, 1
    s_cselect_b32 s{S_T+5}, s{S_T+5}, s{S_T+6}
    s_add_u32 s{S_T+6}, s{S_N4}, s{S_T+4}
    s_mov_b32 s{S_WI}, {7168*32}
    s_lshl_b32 s{S_WI+1}, s{S_T+3}, 5
    s_mov_b32 s{S_WI+2}, {6144*32}
    s_and_b32 s{S_HS}, s2, 7
    s_lshl_b32 s{S_XK}, s{S_HS}, 8
    s_lshl_b32 s{S_HS}, s{S_HS}, 2
    s_mul_i32 s{S_WK}, s{S_HS}, s{S_WI}
    s_mul_i32 s{S_WK+1}, s{S_HS}, s{S_WI+1}
    s_mul_i32 s{S_WK+2}, s{S_HS}, s{S_WI+2}
    s_lshl_b32 s{S_LX}, s{S_W}, 13
    s_mul_i32 s{S_LW}, s{S_WR}, 10240
    s_mul_i32 s{S_T}, s{S_WC}, 5120
    s_add_u32 s{S_LW}, s{S_LW}, s{S_T}
    v_lshrrev_b32 v17, 2, v0
    s_lshl_b32 s{S_T}, s{S_WR}, 4
    v_add_u32 v17, s{S_T}, v17
    v_lshrrev_b32 v18, 5, v0
    v_lshlrev_b32 v18, 1, v18
    v_and_b32 v19, 3, v0
    v_xor_b32 v18, v18, v19
    v_lshlrev_b32 v18, 4, v18
    v_mul_u32_u24 v{V_WOFF}, 7168, v17
    v_mul_lo_u32 v{V_WOFF+1}, v17, s{S_T+3}
    v_mul_u32_u24 v{V_WOFF+2}, 6144, v17
    s_lshl_b32 s{S_T}, s{S_F0}, 1
    s_lshl_b32 s{S_T+5}, s{S_T+5}, 1
    s_lshl_b32 s{S_T+6}, s{S_T+6}, 1
    v_add3_u32 v{V_WOFF}, v{V_WOFF}, v18, s{S_T}
    v_add3_u32 v{V_WOFF+1}, v{V_WOFF+1}, v18, s{S_T+5}
    v_add3_u32 v{V_WOFF+2}, v{V_WOFF+2}, v18, s{S_T+6}
    v_lshrrev_b32 v17, 3, v0
    s_lshl_b32 s{S_T}, s{S_RB}, 8
    s_lshl_b32 s{S_T+1}, s{S_W}, 6
    s_add_u32 s{S_T}, s{S_T}, s{S_T+1}
    v_add_u32 v17, s{S_T}, v17
    v_lshlrev_b32 v17, 11, v17
    v_and_b32 v18, 7, v0
    v_lshrrev_b32 v19, 4, v0
    v_xor_b32 v18, v18, v19
    v_lshlrev_b32 v18, 4, v18
    v_add_u32 v17, v17, v18
    v_xor_b32 v18, 64, v17
    ''')
    for i in range(8):
        a(f'v_add_u32 v{V_XOFF+i}, {i*16384}, v{17 if i % 2 == 0 else 18}')
    a(f'''
    v_lshlrev_b32 v18, 4, v0
    s_lshl_b32 s{S_T}, s2, 3
    s_lshl_b32 s{S_T+1}, s{S_W}, 1
    s_add_u32 s58, s{S_T}, s{S_T+1}
    s_lshl_b32 s59, s58, 11
    s_waitcnt lgkmcnt(0)
    {'s_memtime s[78:79]' if stamp else ''}
    s_mov_b32 s{S_X}, s60
    s_mov_b32 s{S_X+1}, s61
    s_mov_b32 s{S_X+2}, {2048*1024*2}
    s_mov_b32 s{S_X+3}, 0x20000
    s_cmp_eq_u32 s{S_WC}, 0
    s_cselect_b32 s{S_WA}, s64, s66
    s_cselect_b32 s{S_WA+1}, s65, s67
    s_mov_b32 s{S_WA+2}, {7168*1024}
    s_mov_b32 s{S_WA+3}, 0x20000
    s_cmp_eq_u32 s{S_ODD}, 1
    s_cselect_b32 s{S_WB}, s62, s{S_WA}
    s_cselect_b32 s{S_WB+1}, s63, s{S_WA+1}
    s_lshl_b32 s{S_WB+2}, s{S_T+3}, 10
    s_mov_b32 s{S_WB+3}, 0x20000
    s_mov_b32 s{S_WC4}, s62
    s_mov_b32 s{S_WC4+1}, s63
    s_mov_b32 s{S_WC4+2}, {6144*1024}
    s_mov_b32 s{S_WC4+3}, 0x20000
    ''')
    def dma_x(buf):
        L = []
        for i in range(8):
            L.append([f's_add_u32 m0, s{S_LX}, {XBUF[buf] + i*1024}',
                      f'buffer_load_dwordx4 v{V_XOFF+i}, s[{S_X}:{S_X+3}], s{S_XK} offen lds'])
        L[-1] += [f's_add_u32 s{S_XK}, s{S_XK}, 128', f's_and_b32 s{S_XK}, s{S_XK}, 2047']
        return L
    def dma_w(buf, ks):
        L = []
        for q in range(5):
            g = max(0, q - 2)
            io = q * 64 if q < 3 else 0
            srd = (S_WA, S_WB, S_WC4)[g]
            L.append([f's_add_u32 m0, s{S_LW}, {WBUF[buf] + ks*20480 + q*1024 - io}',
                      f'buffer_load_dwordx4 v{V_WOFF+g}, s[{srd}:{srd+3}], s{S_WK+g} offen offset:{io} lds'])
            if q == 0: L[-1].append(f's_add_u32 s{S_HS}, s{S_HS}, 1')
            if q == 1: L[-1].append(f's_and_b32 s{S_HS}, s{S_HS}, 31')
            if q >= 2: L[-1].append(f's_mul_i32 s{S_WK+g}, s{S_HS}, s{S_WI+g}')
        return L
    def flat(L): return [x for it in L for x in it]
    for l in flat(dma_w(0, 0)) + flat(dma_x(0)): a(l)
    a(f'''
    s_mov_b32 s80, s70
    s_mov_b32 s81, s71
    s_mov_b32 s82, 2048
    s_mov_b32 s83, 0x20000
    s_mov_b32 s{S_WS}, s72
    s_mov_b32 s{S_WS+1}, s73
    s_mov_b32 s{S_WS+2}, 0x10000000
    s_mov_b32 s{S_WS+3}, 0x20000
    ''')
    gl = [[f'buffer_load_dwordx4 v[28:31], v18, s[{S_X}:{S_X+3}], s59 offen'],
          [f'buffer_load_dwordx4 v[32:35], v18, s[{S_X}:{S_X+3}], s59 offen offset:1024'],
          [f'buffer_load_dwordx4 v[36:39], v18, s[{S_X}:{S_X+3}], s59 offen offset:2048'],
          [f'buffer_load_dwordx4 v[40:43], v18, s[{S_X}:{S_X+3}], s59 offen offset:3072'],
          ['buffer_load_dwordx4 v[20:23], v18, s[80:83], 0 offen'],
          ['buffer_load_dwordx4 v[24:27], v18, s[80:83], 0 offen offset:1024']]
    pf_setup = f'''
    s_cmp_eq_u32 s{S_W}, 0
    s_cselect_b32 s{S_PF}, s62, s64
    s_cselect_b32 s{S_PF+1}, s63, s65
    s_cselect_b32 s{S_T}, 24, 28
    s_cmp_eq_u32 s{S_W}, 2
    s_cselect_b32 s{S_PF}, s66, s{S_PF}
    s_cselect_b32 s{S_PF+1}, s67, s{S_PF+1}
    s_lshl_b32 s{S_PF+2}, s{S_T}, 18
    s_lshl_b32 s{S_PI}, s{S_T}, 14
    s_mov_b32 s{S_PF+3}, 0x20000
    s_and_b32 s{S_T+1}, s2, 7
    s_lshl_b32 s{S_PS}, s{S_T+1}, 1
    s_add_u32 s{S_PS}, s{S_PS}, 1
    s_lshl_b32 s{S_T+2}, s{S_T+1}, 5
    s_lshr_b32 s{S_T+4}, s2, 3
    s_lshl_b32 s{S_T+5}, s{S_T+4}, 9
    s_add_u32 s{S_T+2}, s{S_T+2}, s{S_T+5}
    s_lshl_b32 s{S_T+5}, s{S_T+4}, 6
    s_cmp_eq_u32 s{S_W}, 3
    s_cselect_b32 s{S_PF}, s60, s{S_PF}
    s_cselect_b32 s{S_PF+1}, s61, s{S_PF+1}
    s_cselect_b32 s{S_PF+2}, s{S_X+2}, s{S_PF+2}
    s_cselect_b32 s{S_T}, 0x800, s{S_T}
    s_cselect_b32 s{S_PI}, 0x80, s{S_PI}
    s_cselect_b32 s{S_T+2}, s{S_T+5}, s{S_T+2}
    s_cselect_b32 s{S_T+4}, 5, 8
    s_mul_i32 s{S_PK}, s{S_PS}, s{S_PI}
    v_lshrrev_b32 v19, 5, v0
    v_lshlrev_b32 v19, s{S_T+4}, v19
    v_and_b32 v{V_PF}, 31, v0
    v_add3_u32 v{V_PF}, v{V_PF}, v19, s{S_T+2}
    v_mul_lo_u32 v{V_PF}, v{V_PF}, s{S_T}
    '''
    pf_switch = f'''
    s_lshl_b32 s{S_T+5}, s2, 6
    v_add_u32 v19, s{S_T+5}, v0
    v_lshlrev_b32 v19, 5, v19
    s_cmp_eq_u32 s{S_W}, 3
    s_cselect_b32 s{S_PF}, s68, s{S_PF}
    s_cselect_b32 s{S_PF+1}, s69, s{S_PF+1}
    s_cselect_b32 s{S_PF+2}, s{S_WA+2}, s{S_PF+2}
    s_cselect_b32 s{S_PI}, 0x80000, s{S_PI}
    s_cselect_b32 s{S_PS}, 0, s{S_PS}
    s_cselect_b32 s{S_PK}, 0, s{S_PK}
    s_cselect_b64 vcc, -1, 0
    v_cndmask_b32 v{V_PF}, v{V_PF}, v19, vcc
    '''
    pfi = [f'buffer_load_dword v{V_PD}, v{V_PF}, s[{S_PF}:{S_PF+3}], s{S_PK} offen', f's_add_u32 s{S_PS}, s{S_PS}, 1', f's_and_b32 s{S_PS}, s{S_PS}, 15',
           f's_mul_i32 s{S_PK}, s{S_PS}, s{S_PI}']
    a(pf_setup)
    for l in flat(dma_w(0, 1)): a(l)
    for k in range(PD):
        for l in pfi: a(l)
    a(pf_switch)
    NP = 1 if pf else 0
    if stamp: a('s_memtime s[84:85]')
    a(f'''
    v_and_b32 v44, 15, v0
    v_lshrrev_b32 v46, 4, v0
    v_lshrrev_b32 v19, 1, v44
    v_xor_b32 v19, v19, v46
    v_lshlrev_b32 v19, 4, v19
    v_lshl_add_u32 v19, v44, 7, v19
    s_lshl_b32 s{S_T}, s{S_WR}, 14
    v_add_u32 v{V_XRD}, s{S_T}, v19
    v_xor_b32 v{V_XRD+1}, 64, v{V_XRD}
    v_lshrrev_b32 v19, 5, v0
    v_mul_u32_u24 v19, 10240, v19
    v_and_b32 v45, 1, v46
    v_lshl_add_u32 v19, v45, 9, v19
    v_xor_b32 v45, s{S_WC}, v45
    v_lshl_add_u32 v19, v45, 5, v19
    v_lshrrev_b32 v45, 2, v44
    v_lshl_add_u32 v19, v45, 6, v19
    v_and_b32 v45, 3, v44
    v_lshl_add_u32 v19, v45, 3, v19
    v_add_u32 v{V_WRD}, {WBUF[0]}, v19
    v_add_u32 v{V_WRD+1}, {WBUF[1]}, v19
    ''')
    zero = [f'v_mov_b32 v{r}, 0' for r in range(48, 256)] + [f'v_accvgpr_write_b32 a{r}, 0' for r in range(112)]
    if stamp: a('s_memtime s[86:87]')
    def reads(buf, ks, st, order='w'):
        xs = [f'ds_read_b128 {rng(xfrag(st, tb))}, v{V_XRD+ks} offset:{XBUF[buf] + tb*2048}' for tb in range(8)]
        ws = []
        for t in range(5):
            for half in range(2):
                r = wfrag(st, half, t)
                for h in range(2):
                    ws.append(f'ds_read_b64_tr_b16 {r[0]}[{r[1]+2*h}:{r[1]+2*h+1}], v{V_WRD+buf} offset:{ks*20480 + half*5120 + t*1024 + h*256}')
        return ws[:2] + xs + ws[2:]
    def mf(st, half, t, tb):
        c = rng(acc(half, t, tb))
        return f'v_mfma_f32_16x16x32_bf16 {c}, {rng(wfrag(st, half, t))}, {rng(xfrag(st, tb))}, {c}'
    def mfmas(st): return [mf(st, half, t, tb) for t in range(5) for half in range(2) for tb in range(8)]
    gate = ['v_mov_b32 v44, 0', 'v_mov_b32 v45, 0']
    for j in range(8):
        gate += [f'v_dot2_f32_bf16 v44, v{28+j}, v{20+j}, v44', f'v_dot2_f32_bf16 v45, v{36+j}, v{20+j}, v45']
    for d in ('quad_perm:[1,0,3,2] row_mask:0xf', 'quad_perm:[2,3,0,1] row_mask:0xf', 'row_half_mirror row_mask:0xf', 'row_mirror row_mask:0xf',
              'row_bcast:15 row_mask:0xa', 'row_bcast:31 row_mask:0xc'):
        gate += [f'v_add_f32_dpp v44, v44, v44 {d} bank_mask:0xf', f'v_add_f32_dpp v45, v45, v45 {d} bank_mask:0xf']
    gate += [f'v_mul_f32 v44, {NLOG2E:#x}, v44', f'v_mul_f32 v45, {NLOG2E:#x}, v45', 'v_exp_f32 v44, v44', 'v_exp_f32 v45, v45',
             'v_add_f32 v44, 1.0, v44', 'v_add_f32 v45, 1.0, v45', 'v_rcp_f32 v46, v44', 'v_rcp_f32 v47, v45']
    a(f's_waitcnt vmcnt({5+PD})\ns_barrier')
    for l in reads(0, 0, 0): a(l)
    a(f's_mov_b32 s{S_CNT}, 6')
    if stamp == 2: a('s_mov_b32 s101, 0\nv_mov_b32 v19, 0')
    if stamp: a('s_memtime s[88:89]')
    def step(st, wait, rd, dm, barrier=True, sc=None, valu=(), first=False):
        a(wait)
        if barrier: a('s_barrier')
        if stamp == 2:
            a('s_mov_b32 m0, s101\ns_nop 0\nv_writelane_b32 v19, s86, m0\ns_add_u32 s101, s101, 1\ns_memtime s[86:87]')
        body = mfmas(st)
        if first: body = [m.rsplit(',', 1)[0] + ', 0' for m in body]
        rs, re_, ds, de = sc if sc else sched if sched else (1, 57, 2, 74)
        slots = {}
        for k, it in enumerate(valu):
            slots.setdefault(2 + k * 76 // len(valu), []).append([it])
        for k, it in enumerate(rd):
            slots.setdefault(rs + k * (re_ - rs) // max(len(rd), 1), []).append([it])
        for k, it in enumerate(dm):
            slots.setdefault(ds + k * (de - ds) // max(len(dm), 1), []).append(it)
        for idx, m in enumerate(body):
            pre = [it for it in slots.get(idx, []) if it[0].startswith('s_add_u32 m0')]
            for it in pre: a(it[0])
            a(m)
            for it in slots.get(idx, []):
                for l in (it[1:] if it in pre else it): a(l)
    P1 = [pfi] if pf else []
    step(0, f's_waitcnt vmcnt({PD}) lgkmcnt(0)', reads(0, 1, 1), dma_w(1, 0) + dma_x(1) + dma_w(1, 1) + dma_w(0, 0) + P1, sc=(1, 57, 0, 72), first=True)
    step(1, 's_waitcnt vmcnt(11) lgkmcnt(0)', reads(1, 0, 0), dma_x(0) + gl + P1)
    step(0, f's_waitcnt vmcnt(21) lgkmcnt(0)', reads(1, 1, 1), dma_w(0, 1) + dma_w(1, 0) + P1)
    step(1, f's_waitcnt vmcnt(12) lgkmcnt(0)', reads(0, 0, 0), dma_x(1), valu=gate)
    m0 = a.mark()
    a.label(f'{name}_loop')
    for p in range(2):
        step(0, f's_waitcnt vmcnt({13+NP}) lgkmcnt(0)', reads(p, 1, 1), dma_w(1 - p, 1) + dma_w(p, 0) + P1)
        step(1, f's_waitcnt vmcnt({10+NP}) lgkmcnt(0)', reads(1 - p, 0, 0), dma_x(p))
    a(f's_sub_u32 s{S_CNT}, s{S_CNT}, 1\ns_cmp_lg_u32 s{S_CNT}, 0\ns_cbranch_scc1 {name}_loop')
    m1 = a.mark()
    extra = [[f's_lshl_b32 s59, s58, 2', f's_add_u32 s59, s59, {WS_G:#x}', 'v_mov_b32 v18, 0', 's_mov_b32 exec_lo, 0', 's_mov_b32 exec_hi, 0x80000000',
              f'buffer_store_dwordx2 v[46:47], v18, s[{S_WS}:{S_WS+3}], s59 offen',
              f's_lshl_b32 s59, s58, 6', f's_add_u32 s59, s59, {WS_FLAG:#x}',
              f'buffer_store_dword v18, v18, s[{S_WS}:{S_WS+3}], s59 offen', 's_mov_b64 exec, -1']]
    NE = 2
    if code_from:
        extra.append([f's_getpc_b64 s[{S_PF}:{S_PF+1}]', f'{name}_pc:',
                      f's_mov_b32 s{S_PF+2}, {code_to}-{name}_pc', f's_lshr_b32 s{S_T}, s2, 3', f's_lshl_b32 s{S_T}, s{S_T}, 2', f's_add_u32 s{S_T}, s{S_T}, s{S_W}',
                      f's_lshl_b32 s{S_T}, s{S_T}, 9', f'v_lshlrev_b32 v{V_PF}, 3, v0',
                      f'buffer_load_dword v5, v{V_PF}, s[{S_PF}:{S_PF+3}], s{S_T} offen'])
        NE = 3
    step(0, f's_waitcnt vmcnt({13+NP}) lgkmcnt(0)', reads(0, 1, 1), dma_w(1, 1) + extra)
    step(1, f's_waitcnt vmcnt({5+NE}) lgkmcnt(0)', reads(1, 0, 0), [])
    if stamp: a('s_memtime s[94:95]')

    if stamp == 2:
        a(f'''
        s_waitcnt lgkmcnt(0)
        s_mov_b32 m0, s101
        s_nop 0
        v_writelane_b32 v19, s86, m0
        s_lshl_b32 s74, s2, 2
        s_add_u32 s74, s74, s{S_W}
        s_lshl_b32 s74, s74, 8
        s_add_u32 s74, s74, 0x8400000
        v_lshlrev_b32 v18, 2, v0
        buffer_store_dword v19, v18, s[{S_WS}:{S_WS+3}], s74 offen
        s_waitcnt vmcnt(0)
        ''')
    a(f'''
    v_lshlrev_b32 v1, 4, v0
    s_mov_b32 s70, {NLOG2E:#x}
    s_mov_b32 s71, {NLOG2E:#x}
    s_lshl_b32 s{S_T}, s{S_RB}, 3
    s_lshl_b32 s{S_T+1}, s{S_WR}, 2
    s_add_u32 s{S_T}, s{S_T}, s{S_T+1}
    s_mul_i32 s72, s{S_T}, {OH_TB}
    s_lshl_b32 s{S_T+1}, s{S_F0}, 6
    s_add_u32 s72, s72, s{S_T+1}
    s_lshl_b32 s{S_T+1}, s{S_WC}, 10
    s_add_u32 s72, s72, s{S_T+1}
    s_add_u32 s72, s72, {WS_OH + 1024*64}
    s_lshl_b32 s73, s{S_T}, 10
    s_lshl_b32 s{S_T+1}, s{S_WC}, 16
    s_add_u32 s73, s73, s{S_T+1}
    s_lshl_b32 s69, s{S_T}, 11
    s_lshl_b32 s{S_T+1}, s{S_WC}, 8
    s_add_u32 s69, s69, s{S_T+1}
    v_and_b32 v18, 15, v0
    v_lshrrev_b32 v19, 4, v0
    v_lshlrev_b32 v2, 4, v18
    v_lshl_add_u32 v2, v19, 9, v2
    v_lshlrev_b32 v3, 5, v18
    v_lshl_add_u32 v3, v19, 3, v3
    v_add_u32 v3, s{S_LX}, v3
    v_lshrrev_b32 v4, 5, v0
    v_lshlrev_b32 v4, 9, v4
    v_and_b32 v19, 1, v19
    v_lshl_add_u32 v4, v19, 7, v4
    v_lshrrev_b32 v19, 2, v18
    v_lshl_add_u32 v4, v19, 5, v4
    v_and_b32 v19, 3, v18
    v_lshl_add_u32 v4, v19, 3, v4
    v_add_u32 v4, s{S_LX}, v4
    ''')
    ws = f's[{S_WS}:{S_WS+3}]'
    def M(t): return [mf(st, half, t, tb) for st in range(2) for half in range(2) for tb in range(8)]
    def getv(L, r, tmp):
        if r[0] == 'v': return r[1]
        for j in range(4): L.append(f'v_accvgpr_read_b32 v{tmp+j}, a{r[1]+j}')
        return tmp
    def epi_ffn(t):
        L = []
        for tbp in range(4):
            G = [getv(L, acc(0, t, 2*tbp + i), 16 + 4*i) for i in range(2)]
            U = [getv(L, acc(1, t, 2*tbp + i), 48 + 4*i) for i in range(2)]
            E = [24 + 12*(tbp % 2) + 4*i for i in range(2)]
            O = 32 + 12*(tbp % 2)
            for i in range(2):
                for j in (0, 2): L.append(f'v_pk_mul_f32 v[{E[i]+j}:{E[i]+j+1}], v[{G[i]+j}:{G[i]+j+1}], s[70:71]')
            for i in range(2):
                for j in range(4): L += (['@M'] if i == 0 else []) + [f'v_exp_f32 v{E[i]+j}, v{E[i]+j}']
            for i in range(2):
                for j in (0, 2): L.append(f'v_pk_mul_f32 v[{U[i]+j}:{U[i]+j+1}], v[{G[i]+j}:{G[i]+j+1}], v[{U[i]+j}:{U[i]+j+1}]')
            for i in range(2):
                for j in (0, 2): L.append(f'v_pk_add_f32 v[{E[i]+j}:{E[i]+j+1}], v[{E[i]+j}:{E[i]+j+1}], 1.0 op_sel_hi:[1,0]')
            for i in range(2):
                for j in range(4): L += (['@M'] if i == 0 else []) + [f'v_rcp_f32 v{E[i]+j}, v{E[i]+j}']
            L.append(f's_add_u32 s74, s72, {t*2048 + tbp*OH_TB}')
            for i in range(2):
                for j in (0, 2): L.append(f'v_pk_mul_f32 v[{U[i]+j}:{U[i]+j+1}], v[{U[i]+j}:{U[i]+j+1}], v[{E[i]+j}:{E[i]+j+1}]')
            for i in range(2):
                for j in range(2): L.append(f'v_cvt_pk_bf16_f32 v{O+2*i+j}, v{U[i]+2*j}, v{U[i]+2*j+1}')
            L += [f'v_permlane16_swap_b32 v{O}, v{O+2}', f'v_permlane16_swap_b32 v{O+1}, v{O+3}',
                  f'buffer_store_dwordx4 v[{O}:{O+3}], v1, {ws}, s74 offen {store_mod}']
        return L
    def epi_qk(t, scol, packed=True):
        L = [f's_cmp_lt_u32 s{scol}, 1024', f's_cselect_b32 s76, {QSCALE:#x}, 1.0', 's_mov_b32 s77, s76',
             f's_lshl_b32 s75, s{scol}, 12', 's_add_u32 s75, s75, s73']
        for half in range(2):
            for tbp in range(4):
                X = [getv(L, acc(half, t, 2*tbp + i), 48 + 4*i + 8*(tbp % 2)) for i in range(2)]
                O = 24 + 4*(tbp % 4)
                for i in range(2):
                    if packed:
                        for j in (0, 2): L.append(f'v_pk_mul_f32 v[{X[i]+j}:{X[i]+j+1}], v[{X[i]+j}:{X[i]+j+1}], s[76:77]')
                    else:
                        for j in range(4): L.append(f'v_mul_f32 v{X[i]+j}, s76, v{X[i]+j}')
                L.append(f's_add_u32 s74, s75, {WS_QKV + half*131072 + tbp*1024}')
                for i in range(2):
                    for j in range(2): L.append(f'v_cvt_pk_bf16_f32 v{O+2*i+j}, v{X[i]+2*j}, v{X[i]+2*j+1}')
                L += [f'v_permlane16_swap_b32 v{O}, v{O+2}', f'v_permlane16_swap_b32 v{O+1}, v{O+3}',
                      f'buffer_store_dwordx4 v[{O}:{O+3}], v1, {ws}, s74 offen {store_mod}']
        return L
    def epi_v(t, scol):
        L = [f's_lshl_b32 s75, s{scol}, 12', 's_add_u32 s75, s75, s69']
        units = [(half, tbp) for half in range(2) for tbp in range(4)]
        for u, (half, tbp) in enumerate(units):
            X = [getv(L, acc(half, t, 2*tbp + i), 48 + 4*i + 8*(u % 2)) for i in range(2)]
            C = 16 + 4*(u % 2)
            for i in range(2):
                for j in range(2): L.append(f'v_cvt_pk_bf16_f32 v{C+2*i+j}, v{X[i]+2*j}, v{X[i]+2*j+1}')
            for i in range(2): L.append(f'ds_write_b64 v3, v[{C+2*i}:{C+2*i+1}] offset:{u*1024 + i*512}')
        L.append('s_waitcnt lgkmcnt(0)')
        for u in range(8):
            O = 64 + 4*u
            for rr in range(2): L.append(f'ds_read_b64_tr_b16 v[{O+2*rr}:{O+2*rr+1}], v4 offset:{u*1024 + rr*256}')
        for u, (half, tbp) in enumerate(units):
            O = 64 + 4*u
            L += [f's_add_u32 s74, s75, {WS_QKV + half*131072 + tbp*2048}', f's_waitcnt lgkmcnt({14 - 2*u})',
                  f'buffer_store_dwordx4 v[{O}:{O+3}], v2, {ws}, s74 offen {store_mod}']
        return L
    def merge(mm, ep):
        if '@M' in ep:
            it = iter(mm)
            for l in ep: a(next(it) if l == '@M' else l)
            assert next(it, None) is None
            return
        n = len(mm); k = 0
        for i, m in enumerate(mm):
            a(m)
            upto = (i + 1) * len(ep) // n
            while k < upto: a(ep[k]); k += 1
    a(f's_waitcnt vmcnt({NE}) lgkmcnt(0)\ns_barrier')
    rd = reads(1, 1, 1); mm = M(0)
    for i in range(16):
        a(mm[i])
        for l in rd[2*i:2*i+2]: a(l)
    a('s_waitcnt lgkmcnt(0)')
    for i in range(16, 32): a(mm[i])
    for t in (1, 2, 3): merge(M(t), epi_ffn(t - 1))
    paths = []
    a(f's_cmp_eq_u32 s{S_ODD}, 1\ns_cbranch_scc1 {name}_o3')
    p0 = a.mark()
    merge(M(4), epi_ffn(3))
    a(f's_branch {name}_s4')
    p1 = a.mark()
    a.label(f'{name}_o3')
    a(f's_cmp_ge_u32 s{S_N3}, 2048\ns_cbranch_scc1 {name}_o3v')
    p2 = a.mark()
    merge(M(4), epi_qk(3, S_N3, packed=False))
    a(f's_branch {name}_s4')
    p3 = a.mark()
    a.label(f'{name}_o3v')
    merge(M(4), epi_v(3, S_N3))
    p4 = a.mark()
    a.label(f'{name}_s4')
    a(f's_nop 4\ns_cmp_ge_u32 s{S_N4}, 2048\ns_cbranch_scc1 {name}_o4v')
    p5 = a.mark()
    for l in epi_qk(4, S_N4): a(l)
    a(f's_branch {name}_fin')
    p6 = a.mark()
    a.label(f'{name}_o4v')
    for l in epi_v(4, S_N4): a(l)
    p7 = a.mark()
    a.label(f'{name}_fin')
    if stamp:
        a(f'''
        s_waitcnt vmcnt(0)
        s_memtime s[96:97]
        s_memrealtime s[98:99]
        s_waitcnt lgkmcnt(0)
        v_mov_b32 v4, s90
        v_mov_b32 v5, s94
        v_mov_b32 v6, s96
        v_mov_b32 v7, s92
        v_mov_b32 v8, s98
        v_mov_b32 v9, s88
        v_mov_b32 v10, 0
        s_lshl_b32 s74, s2, 2
        s_add_u32 s74, s74, s{S_W}
        s_lshl_b32 s74, s74, 6
        v_mov_b32 v12, s78
        v_mov_b32 v13, s84
        v_mov_b32 v14, s86
        v_mov_b32 v15, s86
        s_add_u32 s74, s74, 0x8000000
        s_mov_b32 exec_lo, 1
        s_mov_b32 exec_hi, 0
        buffer_store_dwordx4 v[4:7], v10, {ws}, s74 offen
        buffer_store_dwordx2 v[8:9], v10, {ws}, s74 offen offset:16
        buffer_store_dwordx4 v[12:15], v10, {ws}, s74 offen offset:32
        ''')
    a.label(f'{name}_end')
    a('s_endpgm')
    base = a.ins[:m1] + a.ins[m0:m1] + a.ins[m1:p0]
    errs = []
    for b4 in (a.ins[p0:p1], a.ins[p1:p3], a.ins[p1:p2] + a.ins[p3:p4]):
        for b5 in (a.ins[p5:p6], a.ins[p6:p7]):
            errs += check_seq(base + b4 + a.ins[p4:p5] + b5 + a.ins[p7:], name)
    errs = [e for e in dict.fromkeys(errs) if f'buffer_load_dword v{V_PD},' not in e]
    for e in errs[:20]: print('CHECK', e)
    return kernel_text(name, a, 512, 102, 256), LDS_BYTES
```

```python
from asmlib import *
from k1 import WS_QKV, WS_OH, WS_G, WS_FLAG, OH_TB

WS_PART = 0x2400000
RING = 4
CH = 16384
LDS_BYTES = 81920
NV = 128

def r4(b): return f'v[{b}:{b+3}]'
def r16(b): return f'v[{b}:{b+15}]'

def stamp_out(a, srd, s_w, base, idsub=0):
    a(f'''
    s_waitcnt vmcnt(0)
    s_memtime s[96:97]
    s_memrealtime s[98:99]
    s_waitcnt lgkmcnt(0)
    v_mov_b32 v4, s90
    v_mov_b32 v5, s94
    v_mov_b32 v6, s96
    v_mov_b32 v7, s92
    v_mov_b32 v8, s98
    v_mov_b32 v9, s88
    v_mov_b32 v10, 0
    s_sub_u32 s74, s2, {idsub}
    s_lshl_b32 s74, s74, 3
    s_add_u32 s74, s74, s{s_w}
    s_lshl_b32 s74, s74, 5
    s_add_u32 s74, s74, {base:#x}
    s_mov_b32 exec_lo, 1
    s_mov_b32 exec_hi, 0
    buffer_store_dwordx4 v[4:7], v10, {srd}, s74 offen
    buffer_store_dwordx2 v[8:9], v10, {srd}, s74 offen offset:16
    ''')

def attention(a, name, stamp, force_slow, prio):
    V_L16, V_G, V_PF = 1, 2, 6
    Q, ONES, L, O, CM = 16, 24, 28, 32, 48
    S = [64, 80]
    P, KF, VF = 96, 104, 112
    S_WS = 4
    S_W, S_HD, S_TB, S_KB, S_VB, S_LD, S_CNT, S_T = 8, 9, 10, 11, 12, 13, 14, 16
    a(f'''
    s_load_dwordx2 s[20:21], s[0:1], 80
    s_load_dwordx2 s[24:25], s[0:1], 16
    v_lshrrev_b32 v8, 6, v0
    v_and_b32 v0, 63, v0
    v_readfirstlane_b32 s{S_W}, v8
    s_and_b32 s{S_T}, s2, 7
    s_lshr_b32 s{S_T+1}, s2, 3
    s_lshr_b32 s{S_T+2}, s{S_T+1}, 3
    s_lshl_b32 s{S_HD}, s{S_T}, 2
    s_add_u32 s{S_HD}, s{S_HD}, s{S_T+2}
    s_and_b32 s{S_T+1}, s{S_T+1}, 7
    s_lshl_b32 s{S_TB}, s{S_T+1}, 3
    s_add_u32 s{S_TB}, s{S_TB}, s{S_W}
    v_lshlrev_b32 v{V_L16}, 4, v0
    ''')
    if prio: a(f's_setprio {prio}')
    if stamp: a('s_memtime s[90:91]\ns_memrealtime s[92:93]')
    a(f'''
    s_and_b32 s{S_T}, s{S_W}, 1
    s_lshr_b32 s{S_T+1}, s{S_W}, 1
    s_lshl_b32 s{S_KB}, s{S_HD}, 17
    s_lshl_b32 s{S_T+2}, s{S_T}, 16
    s_add_u32 s{S_KB}, s{S_KB}, s{S_T+2}
    s_lshl_b32 s{S_T+2}, s{S_T+1}, 10
    s_add_u32 s{S_KB}, s{S_KB}, s{S_T+2}
    s_add_u32 s{S_KB}, s{S_KB}, {WS_QKV + 32*131072}
    s_lshl_b32 s{S_LD}, s{S_W}, 10
    s_lshl_b32 s{S_VB}, s{S_HD}, 17
    s_add_u32 s{S_VB}, s{S_VB}, s{S_LD}
    s_add_u32 s{S_VB}, s{S_VB}, {WS_QKV + 64*131072}
    s_waitcnt lgkmcnt(0)
    s_mov_b32 s{S_WS}, s20
    s_mov_b32 s{S_WS+1}, s21
    s_mov_b32 s{S_WS+2}, 0x10000000
    s_mov_b32 s{S_WS+3}, 0x20000
    s_mov_b32 s26, {1024*2048}
    s_mov_b32 s27, 0x20000
    ''')
    srd = f's[{S_WS}:{S_WS+3}]'
    def dma(slot):
        return [[f's_add_u32 m0, s{S_LD}, {slot*CH}', f'buffer_load_dwordx4 v{V_L16}, {srd}, s{S_KB} offen lds', f's_add_u32 s{S_KB}, s{S_KB}, 4096'],
                [f's_add_u32 m0, s{S_LD}, {slot*CH + 8192}', f'buffer_load_dwordx4 v{V_L16}, {srd}, s{S_VB} offen lds', f's_add_u32 s{S_VB}, s{S_VB}, 8192']]
    a(f'''
    s_lshl_b32 s{S_T}, s{S_HD}, 17
    s_lshl_b32 s{S_T+1}, s{S_TB}, 10
    s_add_u32 s{S_T}, s{S_T}, s{S_T+1}
    s_add_u32 s{S_T+1}, s{S_T}, 65536
    buffer_load_dwordx4 {r4(Q)}, v{V_L16}, {srd}, s{S_T} offen
    buffer_load_dwordx4 {r4(Q+4)}, v{V_L16}, {srd}, s{S_T+1} offen
    v_and_b32 v8, 31, v0
    v_lshlrev_b32 v8, 2, v8
    s_lshl_b32 s{S_T+2}, s{S_TB}, 7
    s_add_u32 s{S_T+2}, s{S_T+2}, {WS_G:#x}
    buffer_load_dword v{V_G}, v8, {srd}, s{S_T+2} offen
    ''')
    for sl in range(2):
        for it in dma(sl):
            for l in it: a(l)
    a(f'''
    v_bfe_u32 v8, v0, 4, 1
    v_bfe_u32 v9, v0, 2, 1
    v_xor_b32 v9, v9, v8
    v_and_b32 v10, 3, v0
    v_or_b32 v9, v9, v10
    v_cmp_eq_u32 vcc, 0, v9
    v_mov_b32 v10, 0x3f803f80
    v_cndmask_b32 v{ONES}, 0, v10, vcc
    v_cndmask_b32 v{ONES+1}, 0, v10, vcc
    v_cndmask_b32 v{ONES+2}, 0, v10, vcc
    v_cndmask_b32 v{ONES+3}, 0, v10, vcc
    ''')
    for r in range(4): a(f'v_mov_b32 v{L+r}, 0')
    for r in range(16): a(f'v_mov_b32 v{O+r}, 0')
    for r in range(8): a(f'v_mov_b32 v{P+r}, 0')
    for r in range(8): a(f'v_mov_b32 v{VF+r}, 0')

    def off(blk): return ((blk >> 2) % RING) * CH + (blk & 3) * 2048
    def kread(blk, kk): return f'ds_read_b128 {r4(KF + 4*kk)}, v{V_L16} offset:{off(blk) + kk*1024}'
    def vread(blk, m): return f'ds_read_b128 {r4(VF + 4*m)}, v{V_L16} offset:{off(blk) + 8192 + m*1024}'
    def qk(blk, c):
        s = S[blk & 1]
        return [f'v_mfma_f32_32x32x16_bf16 {r16(s)}, {r4(KF)}, {r4(Q)}, {c}',
                f'v_mfma_f32_32x32x16_bf16 {r16(s)}, {r4(KF+4)}, {r4(Q+4)}, {r16(s)}']
    def rowmax(s, dst, tmp):
        a(f'v_max3_f32 v{dst}, v{s}, v{s+1}, v{s+2}')
        a(f'v_max3_f32 v{tmp}, v{s+3}, v{s+4}, v{s+5}')
        for j in range(6, 14, 4):
            a(f'v_max3_f32 v{dst}, v{dst}, v{s+j}, v{s+j+1}')
            a(f'v_max3_f32 v{tmp}, v{tmp}, v{s+j+2}, v{s+j+3}')
        a(f'v_max3_f32 v{dst}, v{dst}, v{s+14}, v{s+15}')
        a(f'v_max_f32 v{dst}, v{dst}, v{tmp}')
        a(f'v_mov_b32 v{tmp}, v{dst}')
        a(f'v_permlane32_swap_b32 v{dst}, v{tmp}')
        a(f'v_max_f32 v{dst}, v{dst}, v{tmp}')

    a('s_waitcnt vmcnt(2)\ns_barrier')
    for it in dma(2):
        for l in it: a(l)
    a(kread(0, 0)); a(kread(0, 1))
    a('s_waitcnt lgkmcnt(0)')
    for l in qk(0, '0'): a(l)
    a(kread(1, 0)); a(kread(1, 1))
    rowmax(S[0], 8, 9)
    for r in range(16): a(f'v_sub_f32 v{CM+r}, 0, v8')
    for r in range(16): a(f'v_sub_f32 v{S[0]+r}, v{S[0]+r}, v8')
    a(f's_mov_b32 s{S_CNT}, 4')
    a('s_waitcnt lgkmcnt(0)')
    if stamp: a('s_memtime s[88:89]\ns_waitcnt lgkmcnt(0)')

    def summ(pp): return f'v_mfma_f32_16x16x32_bf16 {r4(L)}, {r4(ONES)}, {r4(pp)}, {r4(L)}'
    def pv(vf, pp): return f'v_mfma_f32_32x32x16_bf16 {r16(O)}, {r4(vf)}, {r4(pp)}, {r16(O)}'
    def body(i, last_iter=False):
        s = S[i & 1]
        final = last_iter and i == 15
        nok = last_iter and i >= 14
        ex = lambda j: f'v_exp_f32 v{s+j}, v{s+j}'
        cv = lambda j: f'v_cvt_pk_bf16_f32 v{P+j}, v{s+2*j}, v{s+2*j+1}'
        q = qk(i + 1, r16(CM)) if not final else [None, None]
        sync = ((i + 2) & 3) == 0 and not nok
        prevk = 0 if (last_iter and i == 15) else 1
        d = [[], []]
        if sync:
            c = (i + 2) >> 2
            nxt = not (last_iter and c >= 2)
            a(f's_waitcnt vmcnt({2 if not (last_iter and c == 3) else 0}) lgkmcnt({1 + prevk})')
            a('s_barrier')
            if nxt: d = dma((c + 2) % RING)
        else:
            a(f's_waitcnt lgkmcnt({1 + prevk})')
        if q[0]: a(q[0])
        a(ex(0))
        if not nok: a(kread(i + 2, 0))
        a(ex(1))
        if d[0]: a(d[0][0])
        a(ex(2))
        for l in d[0][1:]: a(l)
        a(ex(3))
        a(pv(VF, P))
        a(ex(4)); a(vread(i, 0)); a(ex(5)); a(ex(6)); a(ex(7))
        a(summ(P))
        for j in range(0, 4): a(cv(j))
        a(f's_waitcnt lgkmcnt({1 + (0 if nok else 1)})')
        if q[1]: a(q[1])
        a(ex(8))
        if not nok: a(kread(i + 2, 1))
        a(ex(9))
        if d[1]: a(d[1][0])
        a(ex(10))
        for l in d[1][1:]: a(l)
        a(ex(11))
        a(pv(VF + 4, P + 4))
        a(ex(12)); a(vread(i, 1)); a(ex(13)); a(ex(14)); a(ex(15))
        a(summ(P + 4))
        for j in range(4, 8): a(cv(j))
    m0 = a.mark()
    a.label(f'{name}_loop')
    for i in range(16): body(i)
    a(f's_sub_u32 s{S_CNT}, s{S_CNT}, 1\ns_cmp_lg_u32 s{S_CNT}, 1\ns_cbranch_scc1 {name}_loop')
    m1 = a.mark()
    a(f'''
    s_lshl_b32 s{S_T}, s2, 13
    s_add_u32 s{S_T}, s{S_T}, s{S_LD}
    ''')
    for i in range(16):
        body(i, last_iter=True)
        if i == 11: a(f'buffer_load_dword v{V_PF}, v{V_L16}, s[24:27], s{S_T} offen')
    a('s_waitcnt lgkmcnt(0)')
    for h in range(2):
        a(summ(P + 4*h)); a(pv(VF + 4*h, P + 4*h))
    if stamp: a('s_memtime s[94:95]')
    a('s_barrier')
    a(f'v_mov_b32 v8, 0x207\nv_mov_b32 v9, 0x5f800000\nv_cmp_nlt_f32 s[22:23], v{L}, v9')
    for r in range(16):
        a(f'v_cmp_class_f32 vcc, v{O+r}, v8')
        a('s_or_b64 s[22:23], s[22:23], vcc')
    if force_slow: a(f's_branch {name}_slow')
    a(f's_cmp_lg_u64 s[22:23], 0\ns_cbranch_scc1 {name}_slow')
    a.label(f'{name}_fin')
    a(f'''
    v_rcp_f32 v8, v{L}
    s_mul_i32 s{S_T}, s{S_TB}, {OH_TB}
    s_lshl_b32 s{S_T+1}, s{S_HD}, 11
    s_add_u32 s{S_T}, s{S_T}, s{S_T+1}
    s_add_u32 s{S_T}, s{S_T}, {WS_OH:#x}
    v_mul_f32 v8, v8, v{V_G}
    ''')
    for r in range(16): a(f'v_mul_f32 v{O+r}, v{O+r}, v8')
    for j in range(8): a(f'v_cvt_pk_bf16_f32 v{S[0]+j}, v{O+2*j}, v{O+2*j+1}')
    for pr in range(2):
        b = S[0] + 4*pr
        a(f'v_permlane32_swap_b32 v{b}, v{b+2}\nv_permlane32_swap_b32 v{b+1}, v{b+3}')
        a(f'buffer_store_dwordx4 {r4(b)}, v{V_L16}, {srd}, s{S_T} offen offset:{pr*1024} sc1')
    a(f'''
    s_lshr_b32 s{S_T}, s{S_TB}, 3
    s_lshl_b32 s{S_T}, s{S_T}, 7
    s_add_u32 s{S_T}, s{S_T}, {WS_FLAG:#x}
    v_mov_b32 v8, 0
    v_mov_b32 v9, 1
    s_waitcnt vmcnt(0)
    s_barrier
    s_cmp_lg_u32 s{S_W}, 0
    s_cbranch_scc1 {name}_sig
    s_mov_b64 exec, 1
    buffer_atomic_add v9, v8, {srd}, s{S_T} offen sc1
    s_mov_b64 exec, -1
    ''')
    a.label(f'{name}_sig')
    if stamp: stamp_out(a, srd, S_W, 0x8100000)
    a('s_endpgm')
    m2 = a.mark()
    a.label(f'{name}_slow')
    M, AL, T2 = 8, 9, 10
    a(f'''
    s_lshl_b32 s{S_KB}, s{S_HD}, 17
    s_add_u32 s{S_VB}, s{S_KB}, {WS_QKV + 64*131072}
    s_add_u32 s{S_KB}, s{S_KB}, {WS_QKV + 32*131072}
    s_lshl_b32 s{S_LD}, s{S_W}, 12
    v_add_u32 v12, s{S_LD}, v{V_L16}
    v_mov_b32 v{M}, 0xff800000
    s_mov_b32 s{S_CNT}, 64
    ''')
    for r in range(4): a(f'v_mov_b32 v{L+r}, 0')
    for r in range(16): a(f'v_mov_b32 v{O+r}, 0')
    s0 = a.mark()
    a.label(f'{name}_sloop')
    a(f'''
    s_add_u32 s{S_T}, s{S_KB}, 65536
    s_add_u32 m0, s{S_LD}, 0
    buffer_load_dwordx4 v{V_L16}, {srd}, s{S_KB} offen lds
    s_add_u32 m0, s{S_LD}, 1024
    buffer_load_dwordx4 v{V_L16}, {srd}, s{S_T} offen lds
    s_add_u32 m0, s{S_LD}, 2048
    buffer_load_dwordx4 v{V_L16}, {srd}, s{S_VB} offen lds
    buffer_load_dwordx4 v{V_L16}, {srd}, s{S_VB} offen offset:1024 lds
    s_add_u32 s{S_KB}, s{S_KB}, 1024
    s_add_u32 s{S_VB}, s{S_VB}, 2048
    s_waitcnt vmcnt(0)
    ds_read_b128 {r4(KF)}, v12
    ds_read_b128 {r4(KF+4)}, v12 offset:1024
    ''')
    for m in range(2): a(f'ds_read_b128 {r4(VF + 4*m)}, v12 offset:{2048 + m*1024}')
    a('s_waitcnt lgkmcnt(0)')
    for l in qk(0, '0'): a(l)
    rowmax(S[0], AL, T2)
    a(f'''
    v_max_f32 v{T2}, v{AL}, v{M}
    v_sub_f32 v{AL}, v{M}, v{T2}
    v_exp_f32 v{AL}, v{AL}
    v_mov_b32 v{M}, v{T2}
    ''')
    for r in range(16): a(f'v_sub_f32 v{S[0]+r}, v{S[0]+r}, v{M}')
    for r in range(16): a(f'v_exp_f32 v{S[0]+r}, v{S[0]+r}')
    for r in range(4): a(f'v_mul_f32 v{L+r}, v{L+r}, v{AL}')
    for r in range(16): a(f'v_mul_f32 v{O+r}, v{O+r}, v{AL}')
    for j in range(8): a(f'v_cvt_pk_bf16_f32 v{P+j}, v{S[0]+2*j}, v{S[0]+2*j+1}')
    for m in range(2):
        a(summ(P + 4*m)); a(pv(VF + 4*m, P + 4*m))
    a(f's_nop 15\ns_sub_u32 s{S_CNT}, s{S_CNT}, 1\ns_cmp_lg_u32 s{S_CNT}, 0\ns_cbranch_scc1 {name}_sloop')
    s1 = a.mark()
    a(f's_branch {name}_fin')
    tr = a.ins[:m1] + a.ins[m0:m1] + a.ins[m1:m2]
    return check_seq(tr, name) + check_seq(a.ins[m2:s1] + a.ins[s0:s1], name + '_slow')

def down(a, name, stamp, prio, exp=''):
    R, SB = 5, 16384
    V_L16, V_WOFF, V_AB, V_WB, V_ARD, V_WRD, V_G, V_AB2, V_ARD2, V_FL, V_Z = 1, 2, 3, 4, 5, 6, 7, 9, 10, 11, 12
    ACC = 16
    FR = [48, 72]
    PT = 96
    S_A, S_WD, S_WS, S_OUT = 4, 8, 12, 48
    S_W, S_WR, S_WQ, S_RB, S_CB, S_KH, S_AK, S_WK, S_LA, S_LW, S_SLOT, S_CNT, S_RS, S_KS, S_T = 16, 17, 18, 19, 20, 21, 22, 23, 24, 25, 26, 27, 28, 29, 30
    S_TB0, S_FA, S_FP = 36, 37, 38
    st = a.mark()
    a(f'''
    s_load_dwordx2 s[40:41], s[0:1], 16
    s_load_dwordx2 s[42:43], s[0:1], 48
    s_load_dwordx2 s[44:45], s[0:1], 64
    s_load_dwordx2 s[46:47], s[0:1], 80
    v_lshrrev_b32 v8, 6, v0
    v_and_b32 v0, 63, v0
    v_readfirstlane_b32 s{S_W}, v8
    s_and_b32 s{S_T}, s2, 7
    s_lshr_b32 s{S_T+1}, s2, 3
    s_and_b32 s{S_T+1}, s{S_T+1}, 31
    s_and_b32 s{S_KH}, s{S_T}, 1
    s_lshr_b32 s{S_T}, s{S_T}, 1
    s_lshl_b32 s{S_RB}, s{S_T}, 2
    s_lshr_b32 s{S_T+2}, s{S_T+1}, 3
    s_add_u32 s{S_RB}, s{S_RB}, s{S_T+2}
    s_and_b32 s{S_CB}, s{S_T+1}, 7
    s_lshr_b32 s{S_WR}, s{S_W}, 2
    s_and_b32 s{S_WQ}, s{S_W}, 3
    v_lshlrev_b32 v{V_L16}, 4, v0
    ''')
    if prio: a(f's_setprio {prio}')
    if stamp: a('s_memtime s[90:91]\ns_memrealtime s[92:93]')
    a(f'''
    s_lshl_b32 s{S_T}, s{S_RB}, 2
    s_lshr_b32 s{S_T+1}, s{S_W}, 1
    s_add_u32 s{S_T}, s{S_T}, s{S_T+1}
    s_mul_i32 s39, s{S_T}, {OH_TB}
    s_add_u32 s39, s39, {WS_OH:#x}
    s_mul_i32 s{S_T}, s{S_KH}, {1792*64}
    s_add_u32 s{S_AK}, s39, s{S_T}
    s_add_u32 s{S_AK}, s{S_AK}, {1024*64}
    s_add_u32 s{S_T+3}, s{S_AK}, {1792*64}
    s_and_b32 s{S_T}, s{S_W}, 1
    s_lshl_b32 s{S_T}, s{S_T}, 10
    s_add_u32 s{S_AK}, s{S_AK}, s{S_T}
    s_mul_i32 s{S_WK}, s{S_KH}, {1792*2048}
    s_add_u32 s{S_T+4}, s{S_WK}, {1792*2048}
    s_lshl_b32 s{S_LA}, s{S_W}, 10
    s_add_u32 s{S_LW}, s{S_LA}, 8192
    v_lshrrev_b32 v8, 2, v0
    s_lshl_b32 s{S_T}, s{S_WR}, 4
    v_add_u32 v8, s{S_T}, v8
    v_lshlrev_b32 v8, 11, v8
    v_and_b32 v9, 3, v0
    v_lshlrev_b32 v9, 4, v9
    s_lshl_b32 s{S_T}, s{S_CB}, 8
    s_lshl_b32 s{S_T+1}, s{S_WQ}, 6
    s_add_u32 s{S_T}, s{S_T}, s{S_T+1}
    v_add3_u32 v{V_WOFF}, v8, v9, s{S_T}
    s_mov_b32 s{S_SLOT}, 0
    s_lshl_b32 s{S_TB0}, s{S_RB}, 2
    s_lshl_b32 s{S_T}, s{S_WR}, 1
    s_add_u32 s{S_TB0}, s{S_TB0}, s{S_T}
    s_lshl_b32 s{S_T+5}, s{S_TB0}, 7
    s_add_u32 s{S_T+5}, s{S_T+5}, {WS_G:#x}
    v_and_b32 v13, 31, v0
    v_lshlrev_b32 v13, 2, v13
    s_waitcnt lgkmcnt(0)
    s_mov_b32 s{S_A}, s46
    s_mov_b32 s{S_A+1}, s47
    s_mov_b32 s{S_A+2}, s{S_T+3}
    s_mov_b32 s{S_A+3}, 0x20000
    s_mov_b32 s{S_WD}, s42
    s_mov_b32 s{S_WD+1}, s43
    s_mov_b32 s{S_WD+2}, s{S_T+4}
    s_mov_b32 s{S_WD+3}, 0x20000
    s_mov_b32 s{S_WS}, s46
    s_mov_b32 s{S_WS+1}, s47
    s_mov_b32 s{S_WS+2}, 0x10000000
    s_mov_b32 s{S_WS+3}, 0x20000
    s_mov_b32 s{S_OUT}, s44
    s_mov_b32 s{S_OUT+1}, s45
    s_mov_b32 s{S_OUT+2}, {2048*2048}
    s_mov_b32 s{S_OUT+3}, 0x20000
    ''')
    sa = f's[{S_A}:{S_A+3}]'; wd = f's[{S_WD}:{S_WD+3}]'; ws = f's[{S_WS}:{S_WS+3}]'
    a(f'buffer_load_dword v{V_G}, v13, {ws}, s{S_T+5} offen\nbuffer_load_dword v{V_G+1}, v13, {ws}, s{S_T+5} offen offset:128')
    def dma(mod=''):
        return [f's_add_u32 m0, s{S_LA}, s{S_SLOT}', f's_add_u32 s{S_T}, s{S_LW}, s{S_SLOT}',
                f'buffer_load_dwordx4 v{V_L16}, {sa}, s{S_AK} offen {mod} lds',
                f's_mov_b32 m0, s{S_T}', f's_add_u32 s{S_AK}, s{S_AK}, 2048',
                f'buffer_load_dwordx4 v{V_WOFF}, {wd}, s{S_WK} offen lds',
                f's_add_u32 s{S_WK}, s{S_WK}, {32*2048}',
                f's_add_u32 s{S_SLOT}, s{S_SLOT}, {SB}',
                f's_cmp_eq_u32 s{S_SLOT}, {R*SB}',
                f's_cselect_b32 s{S_SLOT}, 0, s{S_SLOT}']
    for s_ in range(R):
        for l in dma(): a(l)
    a(f'''
    s_lshl_b32 s{S_T}, s{S_WR}, 12
    v_add_u32 v{V_AB}, s{S_T}, v{V_L16}
    v_lshrrev_b32 v14, 5, v0
    v_lshlrev_b32 v14, 9, v14
    v_bfe_u32 v15, v0, 2, 2
    v_lshl_add_u32 v14, v15, 6, v14
    v_bfe_u32 v15, v0, 4, 1
    v_lshl_add_u32 v14, v15, 5, v14
    v_and_b32 v15, 3, v0
    v_lshl_add_u32 v14, v15, 3, v14
    s_lshl_b32 s{S_T}, s{S_WQ}, 10
    s_add_u32 s{S_T}, s{S_T}, 8192
    v_add_u32 v{V_WB}, s{S_T}, v14
    s_mov_b32 s{S_RS}, {SB}
    s_mov_b32 s{S_CNT}, 28
    v_mov_b32 v{V_Z}, 0
    s_lshr_b32 s{S_KS}, s{S_WQ}, 1
    s_xor_b32 s{S_KS}, s{S_KS}, s{S_KH}
    s_lshr_b32 s{S_FA}, s{S_RB}, 1
    s_lshl_b32 s{S_FA}, s{S_FA}, 7
    s_add_u32 s{S_FA}, s{S_FA}, {WS_FLAG:#x}
    s_lshl_b32 s{S_FP}, s2, 7
    s_add_u32 s{S_FP}, s{S_FP}, {WS_FLAG:#x}
    ''')
    for r in range(ACC, ACC + 32): a(f'v_mov_b32 v{r}, 0')
    def reads(st_, va, vw):
        f = FR[st_]; L = []
        for j in range(2):
            b = f + 12*j
            L += [f'ds_read_b64_tr_b16 v[{b+2*rr}:{b+2*rr+1}], v{vw} offset:{j*4096 + rr*256}' for rr in range(2)]
            L += [f'ds_read_b128 {r4(b+4+4*t)}, v{va} offset:{t*2048 + j*1024}' for t in range(2)]
        return L
    def mfmas(st_):
        f = FR[st_]
        return [f'v_mfma_f32_32x32x16_bf16 {r16(ACC+16*t)}, {r4(f+12*j)}, {r4(f+12*j+4+4*t)}, {r16(ACC+16*t)}' for j in range(2) for t in range(2)]
    bump = f'''
        s_add_u32 s{S_RS}, s{S_RS}, {SB}
        s_cmp_eq_u32 s{S_RS}, {R*SB}
        s_cselect_b32 s{S_RS}, 0, s{S_RS}
        s_waitcnt vmcnt({2*(R-2)}) lgkmcnt(0)
        s_barrier
        '''
    a(f's_waitcnt vmcnt({2*(R-1)})\ns_barrier')
    for l in reads(0, V_AB, V_WB): a(l)
    if stamp: a('s_memtime s[88:89]')
    m0 = a.mark()
    a.label(f'{name}_loop')
    for u in range(2):
        a(f'v_add_u32 v{V_ARD}, s{S_RS}, v{V_AB}\nv_add_u32 v{V_WRD}, s{S_RS}, v{V_WB}')
        a(bump)
        rd = reads(1 - u, V_ARD, V_WRD); mm = mfmas(u); dm = dma()
        a(mm[0])
        for l in rd[0:4]: a(l)
        a(mm[1])
        for l in rd[4:8]: a(l)
        a(mm[2])
        for l in dm: a(l)
        a(mm[3])
    a(f's_sub_u32 s{S_CNT}, s{S_CNT}, 1\ns_cmp_lg_u32 s{S_CNT}, 0\ns_cbranch_scc1 {name}_loop')
    m1 = a.mark()
    if stamp: a('s_memtime s[94:95]')
    a(f'''
    buffer_load_dword v{V_FL}, v{V_Z}, {ws}, s{S_FA} offen sc1
    v_sub_f32 v{V_G}, 1.0, v{V_G}
    v_sub_f32 v{V_G+1}, 1.0, v{V_G+1}
    s_and_b32 s{S_T}, s{S_W}, 1
    s_lshl_b32 s{S_T}, s{S_T}, 10
    s_add_u32 s{S_AK}, s39, s{S_T}
    s_add_u32 s{S_A+2}, s39, {1024*64}
    s_mov_b32 s{S_WD}, s40
    s_mov_b32 s{S_WD+1}, s41
    s_mov_b32 s{S_WD+2}, {1024*2048}
    s_mov_b32 s{S_WK}, 0
    s_mov_b32 s{S_SLOT}, 0
    s_mov_b32 s{S_RS}, {SB}
    s_lshl_b32 s{S_T}, s{S_KH}, 7
    s_cmp_ge_u32 s{S_WQ}, 2
    s_cselect_b32 s{S_T}, 0x40000000, s{S_T}
    v_add_u32 v{V_WOFF}, s{S_T}, v{V_WOFF}
    s_mul_i32 s{S_T}, s{S_KS}, 3072
    v_add_u32 v{V_AB}, s{S_T}, v{V_AB}
    v_xor_b32 v{V_AB2}, 2048, v{V_AB}
    s_and_b32 s{S_T}, s{S_WQ}, 1
    s_lshl_b32 s{S_T}, s{S_T}, 10
    s_lshl_b32 s{S_T+1}, s{S_KS}, 12
    s_add_u32 s{S_T}, s{S_T}, s{S_T+1}
    s_add_u32 s{S_T}, s{S_T}, 8192
    v_add_u32 v{V_WB}, s{S_T}, v14
    s_lshl_b32 s{S_T+1}, s{S_TB0}, 5
    s_lshl_b32 s{S_T+2}, s{S_CB}, 2
    s_add_u32 s{S_T+1}, s{S_T+1}, s{S_T+2}
    s_add_u32 s{S_T+2}, s{S_T+1}, s{S_WQ}
    s_lshl_b32 s{S_T+2}, s{S_T+2}, 11
    s_add_u32 s{S_T+2}, s{S_T+2}, {WS_PART:#x}
    s_add_u32 s{S_T+3}, s{S_T+2}, {32*2048}
    ''')
    for t in range(2):
        for r in range(16): a(f'v_mul_f32 v{ACC+16*t+r}, v{ACC+16*t+r}, v{V_G+t}')
    a(f's_cmp_eq_u32 s{S_KS}, 0\ns_cbranch_scc1 {name}_keep')
    k0 = a.mark()
    for t in range(2):
        o = PT + 8*t
        for j in range(8): a(f'v_cvt_pk_bf16_f32 v{o+j}, v{ACC+16*t+2*j}, v{ACC+16*t+2*j+1}')
        for h in range(2): a(f'buffer_store_dwordx4 {r4(o+4*h)}, v{V_L16}, {ws}, s{S_T+2+t} offen offset:{h*1024} sc1')
    for r in range(ACC, ACC + 32): a(f'v_mov_b32 v{r}, 0')
    a('s_waitcnt vmcnt(4)')
    a(f's_branch {name}_chk')
    k1_ = a.mark()
    a.label(f'{name}_keep')
    a('s_waitcnt vmcnt(0)')
    a.label(f'{name}_chk')
    a(f'''
    v_readfirstlane_b32 s{S_T}, v{V_FL}
    s_cmp_ge_u32 s{S_T}, 32
    s_cbranch_scc1 {name}_go
    s_sleep 8
    buffer_load_dword v{V_FL}, v{V_Z}, {ws}, s{S_FA} offen sc1
    s_branch {name}_keep
    ''')
    k2_ = a.mark()
    a.label(f'{name}_go')
    a('s_waitcnt lgkmcnt(0)\ns_barrier')
    for s_ in range(R):
        for l in dma('sc1'): a(l)
    a(f'''
    s_lshl_b32 s{S_T+2}, s{S_KS}, 5
    s_add_u32 s{S_T+1}, s{S_T+1}, s{S_T+2}
    s_lshl_b32 s{S_T+2}, s{S_KH}, 1
    s_and_b32 s{S_T+3}, s{S_WQ}, 1
    s_add_u32 s{S_T+2}, s{S_T+2}, s{S_T+3}
    s_add_u32 s{S_T+1}, s{S_T+1}, s{S_T+2}
    s_lshl_b32 s52, s{S_T+1}, 11
    s_add_u32 s52, s52, {WS_PART:#x}
    s_add_u32 s53, s{S_TB0}, s{S_KS}
    s_lshl_b32 s53, s53, 16
    s_lshl_b32 s{S_T+3}, s{S_CB}, 8
    s_add_u32 s53, s53, s{S_T+3}
    s_lshl_b32 s{S_T+2}, s{S_T+2}, 6
    s_add_u32 s53, s53, s{S_T+2}
    s_xor_b32 s54, s{S_FP}, 128
    s_mov_b32 s{S_CNT}, 16
    v_mov_b32 v13, 1
    ''')
    def reads2(st_, va, va2, vw):
        b = FR[st_]
        return [f'ds_read_b64_tr_b16 v[{b+2*rr}:{b+2*rr+1}], v{vw} offset:{rr*256}' for rr in range(2)] + \
               [f'ds_read_b128 {r4(b+4)}, v{va}', f'ds_read_b128 {r4(b+8)}, v{va2}']
    a(f's_waitcnt vmcnt({2*(R-1)})\ns_barrier')
    for l in reads2(0, V_AB, V_AB2, V_WB): a(l)
    a(f'''
    s_cmp_lg_u32 s{S_W}, 0
    s_cbranch_scc1 {name}_loop2
    s_mov_b64 exec, 1
    buffer_store_dword v13, v{V_Z}, {ws}, s{S_FP} offen sc1
    s_mov_b64 exec, -1
    ''')
    n0 = a.mark()
    a.label(f'{name}_loop2')
    for u in range(2):
        a(f'v_add_u32 v{V_ARD}, s{S_RS}, v{V_AB}\nv_add_u32 v{V_ARD2}, s{S_RS}, v{V_AB2}\nv_add_u32 v{V_WRD}, s{S_RS}, v{V_WB}')
        a(bump)
        f = FR[u]
        a(f'v_mfma_f32_32x32x16_bf16 {r16(ACC)}, {r4(f)}, {r4(f+4)}, {r16(ACC)}')
        for l in reads2(1 - u, V_ARD, V_ARD2, V_WRD): a(l)
        a(f'v_mfma_f32_32x32x16_bf16 {r16(ACC+16)}, {r4(f)}, {r4(f+8)}, {r16(ACC+16)}')
        for l in dma('sc1'): a(l)
    a(f'''
    s_cmp_eq_u32 s{S_CNT}, 8
    s_cbranch_scc1 {name}_side1
    s_cmp_eq_u32 s{S_CNT}, 5
    s_cbranch_scc1 {name}_side2
    ''')
    a.label(f'{name}_back')
    a(f's_sub_u32 s{S_CNT}, s{S_CNT}, 1\ns_cmp_lg_u32 s{S_CNT}, 0\ns_cbranch_scc1 {name}_loop2')
    n1 = a.mark()
    a(f'''
    s_lshl_b32 s{S_T}, s{S_W}, 12
    v_add_u32 v{V_ARD}, s{S_T}, v{V_L16}
    v_xor_b32 v{V_ARD2}, {2 << 12}, v{V_ARD}
    v_and_b32 v13, 31, v0
    v_lshlrev_b32 v13, 11, v13
    v_lshrrev_b32 v14, 5, v0
    v_lshl_add_u32 v13, v14, 4, v13
    s_mov_b32 s{S_T+5}, 0xffff0000
    s_waitcnt vmcnt(0) lgkmcnt(0)
    s_barrier
    ''')
    for j in range(4): a(f'ds_write_b128 v{V_ARD}, {r4(ACC+16+4*j)} offset:{j*1024}')
    for j in range(8):
        a(f'v_lshlrev_b32 v{FR[0]+2*j}, 16, v{PT+j}\nv_and_b32 v{FR[0]+2*j+1}, s{S_T+5}, v{PT+j}')
    for r in range(16): a(f'v_add_f32 v{ACC+r}, v{ACC+r}, v{FR[0]+r}')
    a('s_waitcnt lgkmcnt(0)\ns_barrier')
    for j in range(4): a(f'ds_read_b128 {r4(FR[1]+4*j)}, v{V_ARD2} offset:{j*1024}')
    for pr in range(2):
        a(f's_waitcnt lgkmcnt({2 - 2*pr})')
        for r in range(8*pr, 8*pr + 8): a(f'v_add_f32 v{ACC+r}, v{ACC+r}, v{FR[1]+r}')
        b = PT + 8 + 4*pr
        for j in range(4): a(f'v_cvt_pk_bf16_f32 v{b+j}, v{ACC+8*pr+2*j}, v{ACC+8*pr+2*j+1}')
        a(f'v_permlane32_swap_b32 v{b}, v{b+2}\nv_permlane32_swap_b32 v{b+1}, v{b+3}')
        a(f'buffer_store_dwordx4 {r4(b)}, v13, s[{S_OUT}:{S_OUT+3}], s53 offen offset:{pr*32}')
    if stamp: stamp_out(a, ws, S_W, 0x8300000, 256)
    a('s_endpgm')
    n2 = a.mark()
    a.label(f'{name}_side1')
    a(f'buffer_load_dword v{V_FL}, v{V_Z}, {ws}, s54 offen sc1\ns_branch {name}_back')
    n3 = a.mark()
    a.label(f'{name}_side2')
    a(f'''
    v_readfirstlane_b32 s{S_T}, v{V_FL}
    s_cmp_eq_u32 s{S_T}, 1
    s_cbranch_scc1 {name}_side3
    s_sleep 8
    buffer_load_dword v{V_FL}, v{V_Z}, {ws}, s54 offen sc1
    s_waitcnt vmcnt(0)
    s_branch {name}_side2
    ''')
    n4 = a.mark()
    a.label(f'{name}_side3')
    a(f'''
    buffer_load_dwordx4 {r4(PT)}, v{V_L16}, {ws}, s52 offen sc1
    buffer_load_dwordx4 {r4(PT+4)}, v{V_L16}, {ws}, s52 offen offset:1024 sc1
    s_branch {name}_back
    ''')
    n5 = a.mark()
    body2 = a.ins[n0:n1]
    errs = []
    for mid in (a.ins[k0:k1_] + a.ins[k1_+2:k2_-3], a.ins[k1_:k2_-3]):
        errs += check_seq(a.ins[st:m1] + a.ins[m0:m1] + a.ins[m1:k0] + mid + a.ins[k2_:n1] + a.ins[n2:n3] + body2 * 3 + a.ins[n3:n3+4] + a.ins[n4:n5] + body2 * 2 + a.ins[n1:n2], name)
    return list(dict.fromkeys(errs))

def gen(name='k2_kernel', stamp=False, force_slow=False, prio_a=0, prio_g=0, only=None, exp=''):
    a = Asm()
    a(f'''
    s_cmp_ge_u32 s2, 512
    s_cbranch_scc1 {name}_end
    s_cmp_ge_u32 s2, 256
    s_cbranch_scc1 {name + ('_end' if only == 'a' else '_down')}
    ''')
    if only == 'g': a(f's_branch {name}_end')
    errs = attention(a, name, stamp, force_slow, prio_a)
    a.label(f'{name}_down')
    errs += down(a, name + '_d', stamp, prio_g, exp)
    a.label(f'{name}_end')
    a('s_endpgm')
    for e in errs[:20]: print('CHECK', e)
    return kernel_text(name, a, NV, 102, NV), LDS_BYTES
```

```python
import sys, k1, k2f
stamp = '--stamp' in sys.argv
kw = {}
for x in sys.argv:
    if x.startswith('--pa='): kw['prio_a'] = int(x[5:])
    if x.startswith('--pg='): kw['prio_g'] = int(x[5:])
    if x.startswith('--only='): kw['only'] = x[7:]
    if x.startswith('--exp='): kw['exp'] = x[6:]
    if x == '--slow': kw['force_slow'] = True
k1kw = dict(code_from='k1_kernel_loop', code_to='k2_kernel_end', store_mod='sc1')
for x in sys.argv:
    if x.startswith('--sm='): k1kw['store_mod'] = x[5:].replace('+', ' ')
    if x == '--nopf': k1kw['pf'] = False
    if x == '--nocode': k1kw['code_from'] = None
t1, l1 = k1.gen(stamp=(2 if '--steps' in sys.argv else stamp), **k1kw); t2, l2 = k2f.gen(stamp=stamp, **kw);
ref = open('gated_mix__softmax_full_mha__swiglu_ffn__prompt.s.ref').read().split('\n')
head = [l for l in ref if l.startswith(';') and '@launch' not in l and 'Override launch' not in l and 'grid=ceil' not in l]
hdr = '\n'.join(head) + '\n'
hdr += f'; @launch kernel=k1_kernel grid=(256,1,1) block=(256,1,1) lds={l1}\n'
hdr += f'; @launch kernel=k2_kernel grid=(512,1,1) block=(512,1,1) lds={l2}\n'
hdr += """; Launch 1 (k1): x @ [wqkv | w_gate | w_up], one 256x320 tile per workgroup; writes q/k/v fragments, silu(gate)*up,
"""
hdr += '.amdgcn_target "amdgcn-amd-amdhsa--gfx950"\n'
out = sys.argv[1] if len(sys.argv) > 1 and not sys.argv[1].startswith('--') else 'gated_mix__softmax_full_mha__swiglu_ffn__prompt.s'
open(out, 'w').write(hdr + t1 + t2)
```

```python
import re

TRANS = ('v_exp_f32', 'v_log_f32', 'v_rcp_f32', 'v_rsq_f32', 'v_sqrt_f32', 'v_sin_f32', 'v_cos_f32')

def split_ops(s):
    out, depth, cur = [], 0, ''
    for ch in s:
        if ch == '[': depth += 1
        if ch == ']': depth -= 1
        if ch == ',' and depth == 0:
            out.append(cur.strip()); cur = ''
        else:
            cur += ch
    if cur.strip(): out.append(cur.strip())
    return out

_reg = re.compile(r'^-?\|?(?:abs\()?([vsa])(?:(\d+)|\[(\d+):(\d+)\])\)?\|?$')
def regs_of(tok):
    tok = tok.strip()
    if tok in ('vcc',): return {('s', 106), ('s', 107)}
    if tok == 'vcc_lo': return {('s', 106)}
    if tok == 'vcc_hi': return {('s', 107)}
    if tok == 'm0': return {('m0', 0)}
    if tok == 'exec': return {('exec', 0)}
    m = _reg.match(tok)
    if not m: return set()
    k = m.group(1)
    if m.group(2) is not None: return {(k, int(m.group(2)))}
    return {(k, i) for i in range(int(m.group(3)), int(m.group(4)) + 1)}

class Ins:
    __slots__ = ('text', 'mn', 'kind', 'rd', 'wr', 'passes', 'srcA', 'srcB', 'srcC', 'dst', 'ws', 'misc')
    def __repr__(self): return self.text

def parse(text):
    t = text.split(';')[0].strip()
    i = Ins(); i.text = text; i.rd = set(); i.wr = set(); i.passes = 0; i.ws = 1; i.misc = {}
    i.srcA = i.srcB = i.srcC = i.dst = frozenset()
    if t.endswith(':') or t.startswith('.') or not t:
        i.mn = t; i.kind = 'label' if t.endswith(':') else 'dir'; i.ws = 0
        return i
    sp = t.split(None, 1)
    mn = sp[0]; rest = sp[1] if len(sp) > 1 else ''
    i.mn = mn
    ops = split_ops(rest)
    mods = ''
    if ops:
        parts = ops[-1].split(None, 1)
        if len(parts) > 1 and not parts[0].startswith('hwreg') :
            ops[-1] = parts[0]; mods = parts[1]
    i.misc['mods'] = mods
    R = [regs_of(o) for o in ops]
    if mn.startswith('v_smfmac'):
        i.kind = 'mfma'; i.passes = 8
        i.dst = frozenset(R[0]); i.srcA = frozenset(R[1]); i.srcB = frozenset(R[2] | R[3]); i.srcC = frozenset(R[0])
        i.wr = set(R[0]); i.rd = R[0] | R[1] | R[2] | R[3]
    elif mn.startswith('v_mfma'):
        i.kind = 'mfma'
        i.passes = 8 if '32x32x16' in mn else 4 if '16x16x32' in mn else None
        assert i.passes
        i.dst = frozenset(R[0]); i.srcA = frozenset(R[1]); i.srcB = frozenset(R[2]); i.srcC = frozenset(R[3])
        i.wr = set(R[0]); i.rd = R[1] | R[2] | R[3]
    elif mn.startswith('v_'):
        i.kind = 'valu'
        base = mn
        for suf in ('_e32', '_e64', '_dpp', '_sdwa'):
            if base.endswith(suf): base = base[:-len(suf)]
        i.misc['base'] = base
        i.misc['dpp'] = mn.endswith('_dpp')
        if base.startswith('v_permlane'):
            i.wr = R[0] | R[1]; i.rd = R[0] | R[1]
        elif base.startswith('v_cmp'):
            i.wr = set(R[0]); i.rd = set().union(*R[1:])
        elif base in ('v_add_co_u32', 'v_sub_co_u32', 'v_addc_co_u32'):
            i.wr = R[0] | R[1]; i.rd = set().union(*R[2:])
        elif base == 'v_nop':
            pass
        else:
            i.wr = set(R[0]); i.rd = set().union(*R[1:]) if len(R) > 1 else set()
            if base in ('v_fmac_f32', 'v_dot2c_f32_bf16') or mn.endswith('_sdwa') or mn.endswith('_dpp'): i.rd |= R[0]
            if base == 'v_cndmask_b32' and len(R) == 3: i.rd |= regs_of('vcc')
    elif mn.startswith('ds_'):
        i.kind = 'ds'
        if mn.startswith('ds_read') or mn.startswith('ds_bpermute') or mn.startswith('ds_swizzle') or mn.startswith('ds_permute'):
            i.wr = set(R[0]); i.rd = set().union(*R[1:]); i.misc['load'] = True
        else:
            i.rd = set().union(*R); i.misc['load'] = False
    elif mn.startswith('buffer_') or mn.startswith('global_'):
        i.kind = 'vmem'
        lds = re.search(r'\blds\b', mods) is not None or 'load_lds' in mn
        i.misc['lds'] = lds
        if 'load' in mn and not lds:
            i.wr = set(R[0]); i.rd = set().union(*R[1:]); i.misc['load'] = True
        elif 'load' in mn:
            i.rd = set().union(*R) | {('m0', 0)}; i.misc['load'] = False
        elif mn in ('buffer_wbl2', 'buffer_inv'):
            i.misc['load'] = False
        else:
            i.rd = set().union(*R); i.misc['load'] = False
            data = R[0] if mn.startswith('buffer_') else R[1]
            i.misc['data'] = data
            i.misc['wide'] = ('x4' in mn or 'x3' in mn)
            if 'atomic' in mn and 'sc0' in mods:
                i.wr = set(R[0]); i.misc['load'] = True
    elif mn.startswith('s_'):
        i.kind = 'salu'
        if mn == 's_nop':
            i.ws = int(ops[0], 0) + 1; i.kind = 'nop'
        elif mn == 's_waitcnt':
            i.kind = 'wait'
            m = re.search(r'vmcnt\((\d+)\)', t); i.misc['vm'] = int(m.group(1)) if m else None
            m = re.search(r'lgkmcnt\((\d+)\)', t); i.misc['lgkm'] = int(m.group(1)) if m else None
        elif mn.startswith('s_cmp') or mn.startswith('s_cbranch') or mn in ('s_branch', 's_barrier', 's_endpgm', 's_setprio', 's_sleep', 's_bitcmp1_b32', 's_bitcmp0_b32'):
            i.rd = set().union(*R) if R else set()
            if mn.startswith('s_cbranch') or mn == 's_branch': i.kind = 'branch'
        elif mn.startswith('s_load') or mn.startswith('s_memtime') or mn.startswith('s_memrealtime') or mn.startswith('s_buffer_load') or mn.startswith('s_atomic'):
            i.kind = 'smem'; i.wr = set(R[0]); i.rd = set().union(*R[1:]) if len(R) > 1 else set()
        else:
            i.wr = set(R[0]); i.rd = set().union(*R[1:]) if len(R) > 1 else set()
            if 'saveexec' in mn: i.wr |= {('exec', 0)}
    else:
        raise ValueError('unknown instr ' + text)
    return i

def vg(s): return {r for r in s if r[0] in 'va'}
def sg(s): return {r for r in s if r[0] == 's'}

def need(p, c):
    n = 0
    if p.kind == 'valu':
        pw = vg(p.wr)
        if c.kind == 'mfma' and pw & c.rd: n = max(n, 2)
        if c.kind == 'valu':
            b = c.misc['base']
            if p.misc['base'] in TRANS and b not in TRANS and pw & c.rd: n = max(n, 1)
            if b in ('v_readfirstlane_b32', 'v_readlane_b32') and pw & c.rd: n = max(n, 1)
            if b.startswith('v_permlane') and pw & c.rd: n = max(n, 2)
            if c.misc['dpp'] and pw & c.rd: n = max(n, 2)
            if p.mn.endswith('_sdwa') and pw & (c.rd | c.wr): n = max(n, 1)
            if sg(p.wr) & c.rd: n = max(n, 4 if b in ('v_readlane_b32', 'v_writelane_b32') else 2)
            if p.misc['base'].startswith('v_dot') and b != p.misc['base'] and pw & (c.rd | c.wr): n = max(n, 3)
        if c.kind == 'vmem' and sg(p.wr) & c.rd: n = max(n, 5)
        if c.kind in ('salu', 'branch', 'smem') and sg(p.wr) & c.rd: n = max(n, 1)
    if p.kind == 'mfma':
        idx = {4: 0, 8: 1}[p.passes]
        if c.kind == 'mfma':
            if p.dst & c.srcC:
                if not (p.dst == c.srcC and p.passes == c.passes): n = max(n, (6, 10)[idx])
            if p.dst & (c.srcA | c.srcB): n = max(n, (8, 12)[idx])
            if p.dst & c.dst and not (p.dst == c.srcC and p.dst == c.dst and p.passes == c.passes): n = max(n, (8, 12)[idx])
        if c.kind == 'valu':
            if p.dst & (c.rd | c.wr): n = max(n, (8, 12)[idx])
            if p.srcC & c.wr: n = max(n, (3, 7)[idx])
        if c.kind in ('vmem', 'ds') and p.dst & (c.rd | c.wr): n = max(n, (8, 12)[idx])
        if c.kind in ('vmem', 'ds') and p.srcC & c.wr: n = max(n, (3, 7)[idx])
    if p.kind == 'salu' and ('m0', 0) in p.wr and c.kind == 'vmem' and c.misc.get('lds'): n = max(n, 1)
    if p.kind == 'vmem' and p.misc.get('wide') and p.misc.get('data'):
        if c.kind in ('valu', 'mfma') and p.misc['data'] & c.wr: n = max(n, 2)
        elif p.misc['data'] & c.wr: n = max(n, 1)
    if p.kind == 'ds' and not p.misc['load'] and ('b128' in p.mn or 'b96' in p.mn):
        if c.kind in ('valu', 'mfma') and vg(p.rd) & c.wr: n = max(n, 2)
    return n

MAXD = 13
def hazard_gap(hist, c):
    d = 0; miss = 0
    for p in reversed(hist):
        if d >= MAXD: break
        if p.ws:
            n = need(p, c)
            if n > d: miss = max(miss, n - d)
        d += p.ws
    return miss

class Asm:
    def __init__(self):
        self.ins = []
    def __call__(self, text):
        for line in text.split('\n'):
            line = line.strip()
            if not line or line.startswith(';'):
                continue
            c = parse(line)
            if c.ws:
                m = hazard_gap(self.ins[-40:], c)
                if m > 0:
                    self.ins.append(parse(f's_nop {m-1}'))
            self.ins.append(c)
    def label(self, n): self(f'{n}:')
    def text(self):
        out = []
        for i in self.ins:
            out.append(i.text if i.kind in ('label', 'dir') else '    ' + i.text)
        return '\n'.join(out) + '\n'
    def mark(self): return len(self.ins)

def check_seq(seq, name=''):
    errs = []
    hist = []
    lg = []
    vm = []
    smem = set()
    for c in seq:
        if not c.ws: continue
        m = hazard_gap(hist[-40:], c)
        if m > 0: errs.append(f'{name}: hazard {m} before {c.text}')
        touched = c.rd | c.wr
        for d in lg:
            if d and d & touched: errs.append(f'{name}: lgkm RAW/WAW {c.text}'); break
        for d in vm:
            if d and d & touched: errs.append(f'{name}: vmcnt RAW/WAW {c.text}'); break
        if smem & touched and c.kind != 'smem': errs.append(f'{name}: smem pending {c.text}')
        if c.kind == 'wait':
            if c.misc['vm'] is not None:
                n = c.misc['vm']; vm = vm[len(vm) - n:] if n < len(vm) and n > 0 else ([] if n == 0 else vm)
            if c.misc['lgkm'] is not None:
                n = c.misc['lgkm']
                if n == 0: smem = set()
                elif smem: errs.append(f'{name}: counted lgkm with smem pending {c.text}')
                lg = lg[len(lg) - n:] if n < len(lg) and n > 0 else ([] if n == 0 else lg)
        if c.kind == 'ds': lg.append(set(c.wr) if c.misc['load'] else None)
        if c.kind == 'vmem': vm.append(set(c.wr) if c.misc.get('load') else None)
        if c.kind == 'smem': smem |= c.wr
        hist.append(c)
    return errs

def interleave(main, side, start=0, end=None, per=1):
    end = len(main) if end is None else end
    n = len(side)
    slots = {}
    span = end - start
    for k, sitem in enumerate(side):
        pos = start + (k * span) // max(n, 1)
        slots.setdefault(pos, []).append(sitem)
    out = []
    for idx, m in enumerate(main):
        out.append(m)
        for sitem in slots.get(idx, []):
            out.extend(sitem if isinstance(sitem, list) else [sitem])
    return out

KD = """.section .rodata,"a"
.p2align 6
.amdhsa_kernel {name}
  .amdhsa_next_free_vgpr {vgpr}
  .amdhsa_next_free_sgpr {sgpr}
  .amdhsa_accum_offset {accum}
  .amdhsa_group_segment_fixed_size 0
  .amdhsa_kernarg_size 88
  .amdhsa_user_sgpr_count 2
  .amdhsa_user_sgpr_kernarg_segment_ptr 1
  .amdhsa_system_sgpr_workgroup_id_x 1
.end_amdhsa_kernel
"""
def kernel_text(name, asm, vgpr, sgpr, accum):
    return (f".text\n.globl {name}\n.p2align 8\n.type {name},@function\n{name}:\n" + asm.text() +
            KD.format(name=name, vgpr=vgpr, sgpr=sgpr, accum=accum))
```

```python
from asmlib import *
import struct

WS_QKV = 0
WS_OH = 0x1000000
WS_G = 0x2200000
WS_FLAG = 0x2300000
OH_TB = 4608 * 64
LOG2E = 1.4426950408889634
def f2u(f): return struct.unpack('<I', struct.pack('<f', f))[0]
QSCALE = f2u(32 ** -0.5 * LOG2E)
NLOG2E = f2u(-LOG2E)

XBUF = [0, 32768]
WBUF = [65536, 65536 + 40960]
LDS_BYTES = 65536 + 81920

def acc(half, t, tb):
    idx = (t * 2 + half) * 8 + tb
    if idx < 52: return ('v', 48 + 4 * idx)
    return ('a', 4 * (idx - 52))
def rng(r, n=4): return f'{r[0]}[{r[1]}:{r[1]+n-1}]'
def xfrag(st, tb): return ('a', 112 + 72 * st + 4 * tb)
def wfrag(st, half, t): return ('a', 112 + 72 * st + 32 + 4 * (half * 5 + t))

V_XOFF = 1
V_WOFF = 9
V_XRD = 12
V_WRD = 14
V_PF = 16
V_PD = 17
S_X, S_WA, S_WB, S_WC4, S_WS, S_PF = 4, 8, 12, 16, 20, 24
S_XK, S_WK, S_WI = 28, 29, 32
S_LX, S_LW, S_CNT, S_W, S_WR, S_WC, S_RB, S_CT, S_PK, S_PI = 35, 36, 37, 38, 39, 40, 41, 42, 43, 44
S_F0, S_N3, S_N4, S_ODD, S_HS = 45, 46, 47, 48, 49
S_PS, S_PM = 3, 57
S_T = 50
import os
PD = int(os.environ.get("PD", "1"))

def gen(name='k1_kernel', stamp=False, sched=None, store_mod='', code_from=None, code_to=None, pf=True):
    a = Asm()
    a(f'''
    s_cmp_ge_u32 s2, 256
    s_cbranch_scc1 {name}_end
    s_load_dwordx4 s[60:63], s[0:1], 0
    s_load_dwordx8 s[64:71], s[0:1], 32
    s_load_dwordx2 s[72:73], s[0:1], 80
    s_load_dwordx2 s[74:75], s[0:1], 16
    v_lshrrev_b32 v16, 6, v0
    v_and_b32 v0, 63, v0
    v_readfirstlane_b32 s{S_W}, v16
    s_and_b32 s{S_T}, s2, 7
    s_lshr_b32 s{S_T+1}, s2, 3
    s_and_b32 s{S_RB}, s{S_T+1}, 7
    s_lshr_b32 s{S_T+1}, s{S_T+1}, 3
    s_lshl_b32 s{S_CT}, s{S_T}, 2
    s_add_u32 s{S_CT}, s{S_CT}, s{S_T+1}
    s_lshr_b32 s{S_WR}, s{S_W}, 1
    s_and_b32 s{S_WC}, s{S_W}, 1
    ''')
    if stamp: a('s_memtime s[90:91]\ns_memrealtime s[92:93]')
    a(f'''
    s_and_b32 s{S_ODD}, s{S_CT}, 1
    s_lshr_b32 s{S_T}, s{S_CT}, 1
    s_mul_i32 s{S_F0}, s{S_T}, 224
    s_lshl_b32 s{S_T+1}, s{S_ODD}, 7
    s_add_u32 s{S_F0}, s{S_F0}, s{S_T+1}
    s_mul_i32 s{S_N4}, s{S_T}, 192
    s_add_u32 s{S_N3}, s{S_N4}, 64
    s_add_u32 s{S_N4}, s{S_N4}, s{S_T+1}
    s_movk_i32 s{S_T+2}, 7168
    s_cmp_eq_u32 s{S_ODD}, 1
    s_cselect_b32 s{S_T+3}, 6144, s{S_T+2}
    s_lshl_b32 s{S_T+4}, s{S_WC}, 5
    s_add_u32 s{S_T+5}, s{S_N3}, s{S_T+4}
    s_add_u32 s{S_T+6}, s{S_F0}, 96
    s_cmp_eq_u32 s{S_ODD}, 1
    s_cselect_b32 s{S_T+5}, s{S_T+5}, s{S_T+6}
    s_add_u32 s{S_T+6}, s{S_N4}, s{S_T+4}
    s_mov_b32 s{S_WI}, {7168*32}
    s_lshl_b32 s{S_WI+1}, s{S_T+3}, 5
    s_mov_b32 s{S_WI+2}, {6144*32}
    s_and_b32 s{S_HS}, s2, 7
    s_lshl_b32 s{S_XK}, s{S_HS}, 8
    s_lshl_b32 s{S_HS}, s{S_HS}, 2
    s_mul_i32 s{S_WK}, s{S_HS}, s{S_WI}
    s_mul_i32 s{S_WK+1}, s{S_HS}, s{S_WI+1}
    s_mul_i32 s{S_WK+2}, s{S_HS}, s{S_WI+2}
    s_lshl_b32 s{S_LX}, s{S_W}, 13
    s_mul_i32 s{S_LW}, s{S_WR}, 10240
    s_mul_i32 s{S_T}, s{S_WC}, 5120
    s_add_u32 s{S_LW}, s{S_LW}, s{S_T}
    v_lshrrev_b32 v17, 2, v0
    s_lshl_b32 s{S_T}, s{S_WR}, 4
    v_add_u32 v17, s{S_T}, v17
    v_lshrrev_b32 v18, 5, v0
    v_lshlrev_b32 v18, 1, v18
    v_and_b32 v19, 3, v0
    v_xor_b32 v18, v18, v19
    v_lshlrev_b32 v18, 4, v18
    v_mul_u32_u24 v{V_WOFF}, 7168, v17
    v_mul_lo_u32 v{V_WOFF+1}, v17, s{S_T+3}
    v_mul_u32_u24 v{V_WOFF+2}, 6144, v17
    s_lshl_b32 s{S_T}, s{S_F0}, 1
    s_lshl_b32 s{S_T+5}, s{S_T+5}, 1
    s_lshl_b32 s{S_T+6}, s{S_T+6}, 1
    v_add3_u32 v{V_WOFF}, v{V_WOFF}, v18, s{S_T}
    v_add3_u32 v{V_WOFF+1}, v{V_WOFF+1}, v18, s{S_T+5}
    v_add3_u32 v{V_WOFF+2}, v{V_WOFF+2}, v18, s{S_T+6}
    v_lshrrev_b32 v17, 3, v0
    s_lshl_b32 s{S_T}, s{S_RB}, 8
    s_lshl_b32 s{S_T+1}, s{S_W}, 6
    s_add_u32 s{S_T}, s{S_T}, s{S_T+1}
    v_add_u32 v17, s{S_T}, v17
    v_lshlrev_b32 v17, 11, v17
    v_and_b32 v18, 7, v0
    v_lshrrev_b32 v19, 4, v0
    v_xor_b32 v18, v18, v19
    v_lshlrev_b32 v18, 4, v18
    v_add_u32 v17, v17, v18
    v_xor_b32 v18, 64, v17
    ''')
    for i in range(8):
        a(f'v_add_u32 v{V_XOFF+i}, {i*16384}, v{17 if i % 2 == 0 else 18}')
    a(f'''
    v_lshlrev_b32 v18, 4, v0
    s_lshl_b32 s{S_T}, s2, 3
    s_lshl_b32 s{S_T+1}, s{S_W}, 1
    s_add_u32 s58, s{S_T}, s{S_T+1}
    s_lshl_b32 s59, s58, 11
    s_waitcnt lgkmcnt(0)
    {'s_memtime s[78:79]' if stamp else ''}
    s_mov_b32 s{S_X}, s60
    s_mov_b32 s{S_X+1}, s61
    s_mov_b32 s{S_X+2}, {2048*1024*2}
    s_mov_b32 s{S_X+3}, 0x20000
    s_cmp_eq_u32 s{S_WC}, 0
    s_cselect_b32 s{S_WA}, s64, s66
    s_cselect_b32 s{S_WA+1}, s65, s67
    s_mov_b32 s{S_WA+2}, {7168*1024}
    s_mov_b32 s{S_WA+3}, 0x20000
    s_cmp_eq_u32 s{S_ODD}, 1
    s_cselect_b32 s{S_WB}, s62, s{S_WA}
    s_cselect_b32 s{S_WB+1}, s63, s{S_WA+1}
    s_lshl_b32 s{S_WB+2}, s{S_T+3}, 10
    s_mov_b32 s{S_WB+3}, 0x20000
    s_mov_b32 s{S_WC4}, s62
    s_mov_b32 s{S_WC4+1}, s63
    s_mov_b32 s{S_WC4+2}, {6144*1024}
    s_mov_b32 s{S_WC4+3}, 0x20000
    ''')
    def dma_x(buf):
        L = []
        for i in range(8):
            L.append([f's_add_u32 m0, s{S_LX}, {XBUF[buf] + i*1024}',
                      f'buffer_load_dwordx4 v{V_XOFF+i}, s[{S_X}:{S_X+3}], s{S_XK} offen lds'])
        L[-1] += [f's_add_u32 s{S_XK}, s{S_XK}, 128', f's_and_b32 s{S_XK}, s{S_XK}, 2047']
        return L
    def dma_w(buf, ks):
        L = []
        for q in range(5):
            g = max(0, q - 2)
            io = q * 64 if q < 3 else 0
            srd = (S_WA, S_WB, S_WC4)[g]
            L.append([f's_add_u32 m0, s{S_LW}, {WBUF[buf] + ks*20480 + q*1024 - io}',
                      f'buffer_load_dwordx4 v{V_WOFF+g}, s[{srd}:{srd+3}], s{S_WK+g} offen offset:{io} lds'])
            if q == 0: L[-1].append(f's_add_u32 s{S_HS}, s{S_HS}, 1')
            if q == 1: L[-1].append(f's_and_b32 s{S_HS}, s{S_HS}, 31')
            if q >= 2: L[-1].append(f's_mul_i32 s{S_WK+g}, s{S_HS}, s{S_WI+g}')
        return L
    def flat(L): return [x for it in L for x in it]
    for l in flat(dma_w(0, 0)) + flat(dma_x(0)): a(l)
    a(f'''
    s_mov_b32 s80, s70
    s_mov_b32 s81, s71
    s_mov_b32 s82, 2048
    s_mov_b32 s83, 0x20000
    s_mov_b32 s{S_WS}, s72
    s_mov_b32 s{S_WS+1}, s73
    s_mov_b32 s{S_WS+2}, 0x10000000
    s_mov_b32 s{S_WS+3}, 0x20000
    ''')
    gl = [[f'buffer_load_dwordx4 v[28:31], v18, s[{S_X}:{S_X+3}], s59 offen'],
          [f'buffer_load_dwordx4 v[32:35], v18, s[{S_X}:{S_X+3}], s59 offen offset:1024'],
          [f'buffer_load_dwordx4 v[36:39], v18, s[{S_X}:{S_X+3}], s59 offen offset:2048'],
          [f'buffer_load_dwordx4 v[40:43], v18, s[{S_X}:{S_X+3}], s59 offen offset:3072'],
          ['buffer_load_dwordx4 v[20:23], v18, s[80:83], 0 offen'],
          ['buffer_load_dwordx4 v[24:27], v18, s[80:83], 0 offen offset:1024']]
    pf_setup = f'''
    s_cmp_eq_u32 s{S_W}, 0
    s_cselect_b32 s{S_PF}, s62, s64
    s_cselect_b32 s{S_PF+1}, s63, s65
    s_cselect_b32 s{S_T}, 24, 28
    s_cmp_eq_u32 s{S_W}, 2
    s_cselect_b32 s{S_PF}, s66, s{S_PF}
    s_cselect_b32 s{S_PF+1}, s67, s{S_PF+1}
    s_lshl_b32 s{S_PF+2}, s{S_T}, 18
    s_lshl_b32 s{S_PI}, s{S_T}, 14
    s_mov_b32 s{S_PF+3}, 0x20000
    s_and_b32 s{S_T+1}, s2, 7
    s_lshl_b32 s{S_PS}, s{S_T+1}, 1
    s_add_u32 s{S_PS}, s{S_PS}, 1
    s_lshl_b32 s{S_T+2}, s{S_T+1}, 5
    s_lshr_b32 s{S_T+4}, s2, 3
    s_lshl_b32 s{S_T+5}, s{S_T+4}, 9
    s_add_u32 s{S_T+2}, s{S_T+2}, s{S_T+5}
    s_lshl_b32 s{S_T+5}, s{S_T+4}, 6
    s_cmp_eq_u32 s{S_W}, 3
    s_cselect_b32 s{S_PF}, s60, s{S_PF}
    s_cselect_b32 s{S_PF+1}, s61, s{S_PF+1}
    s_cselect_b32 s{S_PF+2}, s{S_X+2}, s{S_PF+2}
    s_cselect_b32 s{S_T}, 0x800, s{S_T}
    s_cselect_b32 s{S_PI}, 0x80, s{S_PI}
    s_cselect_b32 s{S_T+2}, s{S_T+5}, s{S_T+2}
    s_cselect_b32 s{S_T+4}, 5, 8
    s_mul_i32 s{S_PK}, s{S_PS}, s{S_PI}
    v_lshrrev_b32 v19, 5, v0
    v_lshlrev_b32 v19, s{S_T+4}, v19
    v_and_b32 v{V_PF}, 31, v0
    v_add3_u32 v{V_PF}, v{V_PF}, v19, s{S_T+2}
    v_mul_lo_u32 v{V_PF}, v{V_PF}, s{S_T}
    '''
    pf_switch = f'''
    s_lshl_b32 s{S_T+5}, s2, 6
    v_add_u32 v19, s{S_T+5}, v0
    v_lshlrev_b32 v19, 5, v19
    s_cmp_eq_u32 s{S_W}, 3
    s_cselect_b32 s{S_PF}, s68, s{S_PF}
    s_cselect_b32 s{S_PF+1}, s69, s{S_PF+1}
    s_cselect_b32 s{S_PF+2}, s{S_WA+2}, s{S_PF+2}
    s_cselect_b32 s{S_PI}, 0x80000, s{S_PI}
    s_cselect_b32 s{S_PS}, 0, s{S_PS}
    s_cselect_b32 s{S_PK}, 0, s{S_PK}
    s_cselect_b64 vcc, -1, 0
    v_cndmask_b32 v{V_PF}, v{V_PF}, v19, vcc
    '''
    pfi = [f'buffer_load_dword v{V_PD}, v{V_PF}, s[{S_PF}:{S_PF+3}], s{S_PK} offen', f's_add_u32 s{S_PS}, s{S_PS}, 1', f's_and_b32 s{S_PS}, s{S_PS}, 15',
           f's_mul_i32 s{S_PK}, s{S_PS}, s{S_PI}']
    a(pf_setup)
    for l in flat(dma_w(0, 1)): a(l)
    for k in range(PD):
        for l in pfi: a(l)
    a(pf_switch)
    NP = 1 if pf else 0
    if stamp: a('s_memtime s[84:85]')
    a(f'''
    v_and_b32 v44, 15, v0
    v_lshrrev_b32 v46, 4, v0
    v_lshrrev_b32 v19, 1, v44
    v_xor_b32 v19, v19, v46
    v_lshlrev_b32 v19, 4, v19
    v_lshl_add_u32 v19, v44, 7, v19
    s_lshl_b32 s{S_T}, s{S_WR}, 14
    v_add_u32 v{V_XRD}, s{S_T}, v19
    v_xor_b32 v{V_XRD+1}, 64, v{V_XRD}
    v_lshrrev_b32 v19, 5, v0
    v_mul_u32_u24 v19, 10240, v19
    v_and_b32 v45, 1, v46
    v_lshl_add_u32 v19, v45, 9, v19
    v_xor_b32 v45, s{S_WC}, v45
    v_lshl_add_u32 v19, v45, 5, v19
    v_lshrrev_b32 v45, 2, v44
    v_lshl_add_u32 v19, v45, 6, v19
    v_and_b32 v45, 3, v44
    v_lshl_add_u32 v19, v45, 3, v19
    v_add_u32 v{V_WRD}, {WBUF[0]}, v19
    v_add_u32 v{V_WRD+1}, {WBUF[1]}, v19
    ''')
    zero = [f'v_mov_b32 v{r}, 0' for r in range(48, 256)] + [f'v_accvgpr_write_b32 a{r}, 0' for r in range(112)]
    if stamp: a('s_memtime s[86:87]')
    def reads(buf, ks, st, order='w'):
        xs = [f'ds_read_b128 {rng(xfrag(st, tb))}, v{V_XRD+ks} offset:{XBUF[buf] + tb*2048}' for tb in range(8)]
        ws = []
        for t in range(5):
            for half in range(2):
                r = wfrag(st, half, t)
                for h in range(2):
                    ws.append(f'ds_read_b64_tr_b16 {r[0]}[{r[1]+2*h}:{r[1]+2*h+1}], v{V_WRD+buf} offset:{ks*20480 + half*5120 + t*1024 + h*256}')
        return ws[:2] + xs + ws[2:]
    def mf(st, half, t, tb):
        c = rng(acc(half, t, tb))
        return f'v_mfma_f32_16x16x32_bf16 {c}, {rng(wfrag(st, half, t))}, {rng(xfrag(st, tb))}, {c}'
    def mfmas(st):
        o = os.environ.get('ORD', '0')
        if o == '1': return [mf(st, half, t, tb) for tb in range(8) for t in range(5) for half in range(2)]
        if o == '2': return [mf(st, (i + tb) % 2, ((i + tb) % 10) // 2, tb) for i in range(10) for tb in range(8)]
        if o == '3': return [mf(st, half, t, tb if (2*t+half) % 2 == 0 else 7 - tb) for t in range(5) for half in range(2) for tb in range(8)]
        return [mf(st, half, t, tb) for t in range(5) for half in range(2) for tb in range(8)]
    gate = ['v_mov_b32 v44, 0', 'v_mov_b32 v45, 0']
    for j in range(8):
        gate += [f'v_dot2_f32_bf16 v44, v{28+j}, v{20+j}, v44', f'v_dot2_f32_bf16 v45, v{36+j}, v{20+j}, v45']
    for d in ('quad_perm:[1,0,3,2] row_mask:0xf', 'quad_perm:[2,3,0,1] row_mask:0xf', 'row_half_mirror row_mask:0xf', 'row_mirror row_mask:0xf',
              'row_bcast:15 row_mask:0xa', 'row_bcast:31 row_mask:0xc'):
        gate += [f'v_add_f32_dpp v44, v44, v44 {d} bank_mask:0xf', f'v_add_f32_dpp v45, v45, v45 {d} bank_mask:0xf']
    gate += [f'v_mul_f32 v44, {NLOG2E:#x}, v44', f'v_mul_f32 v45, {NLOG2E:#x}, v45', 'v_exp_f32 v44, v44', 'v_exp_f32 v45, v45',
             'v_add_f32 v44, 1.0, v44', 'v_add_f32 v45, 1.0, v45', 'v_rcp_f32 v46, v44', 'v_rcp_f32 v47, v45']
    a(f's_waitcnt vmcnt({5+PD})\ns_barrier')
    for l in reads(0, 0, 0): a(l)
    a(f's_mov_b32 s{S_CNT}, 6')
    if stamp == 2: a('s_mov_b32 s101, 0\nv_mov_b32 v19, 0')
    if stamp: a('s_memtime s[88:89]')
    def step(st, wait, rd, dm, barrier=True, sc=None, valu=(), first=False):
        a(wait)
        if barrier: a('s_barrier')
        if stamp == 2:
            a('s_mov_b32 m0, s101\ns_nop 0\nv_writelane_b32 v19, s86, m0\ns_add_u32 s101, s101, 1\ns_memtime s[86:87]')
        body = mfmas(st)
        if first: body = [m.rsplit(',', 1)[0] + ', 0' for m in body]
        rs, re_, ds, de = sc if sc else sched if sched else (1, 57, 2, 74)
        slots = {}
        for k, it in enumerate(valu):
            slots.setdefault(2 + k * 76 // len(valu), []).append([it])
        for k, it in enumerate(rd):
            slots.setdefault(rs + k * (re_ - rs) // max(len(rd), 1), []).append([it])
        for k, it in enumerate(dm):
            slots.setdefault(ds + k * (de - ds) // max(len(dm), 1), []).append(it)
        for idx, m in enumerate(body):
            pre = [it for it in slots.get(idx, []) if it[0].startswith('s_add_u32 m0')]
            for it in pre: a(it[0])
            a(m)
            for it in slots.get(idx, []):
                for l in (it[1:] if it in pre else it): a(l)
    P1 = [pfi] if pf else []
    step(0, f's_waitcnt vmcnt({PD}) lgkmcnt(0)', reads(0, 1, 1), dma_w(1, 0) + dma_x(1) + dma_w(1, 1) + dma_w(0, 0) + P1, sc=(1, 57, 0, 72), first=True)
    step(1, 's_waitcnt vmcnt(11) lgkmcnt(0)', reads(1, 0, 0), dma_x(0) + gl + P1)
    step(0, f's_waitcnt vmcnt(21) lgkmcnt(0)', reads(1, 1, 1), dma_w(0, 1) + dma_w(1, 0) + P1)
    step(1, f's_waitcnt vmcnt(12) lgkmcnt(0)', reads(0, 0, 0), dma_x(1), valu=gate)
    m0 = a.mark()
    a.label(f'{name}_loop')
    for p in range(2):
        step(0, f's_waitcnt vmcnt({13+NP}) lgkmcnt(0)', reads(p, 1, 1), dma_w(1 - p, 1) + dma_w(p, 0) + P1)
        step(1, f's_waitcnt vmcnt({10+NP}) lgkmcnt(0)', reads(1 - p, 0, 0), dma_x(p))
    a(f's_sub_u32 s{S_CNT}, s{S_CNT}, 1\ns_cmp_lg_u32 s{S_CNT}, 0\ns_cbranch_scc1 {name}_loop')
    m1 = a.mark()
    extra = [[f's_lshl_b32 s59, s58, 2', f's_add_u32 s59, s59, {WS_G:#x}', 'v_mov_b32 v18, 0', 's_mov_b32 exec_lo, 0', 's_mov_b32 exec_hi, 0x80000000',
              f'buffer_store_dwordx2 v[46:47], v18, s[{S_WS}:{S_WS+3}], s59 offen',
              f's_lshl_b32 s59, s58, 7', f's_add_u32 s59, s59, {WS_FLAG:#x}', 's_mov_b64 exec, 15', 'v_lshlrev_b32 v19, 6, v0',
              f'buffer_store_dword v18, v19, s[{S_WS}:{S_WS+3}], s59 offen', 's_mov_b64 exec, -1']]
    extra.append(['s_mov_b32 s80, s74', 's_mov_b32 s81, s75', f's_mov_b32 s82, {1024*2048}', 's_lshl_b32 s59, s58, 10', 'v_lshlrev_b32 v18, 5, v0',
                  'buffer_load_dword v6, v18, s[80:83], s59 offen'])
    NE = 3
    if code_from:
        extra.append([f's_getpc_b64 s[{S_PF}:{S_PF+1}]', f'{name}_pc:',
                      f's_mov_b32 s{S_PF+2}, {code_to}-{name}_pc', f's_lshr_b32 s{S_T}, s2, 3', f's_lshl_b32 s{S_T}, s{S_T}, 2', f's_add_u32 s{S_T}, s{S_T}, s{S_W}',
                      f's_lshl_b32 s{S_T}, s{S_T}, 9', f'v_lshlrev_b32 v{V_PF}, 3, v0',
                      f'buffer_load_dword v5, v{V_PF}, s[{S_PF}:{S_PF+3}], s{S_T} offen'])
        NE = 4
    step(0, f's_waitcnt vmcnt({13+NP}) lgkmcnt(0)', reads(0, 1, 1), dma_w(1, 1) + extra)
    step(1, f's_waitcnt vmcnt({5+NE}) lgkmcnt(0)', reads(1, 0, 0), [])
    if stamp: a('s_memtime s[94:95]')

    if stamp == 2:
        a(f'''
        s_waitcnt lgkmcnt(0)
        s_mov_b32 m0, s101
        s_nop 0
        v_writelane_b32 v19, s86, m0
        s_lshl_b32 s74, s2, 2
        s_add_u32 s74, s74, s{S_W}
        s_lshl_b32 s74, s74, 8
        s_add_u32 s74, s74, 0x8400000
        v_lshlrev_b32 v18, 2, v0
        buffer_store_dword v19, v18, s[{S_WS}:{S_WS+3}], s74 offen
        s_waitcnt vmcnt(0)
        ''')
    a(f'''
    v_lshlrev_b32 v1, 4, v0
    s_mov_b32 s70, {NLOG2E:#x}
    s_mov_b32 s71, {NLOG2E:#x}
    s_lshl_b32 s{S_T}, s{S_RB}, 3
    s_lshl_b32 s{S_T+1}, s{S_WR}, 2
    s_add_u32 s{S_T}, s{S_T}, s{S_T+1}
    s_mul_i32 s72, s{S_T}, {OH_TB}
    s_lshl_b32 s{S_T+1}, s{S_F0}, 6
    s_add_u32 s72, s72, s{S_T+1}
    s_lshl_b32 s{S_T+1}, s{S_WC}, 10
    s_add_u32 s72, s72, s{S_T+1}
    s_add_u32 s72, s72, {WS_OH + 1024*64}
    s_lshl_b32 s73, s{S_T}, 10
    s_lshl_b32 s{S_T+1}, s{S_WC}, 16
    s_add_u32 s73, s73, s{S_T+1}
    s_lshl_b32 s69, s{S_T}, 11
    s_lshl_b32 s{S_T+1}, s{S_WC}, 8
    s_add_u32 s69, s69, s{S_T+1}
    v_and_b32 v18, 15, v0
    v_lshrrev_b32 v19, 4, v0
    v_lshlrev_b32 v2, 4, v18
    v_lshl_add_u32 v2, v19, 9, v2
    v_lshlrev_b32 v3, 5, v18
    v_lshl_add_u32 v3, v19, 3, v3
    v_add_u32 v3, s{S_LX}, v3
    v_lshrrev_b32 v4, 5, v0
    v_lshlrev_b32 v4, 9, v4
    v_and_b32 v19, 1, v19
    v_lshl_add_u32 v4, v19, 7, v4
    v_lshrrev_b32 v19, 2, v18
    v_lshl_add_u32 v4, v19, 5, v4
    v_and_b32 v19, 3, v18
    v_lshl_add_u32 v4, v19, 3, v4
    v_add_u32 v4, s{S_LX}, v4
    ''')
    ws = f's[{S_WS}:{S_WS+3}]'
    def M(t): return [mf(st, half, t, tb) for st in range(2) for half in range(2) for tb in range(8)]
    def getv(L, r, tmp):
        if r[0] == 'v': return r[1]
        for j in range(4): L.append(f'v_accvgpr_read_b32 v{tmp+j}, a{r[1]+j}')
        return tmp
    def epi_ffn(t):
        L = []
        for tbp in range(4):
            G = [getv(L, acc(0, t, 2*tbp + i), 16 + 4*i) for i in range(2)]
            U = [getv(L, acc(1, t, 2*tbp + i), 48 + 4*i) for i in range(2)]
            E = [24 + 12*(tbp % 2) + 4*i for i in range(2)]
            O = 32 + 12*(tbp % 2)
            for i in range(2):
                for j in (0, 2): L.append(f'v_pk_mul_f32 v[{E[i]+j}:{E[i]+j+1}], v[{G[i]+j}:{G[i]+j+1}], s[70:71]')
            for i in range(2):
                for j in range(4): L += (['@M'] if i == 0 else []) + [f'v_exp_f32 v{E[i]+j}, v{E[i]+j}']
            for i in range(2):
                for j in (0, 2): L.append(f'v_pk_mul_f32 v[{U[i]+j}:{U[i]+j+1}], v[{G[i]+j}:{G[i]+j+1}], v[{U[i]+j}:{U[i]+j+1}]')
            for i in range(2):
                for j in (0, 2): L.append(f'v_pk_add_f32 v[{E[i]+j}:{E[i]+j+1}], v[{E[i]+j}:{E[i]+j+1}], 1.0 op_sel_hi:[1,0]')
            for i in range(2):
                for j in range(4): L += (['@M'] if i == 0 else []) + [f'v_rcp_f32 v{E[i]+j}, v{E[i]+j}']
            L.append(f's_add_u32 s74, s72, {t*2048 + tbp*OH_TB}')
            for i in range(2):
                for j in (0, 2): L.append(f'v_pk_mul_f32 v[{U[i]+j}:{U[i]+j+1}], v[{U[i]+j}:{U[i]+j+1}], v[{E[i]+j}:{E[i]+j+1}]')
            for i in range(2):
                for j in range(2): L.append(f'v_cvt_pk_bf16_f32 v{O+2*i+j}, v{U[i]+2*j}, v{U[i]+2*j+1}')
            L += [f'v_permlane16_swap_b32 v{O}, v{O+2}', f'v_permlane16_swap_b32 v{O+1}, v{O+3}',
                  f'buffer_store_dwordx4 v[{O}:{O+3}], v1, {ws}, s74 offen {store_mod}']
        return L
    def epi_qk(t, scol, packed=True):
        L = [f's_cmp_lt_u32 s{scol}, 1024', f's_cselect_b32 s76, {QSCALE:#x}, 1.0', 's_mov_b32 s77, s76',
             f's_lshl_b32 s75, s{scol}, 12', 's_add_u32 s75, s75, s73']
        for half in range(2):
            for tbp in range(4):
                X = [getv(L, acc(half, t, 2*tbp + i), 48 + 4*i + 8*(tbp % 2)) for i in range(2)]
                O = 24 + 4*(tbp % 4)
                for i in range(2):
                    if packed:
                        for j in (0, 2): L.append(f'v_pk_mul_f32 v[{X[i]+j}:{X[i]+j+1}], v[{X[i]+j}:{X[i]+j+1}], s[76:77]')
                    else:
                        for j in range(4): L.append(f'v_mul_f32 v{X[i]+j}, s76, v{X[i]+j}')
                L.append(f's_add_u32 s74, s75, {WS_QKV + half*131072 + tbp*1024}')
                for i in range(2):
                    for j in range(2): L.append(f'v_cvt_pk_bf16_f32 v{O+2*i+j}, v{X[i]+2*j}, v{X[i]+2*j+1}')
                L += [f'v_permlane16_swap_b32 v{O}, v{O+2}', f'v_permlane16_swap_b32 v{O+1}, v{O+3}',
                      f'buffer_store_dwordx4 v[{O}:{O+3}], v1, {ws}, s74 offen {store_mod}']
        return L
    def epi_v(t, scol):
        L = [f's_lshl_b32 s75, s{scol}, 12', 's_add_u32 s75, s75, s69']
        units = [(half, tbp) for half in range(2) for tbp in range(4)]
        for u, (half, tbp) in enumerate(units):
            X = [getv(L, acc(half, t, 2*tbp + i), 48 + 4*i + 8*(u % 2)) for i in range(2)]
            C = 16 + 4*(u % 2)
            for i in range(2):
                for j in range(2): L.append(f'v_cvt_pk_bf16_f32 v{C+2*i+j}, v{X[i]+2*j}, v{X[i]+2*j+1}')
            for i in range(2): L.append(f'ds_write_b64 v3, v[{C+2*i}:{C+2*i+1}] offset:{u*1024 + i*512}')
        L.append('s_waitcnt lgkmcnt(0)')
        for u in range(8):
            O = 64 + 4*u
            for rr in range(2): L.append(f'ds_read_b64_tr_b16 v[{O+2*rr}:{O+2*rr+1}], v4 offset:{u*1024 + rr*256}')
        for u, (half, tbp) in enumerate(units):
            O = 64 + 4*u
            L += [f's_add_u32 s74, s75, {WS_QKV + half*131072 + tbp*2048}', f's_waitcnt lgkmcnt({14 - 2*u})',
                  f'buffer_store_dwordx4 v[{O}:{O+3}], v2, {ws}, s74 offen {store_mod}']
        return L
    def merge(mm, ep):
        if '@M' in ep:
            it = iter(mm)
            for l in ep: a(next(it) if l == '@M' else l)
            assert next(it, None) is None
            return
        n = len(mm); k = 0
        for i, m in enumerate(mm):
            a(m)
            upto = (i + 1) * len(ep) // n
            while k < upto: a(ep[k]); k += 1
    a(f's_waitcnt vmcnt({NE}) lgkmcnt(0)\ns_barrier')
    rd = reads(1, 1, 1); mm = M(0)
    for i in range(16):
        a(mm[i])
        for l in rd[2*i:2*i+2]: a(l)
    a('s_waitcnt lgkmcnt(0)')
    for i in range(16, 32): a(mm[i])
    for t in (1, 2, 3): merge(M(t), epi_ffn(t - 1))
    paths = []
    a(f's_cmp_eq_u32 s{S_ODD}, 1\ns_cbranch_scc1 {name}_o3')
    p0 = a.mark()
    merge(M(4), epi_ffn(3))
    a(f's_branch {name}_s4')
    p1 = a.mark()
    a.label(f'{name}_o3')
    a(f's_cmp_ge_u32 s{S_N3}, 2048\ns_cbranch_scc1 {name}_o3v')
    p2 = a.mark()
    merge(M(4), epi_qk(3, S_N3, packed=False))
    a(f's_branch {name}_s4')
    p3 = a.mark()
    a.label(f'{name}_o3v')
    merge(M(4), epi_v(3, S_N3))
    p4 = a.mark()
    a.label(f'{name}_s4')
    a(f's_nop 4\ns_cmp_ge_u32 s{S_N4}, 2048\ns_cbranch_scc1 {name}_o4v')
    p5 = a.mark()
    for l in epi_qk(4, S_N4): a(l)
    a(f's_branch {name}_fin')
    p6 = a.mark()
    a.label(f'{name}_o4v')
    for l in epi_v(4, S_N4): a(l)
    p7 = a.mark()
    a.label(f'{name}_fin')
    if stamp:
        a(f'''
        s_waitcnt vmcnt(0)
        s_memtime s[96:97]
        s_memrealtime s[98:99]
        s_waitcnt lgkmcnt(0)
        v_mov_b32 v4, s90
        v_mov_b32 v5, s94
        v_mov_b32 v6, s96
        v_mov_b32 v7, s92
        v_mov_b32 v8, s98
        v_mov_b32 v9, s88
        v_mov_b32 v10, 0
        s_lshl_b32 s74, s2, 2
        s_add_u32 s74, s74, s{S_W}
        s_lshl_b32 s74, s74, 6
        v_mov_b32 v12, s78
        v_mov_b32 v13, s84
        v_mov_b32 v14, s86
        v_mov_b32 v15, s86
        s_add_u32 s74, s74, 0x8000000
        s_mov_b32 exec_lo, 1
        s_mov_b32 exec_hi, 0
        buffer_store_dwordx4 v[4:7], v10, {ws}, s74 offen
        buffer_store_dwordx2 v[8:9], v10, {ws}, s74 offen offset:16
        buffer_store_dwordx4 v[12:15], v10, {ws}, s74 offen offset:32
        ''')
    a.label(f'{name}_end')
    a('s_endpgm')
    base = a.ins[:m1] + a.ins[m0:m1] + a.ins[m1:p0]
    errs = []
    for b4 in (a.ins[p0:p1], a.ins[p1:p3], a.ins[p1:p2] + a.ins[p3:p4]):
        for b5 in (a.ins[p5:p6], a.ins[p6:p7]):
            errs += check_seq(base + b4 + a.ins[p4:p5] + b5 + a.ins[p7:], name)
    errs = [e for e in dict.fromkeys(errs) if f'buffer_load_dword v{V_PD},' not in e]
    for e in errs[:20]: print('CHECK', e)
    return kernel_text(name, a, 512, 102, 256), LDS_BYTES
```

```python
from asmlib import *
from k1 import WS_QKV, WS_OH, WS_G, WS_FLAG, OH_TB

WS_PART = 0x2400000
RING = 4
CH = 16384
LDS_BYTES = 81920
NV = 128

def r4(b): return f'v[{b}:{b+3}]'
def r16(b): return f'v[{b}:{b+15}]'

def stamp_out(a, srd, s_w, base, idsub=0):
    a(f'''
    s_waitcnt vmcnt(0)
    s_memtime s[96:97]
    s_memrealtime s[98:99]
    s_waitcnt lgkmcnt(0)
    v_mov_b32 v4, s90
    v_mov_b32 v5, s94
    v_mov_b32 v6, s96
    v_mov_b32 v7, s92
    v_mov_b32 v8, s98
    v_mov_b32 v9, s88
    v_mov_b32 v10, 0
    s_sub_u32 s74, s2, {idsub}
    s_lshl_b32 s74, s74, 3
    s_add_u32 s74, s74, s{s_w}
    s_lshl_b32 s74, s74, 5
    s_add_u32 s74, s74, {base:#x}
    s_mov_b32 exec_lo, 1
    s_mov_b32 exec_hi, 0
    buffer_store_dwordx4 v[4:7], v10, {srd}, s74 offen
    buffer_store_dwordx2 v[8:9], v10, {srd}, s74 offen offset:16
    v_mov_b32 v12, s84
    v_mov_b32 v13, s82
    buffer_store_dwordx2 v[12:13], v10, {srd}, s74 offen offset:24
    ''')

def attention(a, name, stamp, force_slow, prio):
    V_L16, V_G, V_IDX = 1, 2, 4
    Q, ONES, L, O, CM = 16, 24, 28, 32, 48
    S = [64, 80]
    P, KF, VF = 96, 104, 112
    S_WS = 4
    S_W, S_HD, S_TB, S_KB, S_VB, S_LD, S_CNT, S_T = 8, 9, 10, 11, 12, 13, 14, 16
    a(f'''
    s_load_dwordx2 s[20:21], s[0:1], 80
    v_lshrrev_b32 v8, 6, v0
    v_and_b32 v0, 63, v0
    v_readfirstlane_b32 s{S_W}, v8
    s_and_b32 s{S_T}, s2, 7
    s_lshr_b32 s{S_T+1}, s2, 3
    s_lshr_b32 s{S_T+2}, s{S_T+1}, 3
    s_lshl_b32 s{S_HD}, s{S_T}, 2
    s_add_u32 s{S_HD}, s{S_HD}, s{S_T+2}
    s_and_b32 s{S_T+1}, s{S_T+1}, 7
    s_lshl_b32 s{S_TB}, s{S_T+1}, 3
    s_add_u32 s{S_TB}, s{S_TB}, s{S_W}
    v_lshlrev_b32 v{V_L16}, 4, v0
    ''')
    if prio: a(f's_setprio {prio}')
    if stamp: a('s_memtime s[90:91]\ns_memrealtime s[92:93]')
    a(f'''
    s_and_b32 s{S_T}, s{S_W}, 1
    s_lshr_b32 s{S_T+1}, s{S_W}, 1
    s_lshl_b32 s{S_KB}, s{S_HD}, 17
    s_lshl_b32 s{S_T+2}, s{S_T}, 16
    s_add_u32 s{S_KB}, s{S_KB}, s{S_T+2}
    s_lshl_b32 s{S_T+2}, s{S_T+1}, 10
    s_add_u32 s{S_KB}, s{S_KB}, s{S_T+2}
    s_add_u32 s{S_KB}, s{S_KB}, {WS_QKV + 32*131072}
    s_lshl_b32 s{S_LD}, s{S_W}, 10
    s_lshl_b32 s{S_VB}, s{S_HD}, 17
    s_add_u32 s{S_VB}, s{S_VB}, s{S_LD}
    s_add_u32 s{S_VB}, s{S_VB}, {WS_QKV + 64*131072}
    s_waitcnt lgkmcnt(0)
    s_mov_b32 s{S_WS}, s20
    s_mov_b32 s{S_WS+1}, s21
    s_mov_b32 s{S_WS+2}, 0x10000000
    s_mov_b32 s{S_WS+3}, 0x20000
    ''')
    srd = f's[{S_WS}:{S_WS+3}]'
    def dma(slot):
        return [[f's_add_u32 m0, s{S_LD}, {slot*CH}', f'buffer_load_dwordx4 v{V_L16}, {srd}, s{S_KB} offen lds', f's_add_u32 s{S_KB}, s{S_KB}, 4096'],
                [f's_add_u32 m0, s{S_LD}, {slot*CH + 8192}', f'buffer_load_dwordx4 v{V_L16}, {srd}, s{S_VB} offen lds', f's_add_u32 s{S_VB}, s{S_VB}, 8192']]
    for l in dma(0)[0]: a(l)
    a(f'''
    s_lshl_b32 s{S_T}, s{S_HD}, 17
    s_lshl_b32 s{S_T+1}, s{S_TB}, 10
    s_add_u32 s{S_T}, s{S_T}, s{S_T+1}
    s_add_u32 s{S_T+1}, s{S_T}, 65536
    buffer_load_dwordx4 {r4(Q)}, v{V_L16}, {srd}, s{S_T} offen
    buffer_load_dwordx4 {r4(Q+4)}, v{V_L16}, {srd}, s{S_T+1} offen
    v_and_b32 v3, 31, v0
    v_lshlrev_b32 v3, 2, v3
    s_lshl_b32 s{S_T+2}, s{S_TB}, 7
    s_add_u32 s{S_T+2}, s{S_T+2}, {WS_G:#x}
    ''')
    for l in dma(0)[1]: a(l)
    a(f'''
    v_bfe_u32 v8, v0, 4, 1
    v_and_b32 v9, 6, v0
    v_mov_b32 v10, 0x3f803f80
    v_cmp_eq_u32 vcc, 0, v9
    v_cndmask_b32 v{ONES}, 0, v10, vcc
    v_cndmask_b32 v{ONES+1}, 0, v10, vcc
    v_cmp_eq_u32 vcc, 4, v9
    v_cndmask_b32 v{ONES+2}, 0, v10, vcc
    v_cndmask_b32 v{ONES+3}, 0, v10, vcc
    v_and_b32 v9, 1, v0
    v_mul_u32_u24 v9, 0xaaaa, v9
    v_add_u32 v{V_IDX}, 0x4444, v9
    v_lshl_or_b32 v{V_IDX}, v{V_IDX}, 16, v{V_IDX}
    ''')
    for r in range(4): a(f'v_mov_b32 v{L+r}, 0')
    for r in range(16): a(f'v_mov_b32 v{O+r}, 0')
    for r in range(8): a(f'v_mov_b32 v{P+r}, 0')
    for r in range(8): a(f'v_mov_b32 v{VF+r}, 0')

    def off(blk): return ((blk >> 2) % RING) * CH + (blk & 3) * 2048
    def kread(blk, kk): return f'ds_read_b128 {r4(KF + 4*kk)}, v{V_L16} offset:{off(blk) + kk*1024}'
    def vread(blk, m): return f'ds_read_b128 {r4(VF + 4*m)}, v{V_L16} offset:{off(blk) + 8192 + m*1024}'
    def qk(blk, c):
        s = S[blk & 1]
        return [f'v_mfma_f32_32x32x16_bf16 {r16(s)}, {r4(KF)}, {r4(Q)}, {c}',
                f'v_mfma_f32_32x32x16_bf16 {r16(s)}, {r4(KF+4)}, {r4(Q+4)}, {r16(s)}']
    def rowmax(s, dst, tmp):
        a(f'v_max3_f32 v{dst}, v{s}, v{s+1}, v{s+2}')
        a(f'v_max3_f32 v{tmp}, v{s+3}, v{s+4}, v{s+5}')
        for j in range(6, 14, 4):
            a(f'v_max3_f32 v{dst}, v{dst}, v{s+j}, v{s+j+1}')
            a(f'v_max3_f32 v{tmp}, v{tmp}, v{s+j+2}, v{s+j+3}')
        a(f'v_max3_f32 v{dst}, v{dst}, v{s+14}, v{s+15}')
        a(f'v_max_f32 v{dst}, v{dst}, v{tmp}')
        a(f'v_mov_b32 v{tmp}, v{dst}')
        a(f'v_permlane32_swap_b32 v{dst}, v{tmp}')
        a(f'v_max_f32 v{dst}, v{dst}, v{tmp}')

    a('s_waitcnt vmcnt(0)\ns_barrier')
    a(kread(0, 0)); a(kread(0, 1))
    for it in dma(1):
        for l in it: a(l)
    a('s_waitcnt lgkmcnt(0)')
    for l in qk(0, '0'): a(l)
    a(kread(1, 0)); a(kread(1, 1))
    a(f'''
    buffer_load_dword v{V_G}, v3, {srd}, s{S_T+2} offen
    ''')
    for it in dma(2):
        for l in it: a(l)
    rowmax(S[0], 8, 9)
    for r in range(16): a(f'v_sub_f32 v{CM+r}, 0, v8')
    for r in range(16): a(f'v_sub_f32 v{S[0]+r}, v{S[0]+r}, v8')
    a(f's_mov_b32 s{S_CNT}, 4')
    a('s_waitcnt lgkmcnt(0)')
    if stamp: a('s_memtime s[88:89]\ns_waitcnt lgkmcnt(0)')

    summ = f'v_smfmac_f32_16x16x64_bf16 {r4(L)}, {r4(ONES)}, v[{P}:{P+7}], v{V_IDX}'
    def pv(vf, pp): return f'v_mfma_f32_32x32x16_bf16 {r16(O)}, {r4(vf)}, {r4(pp)}, {r16(O)}'
    def body(i, last_iter=False):
        s = S[i & 1]
        final = last_iter and i == 15
        nok = last_iter and i >= 14
        ex = lambda j: f'v_exp_f32 v{s+j}, v{s+j}'
        cv = lambda j: f'v_cvt_pk_bf16_f32 v{P+j}, v{s+2*j}, v{s+2*j+1}'
        q = qk(i + 1, r16(CM)) if not final else [None, None]
        sync = ((i + 2) & 3) == 0 and not nok
        prevk = 0 if (last_iter and i == 15) else 1
        d = [[], []]
        if sync:
            c = (i + 2) >> 2
            nxt = not (last_iter and c >= 2)
            a(f's_waitcnt vmcnt({2 if not (last_iter and c == 3) else 0}) lgkmcnt({1 + prevk})')
            a('s_barrier')
            if nxt: d = dma((c + 2) % RING)
        else:
            a(f's_waitcnt lgkmcnt({1 + prevk})')
        if q[0]: a(q[0])
        a(ex(0))
        if not nok: a(kread(i + 2, 0))
        a(ex(1))
        if d[0]: a(d[0][0])
        a(ex(2))
        for l in d[0][1:]: a(l)
        a(ex(3))
        a(pv(VF, P))
        a(ex(4)); a(vread(i, 0)); a(ex(5)); a(ex(6)); a(ex(7))
        a(summ)
        for j in range(0, 4): a(cv(j))
        a(f's_waitcnt lgkmcnt({1 + (0 if nok else 1)})')
        if q[1]: a(q[1])
        a(ex(8))
        if not nok: a(kread(i + 2, 1))
        a(ex(9))
        if d[1]: a(d[1][0])
        a(ex(10))
        for l in d[1][1:]: a(l)
        a(ex(11))
        a(pv(VF + 4, P + 4))
        a(ex(12)); a(vread(i, 1)); a(ex(13)); a(ex(14)); a(ex(15))
        for j in range(4, 8): a(cv(j))
    m0 = a.mark()
    a.label(f'{name}_loop')
    for i in range(16): body(i)
    a(f's_sub_u32 s{S_CNT}, s{S_CNT}, 1\ns_cmp_lg_u32 s{S_CNT}, 1\ns_cbranch_scc1 {name}_loop')
    m1 = a.mark()
    for i in range(16):
        body(i, last_iter=True)
    a('s_waitcnt lgkmcnt(0)')
    a(summ)
    for h in range(2): a(pv(VF + 4*h, P + 4*h))
    a(f'v_add_f32 v{L}, v{L}, v{L+1}')
    if stamp: a('s_memtime s[94:95]')
    a(f'v_mov_b32 v8, 0x207\nv_mov_b32 v9, 0x5f800000\nv_cmp_nlt_f32 s[22:23], v{L}, v9')
    for r in range(16):
        a(f'v_cmp_class_f32 vcc, v{O+r}, v8')
        a('s_or_b64 s[22:23], s[22:23], vcc')
    if force_slow: a(f's_branch {name}_slow')
    a(f's_cmp_lg_u64 s[22:23], 0\ns_cbranch_scc1 {name}_slow')
    a.label(f'{name}_fin')
    a(f'''
    v_rcp_f32 v8, v{L}
    s_mul_i32 s{S_T}, s{S_TB}, {OH_TB}
    s_lshl_b32 s{S_T+1}, s{S_HD}, 11
    s_add_u32 s{S_T}, s{S_T}, s{S_T+1}
    s_add_u32 s{S_T}, s{S_T}, {WS_OH:#x}
    v_mul_f32 v8, v8, v{V_G}
    ''')
    for r in range(16): a(f'v_mul_f32 v{O+r}, v{O+r}, v8')
    for j in range(8): a(f'v_cvt_pk_bf16_f32 v{S[0]+j}, v{O+2*j}, v{O+2*j+1}')
    for pr in range(2):
        b = S[0] + 4*pr
        a(f'v_permlane32_swap_b32 v{b}, v{b+2}\nv_permlane32_swap_b32 v{b+1}, v{b+3}')
        a(f'buffer_store_dwordx4 {r4(b)}, v{V_L16}, {srd}, s{S_T} offen offset:{pr*1024} sc1')
    a(f'''
    s_lshr_b32 s{S_T}, s{S_TB}, 3
    s_lshl_b32 s{S_T}, s{S_T}, 7
    s_add_u32 s{S_T}, s{S_T}, {WS_FLAG:#x}
    v_mov_b32 v8, 0
    v_mov_b32 v9, 1
    s_waitcnt vmcnt(0)
    s_barrier
    s_cmp_lg_u32 s{S_W}, 0
    s_cbranch_scc1 {name}_sig
    s_mov_b64 exec, 1
    buffer_atomic_add v9, v8, {srd}, s{S_T} offen sc1
    s_mov_b64 exec, -1
    ''')
    a.label(f'{name}_sig')
    if stamp: stamp_out(a, srd, S_W, 0x8100000)
    a('s_endpgm')
    m2 = a.mark()
    a.label(f'{name}_slow')
    M, AL, T2 = 8, 9, 10
    a(f'''
    s_lshl_b32 s{S_KB}, s{S_HD}, 17
    s_add_u32 s{S_VB}, s{S_KB}, {WS_QKV + 64*131072}
    s_add_u32 s{S_KB}, s{S_KB}, {WS_QKV + 32*131072}
    v_mov_b32 v{M}, 0xff800000
    s_mov_b32 s{S_CNT}, 64
    ''')
    for r in range(4): a(f'v_mov_b32 v{L+r}, 0')
    for r in range(16): a(f'v_mov_b32 v{O+r}, 0')
    s0 = a.mark()
    a.label(f'{name}_sloop')
    a(f'''
    s_add_u32 s{S_T}, s{S_KB}, 65536
    buffer_load_dwordx4 {r4(KF)}, v{V_L16}, {srd}, s{S_KB} offen
    buffer_load_dwordx4 {r4(KF+4)}, v{V_L16}, {srd}, s{S_T} offen
    buffer_load_dwordx4 {r4(VF)}, v{V_L16}, {srd}, s{S_VB} offen
    buffer_load_dwordx4 {r4(VF+4)}, v{V_L16}, {srd}, s{S_VB} offen offset:1024
    s_add_u32 s{S_KB}, s{S_KB}, 1024
    s_add_u32 s{S_VB}, s{S_VB}, 2048
    s_waitcnt vmcnt(0)
    ''')
    for l in qk(0, '0'): a(l)
    rowmax(S[0], AL, T2)
    a(f'''
    v_max_f32 v{T2}, v{AL}, v{M}
    v_sub_f32 v{AL}, v{M}, v{T2}
    v_exp_f32 v{AL}, v{AL}
    v_mov_b32 v{M}, v{T2}
    ''')
    for r in range(16): a(f'v_sub_f32 v{S[0]+r}, v{S[0]+r}, v{M}')
    for r in range(16): a(f'v_exp_f32 v{S[0]+r}, v{S[0]+r}')
    for r in range(4): a(f'v_mul_f32 v{L+r}, v{L+r}, v{AL}')
    for r in range(16): a(f'v_mul_f32 v{O+r}, v{O+r}, v{AL}')
    for j in range(8): a(f'v_cvt_pk_bf16_f32 v{P+j}, v{S[0]+2*j}, v{S[0]+2*j+1}')
    a(summ)
    for m in range(2): a(pv(VF + 4*m, P + 4*m))
    a(f's_nop 15\ns_sub_u32 s{S_CNT}, s{S_CNT}, 1\ns_cmp_lg_u32 s{S_CNT}, 0\ns_cbranch_scc1 {name}_sloop')
    s1 = a.mark()
    a(f'v_add_f32 v{L}, v{L}, v{L+1}\ns_branch {name}_fin')
    tr = a.ins[:m1] + a.ins[m0:m1] + a.ins[m1:m2]
    return check_seq(tr, name) + check_seq(a.ins[m2:s1] + a.ins[s0:s1], name + '_slow')

def down(a, name, stamp, prio, exp=''):
    R, SB = 5, 16384
    V_L16, V_WOFF, V_AB, V_AB2, V_WB, V_WB2, V_ARD, V_ARD2, V_WRD, V_WRD2, V_FL, V_Z, V_G = 1, 2, 3, 4, 5, 6, 7, 8, 9, 10, 11, 12, 13
    ACC = 20
    FR = [52, 76]
    PT = 100
    S_A, S_WD, S_WS, S_OUT = 4, 8, 12, 48
    S_W, S_WR, S_WQ, S_RB, S_CB, S_KH, S_AK, S_WK, S_LA, S_LW, S_SLOT, S_CNT, S_RS, S_T = 16, 17, 18, 19, 20, 21, 22, 23, 24, 25, 26, 27, 28, 30
    S_TB0, S_FA, S_FP, S_AO = 36, 37, 38, 39
    st = a.mark()
    a(f'''
    s_load_dwordx2 s[40:41], s[0:1], 16
    s_load_dwordx2 s[42:43], s[0:1], 48
    s_load_dwordx2 s[44:45], s[0:1], 64
    s_load_dwordx2 s[46:47], s[0:1], 80
    v_lshrrev_b32 v17, 6, v0
    v_and_b32 v0, 63, v0
    v_readfirstlane_b32 s{S_W}, v17
    s_and_b32 s{S_T}, s2, 7
    s_lshr_b32 s{S_T+1}, s2, 3
    s_and_b32 s{S_T+1}, s{S_T+1}, 31
    s_and_b32 s{S_KH}, s{S_T}, 1
    s_lshr_b32 s{S_T}, s{S_T}, 1
    s_lshl_b32 s{S_RB}, s{S_T}, 2
    s_lshr_b32 s{S_T+2}, s{S_T+1}, 3
    s_add_u32 s{S_RB}, s{S_RB}, s{S_T+2}
    s_and_b32 s{S_CB}, s{S_T+1}, 7
    s_lshr_b32 s{S_WR}, s{S_W}, 2
    s_and_b32 s{S_WQ}, s{S_W}, 3
    v_lshlrev_b32 v{V_L16}, 4, v0
    ''')
    if prio: a(f's_setprio {prio}')
    if stamp: a('s_memtime s[90:91]\ns_memrealtime s[92:93]')
    a(f'''
    s_lshl_b32 s{S_T}, s{S_RB}, 2
    s_lshr_b32 s{S_T+1}, s{S_W}, 1
    s_add_u32 s{S_T}, s{S_T}, s{S_T+1}
    s_mul_i32 s{S_AO}, s{S_T}, {OH_TB}
    s_add_u32 s{S_AO}, s{S_AO}, {WS_OH:#x}
    s_and_b32 s{S_T}, s{S_W}, 1
    s_lshl_b32 s{S_T}, s{S_T}, 10
    s_add_u32 s{S_AO}, s{S_AO}, s{S_T}
    s_mul_i32 s{S_T}, s{S_KH}, {1792*64}
    s_add_u32 s{S_AK}, s{S_AO}, s{S_T}
    s_add_u32 s{S_AK}, s{S_AK}, {1024*64}
    s_mul_i32 s{S_WK}, s{S_KH}, {1792*2048}
    s_lshl_b32 s{S_LA}, s{S_W}, 10
    s_add_u32 s{S_LW}, s{S_LA}, 8192
    v_lshrrev_b32 v17, 2, v0
    s_lshl_b32 s{S_T}, s{S_WR}, 4
    v_add_u32 v17, s{S_T}, v17
    v_lshlrev_b32 v17, 11, v17
    v_lshrrev_b32 v18, 5, v0
    v_lshlrev_b32 v18, 1, v18
    v_and_b32 v19, 3, v0
    v_xor_b32 v18, v18, v19
    v_lshlrev_b32 v18, 4, v18
    s_lshl_b32 s{S_T}, s{S_CB}, 8
    s_lshl_b32 s{S_T+1}, s{S_WQ}, 6
    s_add_u32 s{S_T}, s{S_T}, s{S_T+1}
    v_add3_u32 v{V_WOFF}, v17, v18, s{S_T}
    s_mov_b32 s{S_SLOT}, 0
    s_waitcnt lgkmcnt(0)
    s_mov_b32 s{S_A}, s46
    s_mov_b32 s{S_A+1}, s47
    s_mov_b32 s{S_A+2}, 0x10000000
    s_mov_b32 s{S_A+3}, 0x20000
    s_mov_b32 s{S_WD}, s42
    s_mov_b32 s{S_WD+1}, s43
    s_mov_b32 s{S_WD+2}, {3584*2048}
    s_mov_b32 s{S_WD+3}, 0x20000
    ''')
    sa = f's[{S_A}:{S_A+3}]'; wd = f's[{S_WD}:{S_WD+3}]'; ws = f's[{S_WS}:{S_WS+3}]'
    def dma():
        return [f's_add_u32 m0, s{S_LA}, s{S_SLOT}', f's_add_u32 s{S_T}, s{S_LW}, s{S_SLOT}',
                f'buffer_load_dwordx4 v{V_L16}, {sa}, s{S_AK} offen sc1 lds',
                f's_mov_b32 m0, s{S_T}', f's_add_u32 s{S_AK}, s{S_AK}, 2048',
                f'buffer_load_dwordx4 v{V_WOFF}, {wd}, s{S_WK} offen lds',
                f's_add_u32 s{S_WK}, s{S_WK}, {32*2048}',
                f's_add_u32 s{S_SLOT}, s{S_SLOT}, {SB}',
                f's_cmp_eq_u32 s{S_SLOT}, {R*SB}',
                f's_cselect_b32 s{S_SLOT}, 0, s{S_SLOT}']
    for s_ in range(2):
        for l in dma(): a(l)
    a(f'''
    s_mov_b32 s{S_WS}, s46
    s_mov_b32 s{S_WS+1}, s47
    s_mov_b32 s{S_WS+2}, 0x10000000
    s_mov_b32 s{S_WS+3}, 0x20000
    s_mov_b32 s{S_OUT}, s44
    s_mov_b32 s{S_OUT+1}, s45
    s_mov_b32 s{S_OUT+2}, {2048*2048}
    s_mov_b32 s{S_OUT+3}, 0x20000
    v_and_b32 v17, 15, v0
    v_lshrrev_b32 v18, 4, v0
    v_lshlrev_b32 v19, 9, v18
    v_lshl_add_u32 v19, v17, 4, v19
    s_lshl_b32 s{S_T}, s{S_WR}, 12
    s_lshl_b32 s{S_T+1}, s{S_KH}, 11
    s_add_u32 s{S_T}, s{S_T}, s{S_T+1}
    v_add_u32 v{V_AB}, s{S_T}, v19
    v_xor_b32 v{V_AB2}, 2048, v{V_AB}
    v_lshrrev_b32 v19, 5, v0
    v_lshlrev_b32 v19, 12, v19
    v_and_b32 v18, 1, v18
    v_lshl_add_u32 v19, v18, 9, v19
    v_lshl_add_u32 v19, v18, 5, v19
    v_lshrrev_b32 v18, 2, v17
    v_lshl_add_u32 v19, v18, 6, v19
    v_and_b32 v18, 3, v17
    v_lshl_add_u32 v19, v18, 3, v19
    s_lshl_b32 s{S_T}, s{S_WQ}, 10
    s_add_u32 s{S_T}, s{S_T}, 8192
    v_add_u32 v{V_WB}, s{S_T}, v19
    v_xor_b32 v{V_WB2}, 32, v{V_WB}
    s_mov_b32 s{S_RS}, {SB}
    s_mov_b32 s{S_CNT}, 35
    v_mov_b32 v{V_Z}, 0
    s_lshr_b32 s{S_FA}, s{S_RB}, 1
    s_lshl_b32 s{S_FA}, s{S_FA}, 7
    s_add_u32 s{S_FA}, s{S_FA}, {WS_FLAG:#x}
    s_lshl_b32 s{S_FP}, s2, 3
    s_add_u32 s{S_FP}, s{S_FP}, s{S_W}
    s_lshl_b32 s{S_FP}, s{S_FP}, 6
    s_add_u32 s{S_FP}, s{S_FP}, {WS_FLAG:#x}
    s_lshl_b32 s{S_TB0}, s{S_RB}, 2
    s_lshl_b32 s{S_T}, s{S_WR}, 1
    s_add_u32 s{S_TB0}, s{S_TB0}, s{S_T}
    s_add_u32 s{S_TB0}, s{S_TB0}, s{S_KH}
    s_lshl_b32 s{S_T+4}, s{S_TB0}, 7
    s_add_u32 s{S_T+4}, s{S_T+4}, {WS_G:#x}
    s_xor_b32 s{S_T+5}, s{S_T+4}, 128
    v_lshlrev_b32 v17, 2, v17
    ''')
    for r in range(ACC, ACC + 32): a(f'v_mov_b32 v{r}, 0')
    def reads(st_, va, va2, vw, vw2):
        f = FR[st_]
        W = [f'ds_read_b64_tr_b16 v[{f+16+4*p+2*h}:{f+16+4*p+2*h+1}], v{(vw, vw2)[p]} offset:{h*256}' for p in range(2) for h in range(2)]
        A = [f'ds_read_b128 {r4(f+4*t)}, v{(va, va2)[t>>1]} offset:{(t&1)*256}' for t in range(4)]
        return W[:2] + A + W[2:]
    def mfmas(st_):
        f = FR[st_]
        return [f'v_mfma_f32_16x16x32_bf16 {r4(ACC+8*t+4*p)}, {r4(f+16+4*p)}, {r4(f+4*t)}, {r4(ACC+8*t+4*p)}' for p in range(2) for t in range(4)]
    def stage(u, vm, ndma, extra=()):
        a(f'''
        v_add_u32 v{V_ARD}, s{S_RS}, v{V_AB}
        v_add_u32 v{V_ARD2}, s{S_RS}, v{V_AB2}
        v_add_u32 v{V_WRD}, s{S_RS}, v{V_WB}
        v_add_u32 v{V_WRD2}, s{S_RS}, v{V_WB2}
        s_add_u32 s{S_RS}, s{S_RS}, {SB}
        s_cmp_eq_u32 s{S_RS}, {R*SB}
        s_cselect_b32 s{S_RS}, 0, s{S_RS}
        s_waitcnt vmcnt({vm}) lgkmcnt(0)
        s_barrier
        ''')
        rd = reads(1 - u, V_ARD, V_ARD2, V_WRD, V_WRD2); mm = mfmas(u)
        side = []
        for k in range(ndma): side += dma()
        side += list(extra)
        for i in range(8):
            a(mm[i])
            if i < 4: a(rd[2*i]); a(rd[2*i+1])
            elif i < 7:
                n = (len(side) + 2) // 3
                for l in side[(i-4)*n:(i-3)*n]: a(l)
    a(f's_waitcnt vmcnt(2)\ns_barrier')
    for l in reads(0, V_AB, V_AB2, V_WB, V_WB2): a(l)
    for l in dma(): a(l)
    if stamp: a('s_memtime s[88:89]')
    stage(0, 2, 2)
    stage(1, 4, 2, [f'buffer_load_dword v{V_G+t}, v17, {ws}, s{S_T+4+(t>>1)} offen offset:{(t&1)*64}' for t in range(4)])
    m0 = a.mark()
    a.label(f'{name}_loop')
    stage(0, 2*(R-2), 1)
    a(f's_cmp_eq_u32 s{S_CNT}, 11\ns_cbranch_scc1 {name}_sw')
    a.label(f'{name}_b1')
    stage(1, 2*(R-2), 1)
    import re as _re
    mq = _re.search(r'q(\d+)', exp)
    if mq: a(f's_cmp_eq_u32 s{S_CNT}, {mq.group(1)}\ns_cbranch_scc1 {name}_pr')
    a(f'''
    s_cmp_eq_u32 s{S_CNT}, 14
    s_cbranch_scc1 {name}_fl
    s_cmp_eq_u32 s{S_CNT}, 9
    s_cbranch_scc1 {name}_sc
    ''')
    a.label(f'{name}_b2')
    a(f's_sub_u32 s{S_CNT}, s{S_CNT}, 1\ns_cmp_lg_u32 s{S_CNT}, 0\ns_cbranch_scc1 {name}_loop')
    m1 = a.mark()
    if stamp: a('s_memtime s[82:83]')
    a(f'''
    s_lshl_b32 s52, s{S_FP}, 5
    s_sub_u32 s52, s52, {(WS_FLAG + 256*8*64) * 32 % (1 << 32):#x}
    s_add_u32 s52, s52, {WS_PART:#x}
    s_xor_b32 s53, s52, {8*2048}
    s_xor_b32 s54, s{S_FP}, {8*64}
    v_mov_b32 v17, 1
    ''')
    for j in range(8): a(f'v_cvt_pk_bf16_f32 v{PT+j}, v{ACC+16+2*j}, v{ACC+16+2*j+1}')
    for h in range(2): a(f'buffer_store_dwordx4 {r4(PT+4*h)}, v{V_L16}, {ws}, s52 offen offset:{h*1024} sc1')
    a(f'''
    v_and_b32 v18, 15, v0
    v_lshrrev_b32 v19, 4, v0
    v_lshlrev_b32 v18, 11, v18
    v_and_b32 v{V_ARD}, 1, v19
    v_lshl_add_u32 v18, v{V_ARD}, 5, v18
    v_lshrrev_b32 v19, 1, v19
    v_lshl_add_u32 v18, v19, 4, v18
    s_lshl_b32 s55, s{S_TB0}, 16
    s_lshl_b32 s{S_T}, s{S_CB}, 8
    s_add_u32 s55, s55, s{S_T}
    s_lshl_b32 s{S_T}, s{S_WQ}, 6
    s_add_u32 s55, s55, s{S_T}
    s_add_u32 s56, s55, {16*2048}
    s_mov_b32 s57, 0xffff0000
    s_waitcnt vmcnt(0) lgkmcnt(0)
    s_mov_b64 exec, 1
    buffer_store_dword v17, v{V_Z}, {ws}, s{S_FP} offen sc1
    s_mov_b64 exec, -1
    ''')
    a.label(f'{name}_poll')
    a(f'''
    buffer_load_dword v{V_FL}, v{V_Z}, {ws}, s54 offen sc1
    s_waitcnt vmcnt(0)
    v_readfirstlane_b32 s{S_T}, v{V_FL}
    s_cmp_eq_u32 s{S_T}, 1
    s_cbranch_scc0 {name}_poll
    buffer_load_dwordx4 {r4(PT+8)}, v{V_L16}, {ws}, s53 offen sc1
    buffer_load_dwordx4 {r4(PT+12)}, v{V_L16}, {ws}, s53 offen offset:1024 sc1
    ''')
    for t in range(2):
        a(f's_waitcnt vmcnt({1-t})')
        for j in range(4):
            a(f'v_lshlrev_b32 v{FR[0]+2*j}, 16, v{PT+8+4*t+j}\nv_and_b32 v{FR[0]+2*j+1}, s57, v{PT+8+4*t+j}')
        for r in range(8): a(f'v_add_f32 v{ACC+8*t+r}, v{ACC+8*t+r}, v{FR[0]+r}')
        o = FR[1] + 4*t
        for j in range(4): a(f'v_cvt_pk_bf16_f32 v{o+j}, v{ACC+8*t+2*j}, v{ACC+8*t+2*j+1}')
        a(f'v_permlane16_swap_b32 v{o}, v{o+2}\nv_permlane16_swap_b32 v{o+1}, v{o+3}')
        a(f'buffer_store_dwordx4 {r4(o)}, v18, s[{S_OUT}:{S_OUT+3}], s{55+t} offen')
    if stamp: stamp_out(a, ws, S_W, 0x8300000, 256)
    a('s_endpgm')
    e0 = a.mark()
    a.label(f'{name}_pr')
    a(f's_setprio 0\ns_branch {name}_b2')
    e0b = a.mark()
    a.label(f'{name}_fl')
    a(f'buffer_load_dword v{V_FL}, v{V_Z}, {ws}, s{S_FA} offen sc1\ns_branch {name}_b2')
    e1 = a.mark()
    a.label(f'{name}_sw')
    if stamp: a('s_memtime s[94:95]')
    a(f'''
    s_lshl_b32 s{S_T}, s{S_KH}, 15
    s_add_u32 s{S_AK}, s{S_AO}, s{S_T}
    s_and_b32 s{S_T}, s{S_AK}, 0xfffff800
    s_add_u32 s{S_A+2}, s{S_T}, {512*64}
    s_mov_b32 s{S_WD}, s40
    s_mov_b32 s{S_WD+1}, s41
    s_lshl_b32 s{S_WK}, s{S_KH}, 20
    s_add_u32 s{S_WD+2}, s{S_WK}, {512*2048}
    s_cmp_lg_u32 s{S_W}, 0
    s_cbranch_scc1 {name}_b1
    ''')
    a.label(f'{name}_sw2')
    a(f'''
    v_readfirstlane_b32 s{S_T}, v{V_FL}
    s_cmp_ge_u32 s{S_T}, 32
    s_cbranch_scc1 {name}_b1
    s_sleep 3
    buffer_load_dword v{V_FL}, v{V_Z}, {ws}, s{S_FA} offen sc1
    s_waitcnt vmcnt(0)
    s_branch {name}_sw2
    ''')
    e2 = a.mark()
    a.label(f'{name}_sc')
    if stamp: a('s_memtime s[84:85]')
    a('s_nop 4')
    for t in range(4): a(f'v_sub_f32 v{V_G+t}, 1.0, v{V_G+t}')
    for t in range(4):
        for r in range(8): a(f'v_mul_f32 v{ACC+8*t+r}, v{ACC+8*t+r}, v{V_G+t}')
    a(f's_branch {name}_b2')
    e3 = a.mark()
    body = a.ins[m0:m1]
    ib1 = [i for i, x in enumerate(body) if x.text == f'{name}_b1:'][0]
    ib2 = [i for i, x in enumerate(body) if x.text == f'{name}_b2:'][0]
    tr = a.ins[st:m1] + body[:ib2] + a.ins[e0b:e1] + body[ib2:] + body + body + body[:ib1] + a.ins[e1:e2-4] + body[ib1:] + body + body[:ib2] + a.ins[e2:e3] + body[ib2:] + body + a.ins[m1:e0]
    return list(dict.fromkeys(check_seq(tr, name)))

def gen(name='k2_kernel', stamp=False, force_slow=False, prio_a=0, prio_g=0, only=None, exp=''):
    a = Asm()
    a(f'''
    s_cmp_ge_u32 s2, 512
    s_cbranch_scc1 {name}_end
    s_cmp_ge_u32 s2, 256
    s_cbranch_scc1 {name + ('_end' if only == 'a' else '_down')}
    ''')
    if only == 'g': a(f's_branch {name}_end')
    errs = attention(a, name, stamp, force_slow, prio_a)
    a.label(f'{name}_down')
    errs += down(a, name + '_d', stamp, prio_g, exp)
    a.label(f'{name}_end')
    a('s_endpgm')
    for e in errs[:20]: print('CHECK', e)
    return kernel_text(name, a, NV, 102, NV), LDS_BYTES
```

```python
from asmlib import *
import struct

WS_QKV = 0
WS_OH = 0x1000000
WS_G = 0x2200000
WS_FLAG = 0x2300000
WS_PART = 0x2400000
OH_TB = 4608 * 64
LOG2E = 1.4426950408889634
def f2u(f): return struct.unpack('<I', struct.pack('<f', f))[0]
QSCALE = f2u(32 ** -0.5 * LOG2E)
NLOG2E = f2u(-LOG2E)

XBUF = [0, 32768]
WBUF = [65536, 65536 + 40960]
LDS_BYTES = 65536 + 81920

def acc(half, t, tb):
    idx = (t * 2 + half) * 8 + tb
    if idx < 52: return ('v', 48 + 4 * idx)
    return ('a', 4 * (idx - 52))
def rng(r, n=4): return f'{r[0]}[{r[1]}:{r[1]+n-1}]'
def xfrag(st, tb): return ('a', 112 + 72 * st + 4 * tb)
def wfrag(st, half, t): return ('a', 112 + 72 * st + 32 + 4 * (half * 5 + t))

V_XOFF = 1
V_WOFF = 9
V_XRD = 12
V_WRD = 14
V_PF = 16
V_PD = 17
S_X, S_WA, S_WB, S_WC4, S_WS, S_PF = 4, 8, 12, 16, 20, 24
S_XK, S_WK, S_WI = 28, 29, 32
S_LX, S_LW, S_CNT, S_W, S_WR, S_WC, S_RB, S_CT, S_PK, S_PI = 35, 36, 37, 38, 39, 40, 41, 42, 43, 44
S_F0, S_N3, S_N4, S_ODD, S_HS = 45, 46, 47, 48, 49
S_PS, S_PM = 3, 57
S_T = 50
import os
PD = int(os.environ.get("PD", "1"))

def gen(name='k1_kernel', stamp=False, sched=None, store_mod='', code_from=None, code_to=None, pf=True):
    a = Asm()
    a(f'''
    s_cmp_ge_u32 s2, 256
    s_cbranch_scc1 {name}_end
    s_load_dwordx4 s[60:63], s[0:1], 0
    s_load_dwordx8 s[64:71], s[0:1], 32
    s_load_dwordx2 s[72:73], s[0:1], 80
    s_load_dwordx2 s[74:75], s[0:1], 16
    v_lshrrev_b32 v16, 6, v0
    v_and_b32 v0, 63, v0
    v_readfirstlane_b32 s{S_W}, v16
    s_and_b32 s{S_T}, s2, 7
    s_lshr_b32 s{S_T+1}, s2, 3
    s_and_b32 s{S_RB}, s{S_T+1}, 7
    s_lshr_b32 s{S_T+1}, s{S_T+1}, 3
    s_lshl_b32 s{S_CT}, s{S_T}, 2
    s_add_u32 s{S_CT}, s{S_CT}, s{S_T+1}
    s_lshr_b32 s{S_WR}, s{S_W}, 1
    s_and_b32 s{S_WC}, s{S_W}, 1
    ''')
    if stamp: a('s_memtime s[90:91]\ns_memrealtime s[92:93]')
    a(f'''
    s_and_b32 s{S_ODD}, s{S_CT}, 1
    s_lshr_b32 s{S_T}, s{S_CT}, 1
    s_mul_i32 s{S_F0}, s{S_T}, 224
    s_lshl_b32 s{S_T+1}, s{S_ODD}, 7
    s_add_u32 s{S_F0}, s{S_F0}, s{S_T+1}
    s_mul_i32 s{S_N4}, s{S_T}, 192
    s_add_u32 s{S_N3}, s{S_N4}, 64
    s_add_u32 s{S_N4}, s{S_N4}, s{S_T+1}
    s_movk_i32 s{S_T+2}, 7168
    s_cmp_eq_u32 s{S_ODD}, 1
    s_cselect_b32 s{S_T+3}, 6144, s{S_T+2}
    s_lshl_b32 s{S_T+4}, s{S_WC}, 5
    s_add_u32 s{S_T+5}, s{S_N3}, s{S_T+4}
    s_add_u32 s{S_T+6}, s{S_F0}, 96
    s_cmp_eq_u32 s{S_ODD}, 1
    s_cselect_b32 s{S_T+5}, s{S_T+5}, s{S_T+6}
    s_add_u32 s{S_T+6}, s{S_N4}, s{S_T+4}
    s_mov_b32 s{S_WI}, {7168*32}
    s_lshl_b32 s{S_WI+1}, s{S_T+3}, 5
    s_mov_b32 s{S_WI+2}, {6144*32}
    s_and_b32 s{S_HS}, s2, 7
    s_lshl_b32 s{S_XK}, s{S_HS}, 8
    s_lshl_b32 s{S_HS}, s{S_HS}, 2
    s_mul_i32 s{S_WK}, s{S_HS}, s{S_WI}
    s_mul_i32 s{S_WK+1}, s{S_HS}, s{S_WI+1}
    s_mul_i32 s{S_WK+2}, s{S_HS}, s{S_WI+2}
    s_lshl_b32 s{S_LX}, s{S_W}, 13
    s_mul_i32 s{S_LW}, s{S_WR}, 10240
    s_mul_i32 s{S_T}, s{S_WC}, 5120
    s_add_u32 s{S_LW}, s{S_LW}, s{S_T}
    v_lshrrev_b32 v17, 2, v0
    s_lshl_b32 s{S_T}, s{S_WR}, 4
    v_add_u32 v17, s{S_T}, v17
    v_lshrrev_b32 v18, 5, v0
    v_lshlrev_b32 v18, 1, v18
    v_and_b32 v19, 3, v0
    v_xor_b32 v18, v18, v19
    v_lshlrev_b32 v18, 4, v18
    v_mul_u32_u24 v{V_WOFF}, 7168, v17
    v_mul_lo_u32 v{V_WOFF+1}, v17, s{S_T+3}
    v_mul_u32_u24 v{V_WOFF+2}, 6144, v17
    s_lshl_b32 s{S_T}, s{S_F0}, 1
    s_lshl_b32 s{S_T+5}, s{S_T+5}, 1
    s_lshl_b32 s{S_T+6}, s{S_T+6}, 1
    v_add3_u32 v{V_WOFF}, v{V_WOFF}, v18, s{S_T}
    v_add3_u32 v{V_WOFF+1}, v{V_WOFF+1}, v18, s{S_T+5}
    v_add3_u32 v{V_WOFF+2}, v{V_WOFF+2}, v18, s{S_T+6}
    v_lshrrev_b32 v17, 3, v0
    s_lshl_b32 s{S_T}, s{S_RB}, 8
    s_lshl_b32 s{S_T+1}, s{S_W}, 6
    s_add_u32 s{S_T}, s{S_T}, s{S_T+1}
    v_add_u32 v17, s{S_T}, v17
    v_lshlrev_b32 v17, 11, v17
    v_and_b32 v18, 7, v0
    v_lshrrev_b32 v19, 4, v0
    v_xor_b32 v18, v18, v19
    v_lshlrev_b32 v18, 4, v18
    v_add_u32 v17, v17, v18
    v_xor_b32 v18, 64, v17
    ''')
    for i in range(8):
        a(f'v_add_u32 v{V_XOFF+i}, {i*16384}, v{17 if i % 2 == 0 else 18}')
    a(f'''
    v_lshlrev_b32 v18, 4, v0
    s_lshl_b32 s{S_T}, s2, 3
    s_lshl_b32 s{S_T+1}, s{S_W}, 1
    s_add_u32 s58, s{S_T}, s{S_T+1}
    s_lshl_b32 s59, s58, 11
    s_waitcnt lgkmcnt(0)
    {'s_memtime s[78:79]' if stamp else ''}
    s_mov_b32 s{S_X}, s60
    s_mov_b32 s{S_X+1}, s61
    s_mov_b32 s{S_X+2}, {2048*1024*2}
    s_mov_b32 s{S_X+3}, 0x20000
    s_cmp_eq_u32 s{S_WC}, 0
    s_cselect_b32 s{S_WA}, s64, s66
    s_cselect_b32 s{S_WA+1}, s65, s67
    s_mov_b32 s{S_WA+2}, {7168*1024}
    s_mov_b32 s{S_WA+3}, 0x20000
    s_cmp_eq_u32 s{S_ODD}, 1
    s_cselect_b32 s{S_WB}, s62, s{S_WA}
    s_cselect_b32 s{S_WB+1}, s63, s{S_WA+1}
    s_lshl_b32 s{S_WB+2}, s{S_T+3}, 10
    s_mov_b32 s{S_WB+3}, 0x20000
    s_mov_b32 s{S_WC4}, s62
    s_mov_b32 s{S_WC4+1}, s63
    s_mov_b32 s{S_WC4+2}, {6144*1024}
    s_mov_b32 s{S_WC4+3}, 0x20000
    ''')
    def dma_x(buf):
        L = []
        for i in range(8):
            L.append([f's_add_u32 m0, s{S_LX}, {XBUF[buf] + i*1024}',
                      f'buffer_load_dwordx4 v{V_XOFF+i}, s[{S_X}:{S_X+3}], s{S_XK} offen lds'])
        L[-1] += [f's_add_u32 s{S_XK}, s{S_XK}, 128', f's_and_b32 s{S_XK}, s{S_XK}, 2047']
        return L
    def dma_w(buf, ks):
        L = []
        for q in range(5):
            g = max(0, q - 2)
            io = q * 64 if q < 3 else 0
            srd = (S_WA, S_WB, S_WC4)[g]
            L.append([f's_add_u32 m0, s{S_LW}, {WBUF[buf] + ks*20480 + q*1024 - io}',
                      f'buffer_load_dwordx4 v{V_WOFF+g}, s[{srd}:{srd+3}], s{S_WK+g} offen offset:{io} lds'])
            if q == 0: L[-1].append(f's_add_u32 s{S_HS}, s{S_HS}, 1')
            if q == 1: L[-1].append(f's_and_b32 s{S_HS}, s{S_HS}, 31')
            if q >= 2: L[-1].append(f's_mul_i32 s{S_WK+g}, s{S_HS}, s{S_WI+g}')
        return L
    def flat(L): return [x for it in L for x in it]
    for l in flat(dma_w(0, 0)) + flat(dma_x(0)): a(l)
    a(f'''
    s_mov_b32 s80, s70
    s_mov_b32 s81, s71
    s_mov_b32 s82, 2048
    s_mov_b32 s83, 0x20000
    s_mov_b32 s{S_WS}, s72
    s_mov_b32 s{S_WS+1}, s73
    s_mov_b32 s{S_WS+2}, 0x10000000
    s_mov_b32 s{S_WS+3}, 0x20000
    ''')
    gl = [[f'buffer_load_dwordx4 v[28:31], v18, s[{S_X}:{S_X+3}], s59 offen'],
          [f'buffer_load_dwordx4 v[32:35], v18, s[{S_X}:{S_X+3}], s59 offen offset:1024'],
          [f'buffer_load_dwordx4 v[36:39], v18, s[{S_X}:{S_X+3}], s59 offen offset:2048'],
          [f'buffer_load_dwordx4 v[40:43], v18, s[{S_X}:{S_X+3}], s59 offen offset:3072'],
          ['buffer_load_dwordx4 v[20:23], v18, s[80:83], 0 offen'],
          ['buffer_load_dwordx4 v[24:27], v18, s[80:83], 0 offen offset:1024']]
    pf_setup = f'''
    s_cmp_eq_u32 s{S_W}, 0
    s_cselect_b32 s{S_PF}, s62, s64
    s_cselect_b32 s{S_PF+1}, s63, s65
    s_cselect_b32 s{S_T}, 24, 28
    s_cmp_eq_u32 s{S_W}, 2
    s_cselect_b32 s{S_PF}, s66, s{S_PF}
    s_cselect_b32 s{S_PF+1}, s67, s{S_PF+1}
    s_lshl_b32 s{S_PF+2}, s{S_T}, 18
    s_lshl_b32 s{S_PI}, s{S_T}, 14
    s_mov_b32 s{S_PF+3}, 0x20000
    s_and_b32 s{S_T+1}, s2, 7
    s_lshl_b32 s{S_PS}, s{S_T+1}, 1
    s_add_u32 s{S_PS}, s{S_PS}, 1
    s_lshl_b32 s{S_T+2}, s{S_T+1}, 5
    s_lshr_b32 s{S_T+4}, s2, 3
    s_lshl_b32 s{S_T+5}, s{S_T+4}, 9
    s_add_u32 s{S_T+2}, s{S_T+2}, s{S_T+5}
    s_lshl_b32 s{S_T+5}, s{S_T+4}, 6
    s_cmp_eq_u32 s{S_W}, 3
    s_cselect_b32 s{S_PF}, s60, s{S_PF}
    s_cselect_b32 s{S_PF+1}, s61, s{S_PF+1}
    s_cselect_b32 s{S_PF+2}, s{S_X+2}, s{S_PF+2}
    s_cselect_b32 s{S_T}, 0x800, s{S_T}
    s_cselect_b32 s{S_PI}, 0x80, s{S_PI}
    s_cselect_b32 s{S_T+2}, s{S_T+5}, s{S_T+2}
    s_cselect_b32 s{S_T+4}, 5, 8
    s_mul_i32 s{S_PK}, s{S_PS}, s{S_PI}
    v_lshrrev_b32 v19, 5, v0
    v_lshlrev_b32 v19, s{S_T+4}, v19
    v_and_b32 v{V_PF}, 31, v0
    v_add3_u32 v{V_PF}, v{V_PF}, v19, s{S_T+2}
    v_mul_lo_u32 v{V_PF}, v{V_PF}, s{S_T}
    '''
    pf_switch = f'''
    s_lshl_b32 s{S_T+5}, s2, 6
    v_add_u32 v19, s{S_T+5}, v0
    v_lshlrev_b32 v19, 5, v19
    s_cmp_eq_u32 s{S_W}, 3
    s_cselect_b32 s{S_PF}, s68, s{S_PF}
    s_cselect_b32 s{S_PF+1}, s69, s{S_PF+1}
    s_cselect_b32 s{S_PF+2}, s{S_WA+2}, s{S_PF+2}
    s_cselect_b32 s{S_PI}, 0x80000, s{S_PI}
    s_cselect_b32 s{S_PS}, 0, s{S_PS}
    s_cselect_b32 s{S_PK}, 0, s{S_PK}
    s_cselect_b64 vcc, -1, 0
    v_cndmask_b32 v{V_PF}, v{V_PF}, v19, vcc
    '''
    pfi = [f'buffer_load_dword v{V_PD}, v{V_PF}, s[{S_PF}:{S_PF+3}], s{S_PK} offen', f's_add_u32 s{S_PS}, s{S_PS}, 1', f's_and_b32 s{S_PS}, s{S_PS}, 15',
           f's_mul_i32 s{S_PK}, s{S_PS}, s{S_PI}']
    a(pf_setup)
    for l in flat(dma_w(0, 1)): a(l)
    for k in range(PD):
        for l in pfi: a(l)
    a(pf_switch)
    NP = 1 if pf else 0
    if stamp: a('s_memtime s[84:85]')
    a(f'''
    v_and_b32 v44, 15, v0
    v_lshrrev_b32 v46, 4, v0
    v_lshrrev_b32 v19, 1, v44
    v_xor_b32 v19, v19, v46
    v_lshlrev_b32 v19, 4, v19
    v_lshl_add_u32 v19, v44, 7, v19
    s_lshl_b32 s{S_T}, s{S_WR}, 14
    v_add_u32 v{V_XRD}, s{S_T}, v19
    v_xor_b32 v{V_XRD+1}, 64, v{V_XRD}
    v_lshrrev_b32 v19, 5, v0
    v_mul_u32_u24 v19, 10240, v19
    v_and_b32 v45, 1, v46
    v_lshl_add_u32 v19, v45, 9, v19
    v_xor_b32 v45, s{S_WC}, v45
    v_lshl_add_u32 v19, v45, 5, v19
    v_lshrrev_b32 v45, 2, v44
    v_lshl_add_u32 v19, v45, 6, v19
    v_and_b32 v45, 3, v44
    v_lshl_add_u32 v19, v45, 3, v19
    v_add_u32 v{V_WRD}, {WBUF[0]}, v19
    v_add_u32 v{V_WRD+1}, {WBUF[1]}, v19
    ''')
    zero = [f'v_mov_b32 v{r}, 0' for r in range(48, 256)] + [f'v_accvgpr_write_b32 a{r}, 0' for r in range(112)]
    if stamp: a('s_memtime s[86:87]')
    def reads(buf, ks, st, order='w'):
        xs = [f'ds_read_b128 {rng(xfrag(st, tb))}, v{V_XRD+ks} offset:{XBUF[buf] + tb*2048}' for tb in range(8)]
        ws = []
        for t in range(5):
            for half in range(2):
                r = wfrag(st, half, t)
                for h in range(2):
                    ws.append(f'ds_read_b64_tr_b16 {r[0]}[{r[1]+2*h}:{r[1]+2*h+1}], v{V_WRD+buf} offset:{ks*20480 + half*5120 + t*1024 + h*256}')
        return ws[:2] + xs + ws[2:]
    def mf(st, half, t, tb):
        c = rng(acc(half, t, tb))
        return f'v_mfma_f32_16x16x32_bf16 {c}, {rng(wfrag(st, half, t))}, {rng(xfrag(st, tb))}, {c}'
    def mfmas(st):
        o = os.environ.get('ORD', '0')
        if o == '1': return [mf(st, half, t, tb) for tb in range(8) for t in range(5) for half in range(2)]
        if o == '2': return [mf(st, (i + tb) % 2, ((i + tb) % 10) // 2, tb) for i in range(10) for tb in range(8)]
        if o == '3': return [mf(st, half, t, tb if (2*t+half) % 2 == 0 else 7 - tb) for t in range(5) for half in range(2) for tb in range(8)]
        return [mf(st, half, t, tb) for t in range(5) for half in range(2) for tb in range(8)]
    gate = ['v_mov_b32 v44, 0', 'v_mov_b32 v45, 0']
    for j in range(8):
        gate += [f'v_dot2_f32_bf16 v44, v{28+j}, v{20+j}, v44', f'v_dot2_f32_bf16 v45, v{36+j}, v{20+j}, v45']
    for d in ('quad_perm:[1,0,3,2] row_mask:0xf', 'quad_perm:[2,3,0,1] row_mask:0xf', 'row_half_mirror row_mask:0xf', 'row_mirror row_mask:0xf',
              'row_bcast:15 row_mask:0xa', 'row_bcast:31 row_mask:0xc'):
        gate += [f'v_add_f32_dpp v44, v44, v44 {d} bank_mask:0xf', f'v_add_f32_dpp v45, v45, v45 {d} bank_mask:0xf']
    gate += [f'v_mul_f32 v44, {NLOG2E:#x}, v44', f'v_mul_f32 v45, {NLOG2E:#x}, v45', 'v_exp_f32 v44, v44', 'v_exp_f32 v45, v45',
             'v_add_f32 v44, 1.0, v44', 'v_add_f32 v45, 1.0, v45', 'v_rcp_f32 v46, v44', 'v_rcp_f32 v47, v45',
             'v_mov_b32 v20, 0', 'v_mov_b32 v21, 0', 'v_mov_b32 v22, 0', 'v_mov_b32 v23, 0', f's_lshl_b32 s{S_PM}, s58, 11', f's_add_u32 s{S_PM}, s{S_PM}, {WS_PART:#x}']
    a(f's_waitcnt vmcnt({5+PD})\ns_barrier')
    for l in reads(0, 0, 0): a(l)
    a(f's_mov_b32 s{S_CNT}, 6')
    if stamp == 2: a('s_mov_b32 s101, 0\nv_mov_b32 v19, 0')
    if stamp: a('s_memtime s[88:89]')
    def step(st, wait, rd, dm, barrier=True, sc=None, valu=(), first=False):
        a(wait)
        if barrier: a('s_barrier')
        if stamp == 2:
            a('s_mov_b32 m0, s101\ns_nop 0\nv_writelane_b32 v19, s86, m0\ns_add_u32 s101, s101, 1\ns_memtime s[86:87]')
        body = mfmas(st)
        if first: body = [m.rsplit(',', 1)[0] + ', 0' for m in body]
        rs, re_, ds, de = sc if sc else sched if sched else (1, 57, 2, 74)
        slots = {}
        for k, it in enumerate(valu):
            slots.setdefault(2 + k * 76 // len(valu), []).append([it])
        for k, it in enumerate(rd):
            slots.setdefault(rs + k * (re_ - rs) // max(len(rd), 1), []).append([it])
        for k, it in enumerate(dm):
            slots.setdefault(ds + k * (de - ds) // max(len(dm), 1), []).append(it)
        for idx, m in enumerate(body):
            pre = [it for it in slots.get(idx, []) if it[0].startswith('s_add_u32 m0')]
            for it in pre: a(it[0])
            a(m)
            for it in slots.get(idx, []):
                for l in (it[1:] if it in pre else it): a(l)
    P1 = [pfi] if pf else []
    ZF = [[f'buffer_store_dwordx4 v[20:23], v18, s[{S_WS}:{S_WS+3}], s{S_PM} offen offset:{k*1024} sc1'] for k in range(4)]
    step(0, f's_waitcnt vmcnt({PD}) lgkmcnt(0)', reads(0, 1, 1), dma_w(1, 0) + dma_x(1) + dma_w(1, 1) + dma_w(0, 0) + P1, sc=(1, 57, 0, 72), first=True)
    step(1, 's_waitcnt vmcnt(11) lgkmcnt(0)', reads(1, 0, 0), dma_x(0) + gl + P1)
    step(0, f's_waitcnt vmcnt(21) lgkmcnt(0)', reads(1, 1, 1), dma_w(0, 1) + dma_w(1, 0) + P1)
    step(1, f's_waitcnt vmcnt(12) lgkmcnt(0)', reads(0, 0, 0), dma_x(1), valu=gate)
    m0 = a.mark()
    a.label(f'{name}_loop')
    for p in range(2):
        step(0, f's_waitcnt vmcnt({13+NP}) lgkmcnt(0)', reads(p, 1, 1), dma_w(1 - p, 1) + dma_w(p, 0) + P1)
        step(1, f's_waitcnt vmcnt({10+NP}) lgkmcnt(0)', reads(1 - p, 0, 0), dma_x(p))
    a(f's_sub_u32 s{S_CNT}, s{S_CNT}, 1\ns_cmp_lg_u32 s{S_CNT}, 0\ns_cbranch_scc1 {name}_loop')
    m1 = a.mark()
    extra = [[f's_lshl_b32 s59, s58, 2', f's_add_u32 s59, s59, {WS_G:#x}', 'v_mov_b32 v18, 0', 's_mov_b32 exec_lo, 0', 's_mov_b32 exec_hi, 0x80000000',
              f'buffer_store_dwordx2 v[46:47], v18, s[{S_WS}:{S_WS+3}], s59 offen',
              f's_lshl_b32 s59, s58, 7', f's_add_u32 s59, s59, {WS_FLAG:#x}', 's_mov_b64 exec, 15', 'v_lshlrev_b32 v19, 6, v0',
              f'buffer_store_dword v18, v19, s[{S_WS}:{S_WS+3}], s59 offen', 's_mov_b64 exec, -1']]
    extra.append(['s_mov_b32 s80, s74', 's_mov_b32 s81, s75', f's_mov_b32 s82, {1024*2048}', 's_lshl_b32 s59, s58, 10', 'v_lshlrev_b32 v18, 5, v0',
                  'buffer_load_dword v6, v18, s[80:83], s59 offen'])
    NE = 3
    if code_from:
        extra.append([f's_getpc_b64 s[{S_PF}:{S_PF+1}]', f'{name}_pc:',
                      f's_mov_b32 s{S_PF+2}, {code_to}-{name}_pc', f's_lshr_b32 s{S_T}, s2, 3', f's_lshl_b32 s{S_T}, s{S_T}, 2', f's_add_u32 s{S_T}, s{S_T}, s{S_W}',
                      f's_lshl_b32 s{S_T}, s{S_T}, 9', f'v_lshlrev_b32 v{V_PF}, 3, v0',
                      f'buffer_load_dword v5, v{V_PF}, s[{S_PF}:{S_PF+3}], s{S_T} offen'])
        NE = 4
    NE += 4
    step(0, f's_waitcnt vmcnt({13+NP}) lgkmcnt(0)', reads(0, 1, 1), dma_w(1, 1) + ZF + extra)
    step(1, f's_waitcnt vmcnt({5+NE}) lgkmcnt(0)', reads(1, 0, 0), [])
    if stamp: a('s_memtime s[94:95]')

    if stamp == 2:
        a(f'''
        s_waitcnt lgkmcnt(0)
        s_mov_b32 m0, s101
        s_nop 0
        v_writelane_b32 v19, s86, m0
        s_lshl_b32 s74, s2, 2
        s_add_u32 s74, s74, s{S_W}
        s_lshl_b32 s74, s74, 8
        s_add_u32 s74, s74, 0x8400000
        v_lshlrev_b32 v18, 2, v0
        buffer_store_dword v19, v18, s[{S_WS}:{S_WS+3}], s74 offen
        s_waitcnt vmcnt(0)
        ''')
    a(f'''
    v_lshlrev_b32 v1, 4, v0
    s_mov_b32 s70, {NLOG2E:#x}
    s_mov_b32 s71, {NLOG2E:#x}
    s_lshl_b32 s{S_T}, s{S_RB}, 3
    s_lshl_b32 s{S_T+1}, s{S_WR}, 2
    s_add_u32 s{S_T}, s{S_T}, s{S_T+1}
    s_mul_i32 s72, s{S_T}, {OH_TB}
    s_lshl_b32 s{S_T+1}, s{S_F0}, 6
    s_add_u32 s72, s72, s{S_T+1}
    s_lshl_b32 s{S_T+1}, s{S_WC}, 10
    s_add_u32 s72, s72, s{S_T+1}
    s_add_u32 s72, s72, {WS_OH + 1024*64}
    s_lshl_b32 s73, s{S_T}, 10
    s_lshl_b32 s{S_T+1}, s{S_WC}, 16
    s_add_u32 s73, s73, s{S_T+1}
    s_lshl_b32 s69, s{S_T}, 11
    s_lshl_b32 s{S_T+1}, s{S_WC}, 8
    s_add_u32 s69, s69, s{S_T+1}
    v_and_b32 v18, 15, v0
    v_lshrrev_b32 v19, 4, v0
    v_lshlrev_b32 v2, 4, v18
    v_lshl_add_u32 v2, v19, 9, v2
    v_lshlrev_b32 v3, 5, v18
    v_lshl_add_u32 v3, v19, 3, v3
    v_add_u32 v3, s{S_LX}, v3
    v_lshrrev_b32 v4, 5, v0
    v_lshlrev_b32 v4, 9, v4
    v_and_b32 v19, 1, v19
    v_lshl_add_u32 v4, v19, 7, v4
    v_lshrrev_b32 v19, 2, v18
    v_lshl_add_u32 v4, v19, 5, v4
    v_and_b32 v19, 3, v18
    v_lshl_add_u32 v4, v19, 3, v4
    v_add_u32 v4, s{S_LX}, v4
    ''')
    ws = f's[{S_WS}:{S_WS+3}]'
    def M(t): return [mf(st, half, t, tb) for st in range(2) for half in range(2) for tb in range(8)]
    def getv(L, r, tmp):
        if r[0] == 'v': return r[1]
        for j in range(4): L.append(f'v_accvgpr_read_b32 v{tmp+j}, a{r[1]+j}')
        return tmp
    def epi_ffn(t):
        L = []
        for tbp in range(4):
            G = [getv(L, acc(0, t, 2*tbp + i), 16 + 4*i) for i in range(2)]
            U = [getv(L, acc(1, t, 2*tbp + i), 48 + 4*i) for i in range(2)]
            E = [24 + 12*(tbp % 2) + 4*i for i in range(2)]
            O = 32 + 12*(tbp % 2)
            for i in range(2):
                for j in (0, 2): L.append(f'v_pk_mul_f32 v[{E[i]+j}:{E[i]+j+1}], v[{G[i]+j}:{G[i]+j+1}], s[70:71]')
            for i in range(2):
                for j in range(4): L += (['@M'] if i == 0 else []) + [f'v_exp_f32 v{E[i]+j}, v{E[i]+j}']
            for i in range(2):
                for j in (0, 2): L.append(f'v_pk_mul_f32 v[{U[i]+j}:{U[i]+j+1}], v[{G[i]+j}:{G[i]+j+1}], v[{U[i]+j}:{U[i]+j+1}]')
            for i in range(2):
                for j in (0, 2): L.append(f'v_pk_add_f32 v[{E[i]+j}:{E[i]+j+1}], v[{E[i]+j}:{E[i]+j+1}], 1.0 op_sel_hi:[1,0]')
            for i in range(2):
                for j in range(4): L += (['@M'] if i == 0 else []) + [f'v_rcp_f32 v{E[i]+j}, v{E[i]+j}']
            L.append(f's_add_u32 s74, s72, {t*2048 + tbp*OH_TB}')
            for i in range(2):
                for j in (0, 2): L.append(f'v_pk_mul_f32 v[{U[i]+j}:{U[i]+j+1}], v[{U[i]+j}:{U[i]+j+1}], v[{E[i]+j}:{E[i]+j+1}]')
            for i in range(2):
                for j in range(2): L.append(f'v_cvt_pk_bf16_f32 v{O+2*i+j}, v{U[i]+2*j}, v{U[i]+2*j+1}')
            L += [f'v_permlane16_swap_b32 v{O}, v{O+2}', f'v_permlane16_swap_b32 v{O+1}, v{O+3}',
                  f'buffer_store_dwordx4 v[{O}:{O+3}], v1, {ws}, s74 offen {store_mod}']
        return L
    def epi_qk(t, scol, packed=True):
        L = [f's_cmp_lt_u32 s{scol}, 1024', f's_cselect_b32 s76, {QSCALE:#x}, 1.0', 's_mov_b32 s77, s76',
             f's_lshl_b32 s75, s{scol}, 12', 's_add_u32 s75, s75, s73']
        for half in range(2):
            for tbp in range(4):
                X = [getv(L, acc(half, t, 2*tbp + i), 48 + 4*i + 8*(tbp % 2)) for i in range(2)]
                O = 24 + 4*(tbp % 4)
                for i in range(2):
                    if packed:
                        for j in (0, 2): L.append(f'v_pk_mul_f32 v[{X[i]+j}:{X[i]+j+1}], v[{X[i]+j}:{X[i]+j+1}], s[76:77]')
                    else:
                        for j in range(4): L.append(f'v_mul_f32 v{X[i]+j}, s76, v{X[i]+j}')
                L.append(f's_add_u32 s74, s75, {WS_QKV + half*131072 + tbp*1024}')
                for i in range(2):
                    for j in range(2): L.append(f'v_cvt_pk_bf16_f32 v{O+2*i+j}, v{X[i]+2*j}, v{X[i]+2*j+1}')
                L += [f'v_permlane16_swap_b32 v{O}, v{O+2}', f'v_permlane16_swap_b32 v{O+1}, v{O+3}',
                      f'buffer_store_dwordx4 v[{O}:{O+3}], v1, {ws}, s74 offen {store_mod}']
        return L
    def epi_v(t, scol):
        L = [f's_lshl_b32 s75, s{scol}, 12', 's_add_u32 s75, s75, s69']
        units = [(half, tbp) for half in range(2) for tbp in range(4)]
        for u, (half, tbp) in enumerate(units):
            X = [getv(L, acc(half, t, 2*tbp + i), 48 + 4*i + 8*(u % 2)) for i in range(2)]
            C = 16 + 4*(u % 2)
            for i in range(2):
                for j in range(2): L.append(f'v_cvt_pk_bf16_f32 v{C+2*i+j}, v{X[i]+2*j}, v{X[i]+2*j+1}')
            for i in range(2): L.append(f'ds_write_b64 v3, v[{C+2*i}:{C+2*i+1}] offset:{u*1024 + i*512}')
        L.append('s_waitcnt lgkmcnt(0)')
        for u in range(8):
            O = 64 + 4*u
            for rr in range(2): L.append(f'ds_read_b64_tr_b16 v[{O+2*rr}:{O+2*rr+1}], v4 offset:{u*1024 + rr*256}')
        for u, (half, tbp) in enumerate(units):
            O = 64 + 4*u
            L += [f's_add_u32 s74, s75, {WS_QKV + half*131072 + tbp*2048}', f's_waitcnt lgkmcnt({14 - 2*u})',
                  f'buffer_store_dwordx4 v[{O}:{O+3}], v2, {ws}, s74 offen {store_mod}']
        return L
    def merge(mm, ep):
        if '@M' in ep:
            it = iter(mm)
            for l in ep: a(next(it) if l == '@M' else l)
            assert next(it, None) is None
            return
        n = len(mm); k = 0
        for i, m in enumerate(mm):
            a(m)
            upto = (i + 1) * len(ep) // n
            while k < upto: a(ep[k]); k += 1
    a(f's_waitcnt vmcnt({NE}) lgkmcnt(0)\ns_barrier')
    rd = reads(1, 1, 1); mm = M(0)
    for i in range(16):
        a(mm[i])
        for l in rd[2*i:2*i+2]: a(l)
    a('s_waitcnt lgkmcnt(0)')
    for i in range(16, 32): a(mm[i])
    for t in (1, 2, 3): merge(M(t), epi_ffn(t - 1))
    paths = []
    a(f's_cmp_eq_u32 s{S_ODD}, 1\ns_cbranch_scc1 {name}_o3')
    p0 = a.mark()
    merge(M(4), epi_ffn(3))
    a(f's_branch {name}_s4')
    p1 = a.mark()
    a.label(f'{name}_o3')
    a(f's_cmp_ge_u32 s{S_N3}, 2048\ns_cbranch_scc1 {name}_o3v')
    p2 = a.mark()
    merge(M(4), epi_qk(3, S_N3, packed=False))
    a(f's_branch {name}_s4')
    p3 = a.mark()
    a.label(f'{name}_o3v')
    merge(M(4), epi_v(3, S_N3))
    p4 = a.mark()
    a.label(f'{name}_s4')
    a(f's_nop 4\ns_cmp_ge_u32 s{S_N4}, 2048\ns_cbranch_scc1 {name}_o4v')
    p5 = a.mark()
    for l in epi_qk(4, S_N4): a(l)
    a(f's_branch {name}_fin')
    p6 = a.mark()
    a.label(f'{name}_o4v')
    for l in epi_v(4, S_N4): a(l)
    p7 = a.mark()
    a.label(f'{name}_fin')
    if stamp:
        a(f'''
        s_waitcnt vmcnt(0)
        s_memtime s[96:97]
        s_memrealtime s[98:99]
        s_waitcnt lgkmcnt(0)
        v_mov_b32 v4, s90
        v_mov_b32 v5, s94
        v_mov_b32 v6, s96
        v_mov_b32 v7, s92
        v_mov_b32 v8, s98
        v_mov_b32 v9, s88
        v_mov_b32 v10, 0
        s_lshl_b32 s74, s2, 2
        s_add_u32 s74, s74, s{S_W}
        s_lshl_b32 s74, s74, 6
        v_mov_b32 v12, s78
        v_mov_b32 v13, s84
        v_mov_b32 v14, s86
        v_mov_b32 v15, s86
        s_add_u32 s74, s74, 0x8000000
        s_mov_b32 exec_lo, 1
        s_mov_b32 exec_hi, 0
        buffer_store_dwordx4 v[4:7], v10, {ws}, s74 offen
        buffer_store_dwordx2 v[8:9], v10, {ws}, s74 offen offset:16
        buffer_store_dwordx4 v[12:15], v10, {ws}, s74 offen offset:32
        ''')
    a.label(f'{name}_end')
    a('s_endpgm')
    base = a.ins[:m1] + a.ins[m0:m1] + a.ins[m1:p0]
    errs = []
    for b4 in (a.ins[p0:p1], a.ins[p1:p3], a.ins[p1:p2] + a.ins[p3:p4]):
        for b5 in (a.ins[p5:p6], a.ins[p6:p7]):
            errs += check_seq(base + b4 + a.ins[p4:p5] + b5 + a.ins[p7:], name)
    errs = [e for e in dict.fromkeys(errs) if f'buffer_load_dword v{V_PD},' not in e]
    for e in errs[:20]: print('CHECK', e)
    return kernel_text(name, a, 512, 102, 256), LDS_BYTES
```

```python
from asmlib import *
from k1 import WS_QKV, WS_OH, WS_G, WS_FLAG, OH_TB

from k1 import WS_PART
RING = 4
CH = 16384
LDS_BYTES = 81920
NV = 128

def r4(b): return f'v[{b}:{b+3}]'
def r16(b): return f'v[{b}:{b+15}]'

def stamp_out(a, srd, s_w, base, idsub=0):
    a(f'''
    s_waitcnt vmcnt(0)
    s_memtime s[96:97]
    s_memrealtime s[98:99]
    s_waitcnt lgkmcnt(0)
    v_mov_b32 v4, s90
    v_mov_b32 v5, s94
    v_mov_b32 v6, s96
    v_mov_b32 v7, s92
    v_mov_b32 v8, s98
    v_mov_b32 v9, s88
    v_mov_b32 v10, 0
    s_sub_u32 s74, s2, {idsub}
    s_lshl_b32 s74, s74, 3
    s_add_u32 s74, s74, s{s_w}
    s_lshl_b32 s74, s74, 5
    s_add_u32 s74, s74, {base:#x}
    s_mov_b32 exec_lo, 1
    s_mov_b32 exec_hi, 0
    buffer_store_dwordx4 v[4:7], v10, {srd}, s74 offen
    buffer_store_dwordx2 v[8:9], v10, {srd}, s74 offen offset:16
    v_mov_b32 v12, s84
    v_mov_b32 v13, s82
    buffer_store_dwordx2 v[12:13], v10, {srd}, s74 offen offset:24
    ''')

def attention(a, name, stamp, force_slow, prio, exp=''):
    V_L16, V_G, V_IDX = 1, 2, 4
    Q, ONES, L, O, CM = 16, 24, 28, 32, 48
    S = [64, 80]
    P, KF, VF = 96, 104, 112
    S_WS = 4
    S_W, S_HD, S_TB, S_KB, S_VB, S_LD, S_CNT, S_T = 8, 9, 10, 11, 12, 13, 14, 16
    a(f'''
    s_load_dwordx2 s[20:21], s[0:1], 80
    v_lshrrev_b32 v8, 6, v0
    v_and_b32 v0, 63, v0
    v_readfirstlane_b32 s{S_W}, v8
    s_and_b32 s{S_T}, s2, 7
    s_lshr_b32 s{S_T+1}, s2, 3
    s_lshr_b32 s{S_T+2}, s{S_T+1}, 3
    s_lshl_b32 s{S_HD}, s{S_T}, 2
    s_add_u32 s{S_HD}, s{S_HD}, s{S_T+2}
    s_and_b32 s{S_T+1}, s{S_T+1}, 7
    s_lshl_b32 s{S_TB}, s{S_T+1}, 3
    s_add_u32 s{S_TB}, s{S_TB}, s{S_W}
    v_lshlrev_b32 v{V_L16}, 4, v0
    ''')
    if prio: a(f's_setprio {prio}')
    if stamp: a('s_memtime s[90:91]\ns_memrealtime s[92:93]')
    a(f'''
    s_and_b32 s{S_T}, s{S_W}, 1
    s_lshr_b32 s{S_T+1}, s{S_W}, 1
    s_lshl_b32 s{S_KB}, s{S_HD}, 17
    s_lshl_b32 s{S_T+2}, s{S_T}, 16
    s_add_u32 s{S_KB}, s{S_KB}, s{S_T+2}
    s_lshl_b32 s{S_T+2}, s{S_T+1}, 10
    s_add_u32 s{S_KB}, s{S_KB}, s{S_T+2}
    s_add_u32 s{S_KB}, s{S_KB}, {WS_QKV + 32*131072}
    s_lshl_b32 s{S_LD}, s{S_W}, 10
    s_lshl_b32 s{S_VB}, s{S_HD}, 17
    s_add_u32 s{S_VB}, s{S_VB}, s{S_LD}
    s_add_u32 s{S_VB}, s{S_VB}, {WS_QKV + 64*131072}
    s_waitcnt lgkmcnt(0)
    s_mov_b32 s{S_WS}, s20
    s_mov_b32 s{S_WS+1}, s21
    s_mov_b32 s{S_WS+2}, 0x10000000
    s_mov_b32 s{S_WS+3}, 0x20000
    ''')
    srd = f's[{S_WS}:{S_WS+3}]'
    def dma(slot):
        return [[f's_add_u32 m0, s{S_LD}, {slot*CH}', f'buffer_load_dwordx4 v{V_L16}, {srd}, s{S_KB} offen lds', f's_add_u32 s{S_KB}, s{S_KB}, 4096'],
                [f's_add_u32 m0, s{S_LD}, {slot*CH + 8192}', f'buffer_load_dwordx4 v{V_L16}, {srd}, s{S_VB} offen lds', f's_add_u32 s{S_VB}, s{S_VB}, 8192']]
    for l in dma(0)[0]: a(l)
    a(f'''
    s_lshl_b32 s{S_T}, s{S_HD}, 17
    s_lshl_b32 s{S_T+1}, s{S_TB}, 10
    s_add_u32 s{S_T}, s{S_T}, s{S_T+1}
    s_add_u32 s{S_T+1}, s{S_T}, 65536
    buffer_load_dwordx4 {r4(Q)}, v{V_L16}, {srd}, s{S_T} offen
    buffer_load_dwordx4 {r4(Q+4)}, v{V_L16}, {srd}, s{S_T+1} offen
    v_and_b32 v3, 31, v0
    v_lshlrev_b32 v3, 2, v3
    s_lshl_b32 s{S_T+2}, s{S_TB}, 7
    s_add_u32 s{S_T+2}, s{S_T+2}, {WS_G:#x}
    ''')
    for l in dma(0)[1]: a(l)
    a(f'''
    v_bfe_u32 v8, v0, 4, 1
    v_and_b32 v9, 6, v0
    v_mov_b32 v10, 0x3f803f80
    v_cmp_eq_u32 vcc, 0, v9
    v_cndmask_b32 v{ONES}, 0, v10, vcc
    v_cndmask_b32 v{ONES+1}, 0, v10, vcc
    v_cmp_eq_u32 vcc, 4, v9
    v_cndmask_b32 v{ONES+2}, 0, v10, vcc
    v_cndmask_b32 v{ONES+3}, 0, v10, vcc
    v_and_b32 v9, 1, v0
    v_mul_u32_u24 v9, 0xaaaa, v9
    v_add_u32 v{V_IDX}, 0x4444, v9
    v_lshl_or_b32 v{V_IDX}, v{V_IDX}, 16, v{V_IDX}
    ''')
    for r in range(4): a(f'v_mov_b32 v{L+r}, 0')
    for r in range(16): a(f'v_mov_b32 v{O+r}, 0')
    for r in range(8): a(f'v_mov_b32 v{P+r}, 0')
    for r in range(8): a(f'v_mov_b32 v{VF+r}, 0')

    def off(blk): return ((blk >> 2) % RING) * CH + (blk & 3) * 2048
    def kread(blk, kk): return 's_nop 0' if ('L' in exp and blk > 1 and blk % 2) else f'ds_read_b128 {r4(KF + 4*kk)}, v{V_L16} offset:{off(blk) + kk*1024}'
    def vread(blk, m): return 's_nop 0' if ('L' in exp and blk % 2) else f'ds_read_b128 {r4(VF + 4*m)}, v{V_L16} offset:{off(blk) + 8192 + m*1024}'
    def qk(blk, c):
        s = S[blk & 1]
        return [f'v_mfma_f32_32x32x16_bf16 {r16(s)}, {r4(KF)}, {r4(Q)}, {c}',
                f'v_mfma_f32_32x32x16_bf16 {r16(s)}, {r4(KF+4)}, {r4(Q+4)}, {r16(s)}']
    def rowmax(s, dst, tmp):
        a(f'v_max3_f32 v{dst}, v{s}, v{s+1}, v{s+2}')
        a(f'v_max3_f32 v{tmp}, v{s+3}, v{s+4}, v{s+5}')
        for j in range(6, 14, 4):
            a(f'v_max3_f32 v{dst}, v{dst}, v{s+j}, v{s+j+1}')
            a(f'v_max3_f32 v{tmp}, v{tmp}, v{s+j+2}, v{s+j+3}')
        a(f'v_max3_f32 v{dst}, v{dst}, v{s+14}, v{s+15}')
        a(f'v_max_f32 v{dst}, v{dst}, v{tmp}')
        a(f'v_mov_b32 v{tmp}, v{dst}')
        a(f'v_permlane32_swap_b32 v{dst}, v{tmp}')
        a(f'v_max_f32 v{dst}, v{dst}, v{tmp}')

    a('s_waitcnt vmcnt(0)\ns_barrier')
    a(kread(0, 0)); a(kread(0, 1))
    for it in dma(1):
        for l in it: a(l)
    a('s_waitcnt lgkmcnt(0)')
    for l in qk(0, '0'): a(l)
    a(kread(1, 0)); a(kread(1, 1))
    a(f'''
    buffer_load_dword v{V_G}, v3, {srd}, s{S_T+2} offen
    ''')
    for it in dma(2):
        for l in it: a(l)
    rowmax(S[0], 8, 9)
    for r in range(16): a(f'v_sub_f32 v{CM+r}, 0, v8')
    for r in range(16): a(f'v_sub_f32 v{S[0]+r}, v{S[0]+r}, v8')
    a(f's_mov_b32 s{S_CNT}, 4')
    a('s_waitcnt lgkmcnt(0)')
    if stamp: a('s_memtime s[88:89]\ns_waitcnt lgkmcnt(0)')

    summ = f'v_smfmac_f32_16x16x64_bf16 {r4(L)}, {r4(ONES)}, v[{P}:{P+7}], v{V_IDX}'
    def pv(vf, pp): return f'v_mfma_f32_32x32x16_bf16 {r16(O)}, {r4(vf)}, {r4(pp)}, {r16(O)}'
    def body(i, last_iter=False):
        s = S[i & 1]
        final = last_iter and i == 15
        nok = last_iter and i >= 14
        ex = lambda j: f'v_exp_f32 v{s+j}, v{s+j}'
        cv = lambda j: f'v_cvt_pk_bf16_f32 v{P+j}, v{s+2*j}, v{s+2*j+1}'
        q = qk(i + 1, r16(CM)) if not final else [None, None]
        sync = ((i + 2) & 3) == 0 and not nok
        prevk = 0 if (last_iter and i == 15) else 1
        d = [[], []]
        if sync:
            c = (i + 2) >> 2
            nxt = not (last_iter and c >= 2)
            a(f's_waitcnt vmcnt({2 if not (last_iter and c == 3) else 0}) lgkmcnt({1 + prevk})')
            a('s_barrier')
            if nxt: d = dma((c + 2) % RING)
        else:
            a(f's_waitcnt lgkmcnt({1 + prevk})')
        if q[0]: a(q[0])
        a(ex(0))
        if not nok: a(kread(i + 2, 0))
        a(ex(1))
        if d[0]: a(d[0][0])
        a(ex(2))
        for l in d[0][1:]: a(l)
        a(ex(3))
        a(pv(VF, P))
        a(ex(4)); a(vread(i, 0)); a(ex(5)); a(ex(6)); a(ex(7))
        a(summ)
        for j in range(0, 4): a(cv(j))
        a(f's_waitcnt lgkmcnt({1 + (0 if nok else 1)})')
        if q[1]: a(q[1])
        a(ex(8))
        if not nok: a(kread(i + 2, 1))
        a(ex(9))
        if d[1]: a(d[1][0])
        a(ex(10))
        for l in d[1][1:]: a(l)
        a(ex(11))
        a(pv(VF + 4, P + 4))
        a(ex(12)); a(vread(i, 1)); a(ex(13)); a(ex(14)); a(ex(15))
        for j in range(4, 8): a(cv(j))
    m0 = a.mark()
    a.label(f'{name}_loop')
    for i in range(16): body(i)
    a(f's_sub_u32 s{S_CNT}, s{S_CNT}, 1\ns_cmp_lg_u32 s{S_CNT}, 1\ns_cbranch_scc1 {name}_loop')
    m1 = a.mark()
    for i in range(16):
        body(i, last_iter=True)
    a('s_waitcnt lgkmcnt(0)')
    a(summ)
    for h in range(2): a(pv(VF + 4*h, P + 4*h))
    a(f'v_add_f32 v{L}, v{L}, v{L+1}')
    if stamp: a('s_memtime s[94:95]')
    a(f'v_mov_b32 v8, 0x207\nv_mov_b32 v9, 0x5f800000\nv_cmp_nlt_f32 s[22:23], v{L}, v9')
    for r in range(16):
        a(f'v_cmp_class_f32 vcc, v{O+r}, v8')
        a('s_or_b64 s[22:23], s[22:23], vcc')
    if force_slow: a(f's_branch {name}_slow')
    a(f's_cmp_lg_u64 s[22:23], 0\ns_cbranch_scc1 {name}_slow')
    a.label(f'{name}_fin')
    a(f'''
    v_rcp_f32 v8, v{L}
    s_mul_i32 s{S_T}, s{S_TB}, {OH_TB}
    s_lshl_b32 s{S_T+1}, s{S_HD}, 11
    s_add_u32 s{S_T}, s{S_T}, s{S_T+1}
    s_add_u32 s{S_T}, s{S_T}, {WS_OH:#x}
    v_mul_f32 v8, v8, v{V_G}
    ''')
    for r in range(16): a(f'v_mul_f32 v{O+r}, v{O+r}, v8')
    for j in range(8): a(f'v_cvt_pk_bf16_f32 v{S[0]+j}, v{O+2*j}, v{O+2*j+1}')
    for pr in range(2):
        b = S[0] + 4*pr
        a(f'v_permlane32_swap_b32 v{b}, v{b+2}\nv_permlane32_swap_b32 v{b+1}, v{b+3}')
        a(f'buffer_store_dwordx4 {r4(b)}, v{V_L16}, {srd}, s{S_T} offen offset:{pr*1024} sc1')
    a(f'''
    s_lshr_b32 s{S_T}, s{S_TB}, 3
    s_lshl_b32 s{S_T}, s{S_T}, 7
    s_add_u32 s{S_T}, s{S_T}, {WS_FLAG:#x}
    v_mov_b32 v8, 0
    v_mov_b32 v9, 1
    s_waitcnt vmcnt(0)
    s_barrier
    s_cmp_lg_u32 s{S_W}, 0
    s_cbranch_scc1 {name}_sig
    s_mov_b64 exec, 1
    buffer_atomic_add v9, v8, {srd}, s{S_T} offen sc1
    s_mov_b64 exec, -1
    ''')
    a.label(f'{name}_sig')
    if stamp: stamp_out(a, srd, S_W, 0x8100000)
    a('s_endpgm')
    m2 = a.mark()
    a.label(f'{name}_slow')
    M, AL, T2 = 8, 9, 10
    a(f'''
    s_lshl_b32 s{S_KB}, s{S_HD}, 17
    s_add_u32 s{S_VB}, s{S_KB}, {WS_QKV + 64*131072}
    s_add_u32 s{S_KB}, s{S_KB}, {WS_QKV + 32*131072}
    v_mov_b32 v{M}, 0xff800000
    s_mov_b32 s{S_CNT}, 64
    ''')
    for r in range(4): a(f'v_mov_b32 v{L+r}, 0')
    for r in range(16): a(f'v_mov_b32 v{O+r}, 0')
    s0 = a.mark()
    a.label(f'{name}_sloop')
    a(f'''
    s_add_u32 s{S_T}, s{S_KB}, 65536
    buffer_load_dwordx4 {r4(KF)}, v{V_L16}, {srd}, s{S_KB} offen
    buffer_load_dwordx4 {r4(KF+4)}, v{V_L16}, {srd}, s{S_T} offen
    buffer_load_dwordx4 {r4(VF)}, v{V_L16}, {srd}, s{S_VB} offen
    buffer_load_dwordx4 {r4(VF+4)}, v{V_L16}, {srd}, s{S_VB} offen offset:1024
    s_add_u32 s{S_KB}, s{S_KB}, 1024
    s_add_u32 s{S_VB}, s{S_VB}, 2048
    s_waitcnt vmcnt(0)
    ''')
    for l in qk(0, '0'): a(l)
    rowmax(S[0], AL, T2)
    a(f'''
    v_max_f32 v{T2}, v{AL}, v{M}
    v_sub_f32 v{AL}, v{M}, v{T2}
    v_exp_f32 v{AL}, v{AL}
    v_mov_b32 v{M}, v{T2}
    ''')
    for r in range(16): a(f'v_sub_f32 v{S[0]+r}, v{S[0]+r}, v{M}')
    for r in range(16): a(f'v_exp_f32 v{S[0]+r}, v{S[0]+r}')
    for r in range(4): a(f'v_mul_f32 v{L+r}, v{L+r}, v{AL}')
    for r in range(16): a(f'v_mul_f32 v{O+r}, v{O+r}, v{AL}')
    for j in range(8): a(f'v_cvt_pk_bf16_f32 v{P+j}, v{S[0]+2*j}, v{S[0]+2*j+1}')
    a(summ)
    for m in range(2): a(pv(VF + 4*m, P + 4*m))
    a(f's_nop 15\ns_sub_u32 s{S_CNT}, s{S_CNT}, 1\ns_cmp_lg_u32 s{S_CNT}, 0\ns_cbranch_scc1 {name}_sloop')
    s1 = a.mark()
    a(f'v_add_f32 v{L}, v{L}, v{L+1}\ns_branch {name}_fin')
    tr = a.ins[:m1] + a.ins[m0:m1] + a.ins[m1:m2]
    return check_seq(tr, name) + check_seq(a.ins[m2:s1] + a.ins[s0:s1], name + '_slow')

def down(a, name, stamp, prio, exp=''):
    R, SB = 5, 16384
    V_L16, V_WOFF, V_AB, V_AB2, V_WB, V_WB2, V_ARD, V_ARD2, V_WRD, V_WRD2, V_FL, V_Z, V_G = 1, 2, 3, 4, 5, 6, 7, 8, 9, 10, 11, 12, 13
    ACC = 20
    FR = [52, 76]
    PT = 100
    S_A, S_WD, S_WS, S_OUT = 4, 8, 12, 48
    S_W, S_WR, S_WQ, S_RB, S_CB, S_KH, S_AK, S_WK, S_LA, S_LW, S_SLOT, S_CNT, S_RS, S_T = 16, 17, 18, 19, 20, 21, 22, 23, 24, 25, 26, 27, 28, 30
    S_TB0, S_FA, S_FP, S_AO = 36, 37, 38, 39
    st = a.mark()
    a(f'''
    s_load_dwordx2 s[40:41], s[0:1], 16
    s_load_dwordx2 s[42:43], s[0:1], 48
    s_load_dwordx2 s[44:45], s[0:1], 64
    s_load_dwordx2 s[46:47], s[0:1], 80
    v_lshrrev_b32 v17, 6, v0
    v_and_b32 v0, 63, v0
    v_readfirstlane_b32 s{S_W}, v17
    s_and_b32 s{S_T}, s2, 7
    s_lshr_b32 s{S_T+1}, s2, 3
    s_and_b32 s{S_T+1}, s{S_T+1}, 31
    s_and_b32 s{S_KH}, s{S_T}, 1
    s_lshr_b32 s{S_T}, s{S_T}, 1
    s_lshl_b32 s{S_RB}, s{S_T}, 2
    s_lshr_b32 s{S_T+2}, s{S_T+1}, 3
    s_add_u32 s{S_RB}, s{S_RB}, s{S_T+2}
    s_and_b32 s{S_CB}, s{S_T+1}, 7
    s_lshr_b32 s{S_WR}, s{S_W}, 2
    s_and_b32 s{S_WQ}, s{S_W}, 3
    v_lshlrev_b32 v{V_L16}, 4, v0
    ''')
    if prio: a(f's_setprio {prio}')
    if stamp: a('s_memtime s[90:91]\ns_memrealtime s[92:93]')
    a(f'''
    s_lshl_b32 s{S_T}, s{S_RB}, 2
    s_lshr_b32 s{S_T+1}, s{S_W}, 1
    s_add_u32 s{S_T}, s{S_T}, s{S_T+1}
    s_mul_i32 s{S_AO}, s{S_T}, {OH_TB}
    s_add_u32 s{S_AO}, s{S_AO}, {WS_OH:#x}
    s_and_b32 s{S_T}, s{S_W}, 1
    s_lshl_b32 s{S_T}, s{S_T}, 10
    s_add_u32 s{S_AO}, s{S_AO}, s{S_T}
    s_mul_i32 s{S_T}, s{S_KH}, {1792*64}
    s_add_u32 s{S_AK}, s{S_AO}, s{S_T}
    s_add_u32 s{S_AK}, s{S_AK}, {1024*64}
    s_mul_i32 s{S_WK}, s{S_KH}, {1792*2048}
    s_lshl_b32 s{S_LA}, s{S_W}, 10
    s_add_u32 s{S_LW}, s{S_LA}, 8192
    v_lshrrev_b32 v17, 2, v0
    s_lshl_b32 s{S_T}, s{S_WR}, 4
    v_add_u32 v17, s{S_T}, v17
    v_lshlrev_b32 v17, 11, v17
    v_lshrrev_b32 v18, 5, v0
    v_lshlrev_b32 v18, 1, v18
    v_and_b32 v19, 3, v0
    v_xor_b32 v18, v18, v19
    v_lshlrev_b32 v18, 4, v18
    s_lshl_b32 s{S_T}, s{S_CB}, 8
    s_lshl_b32 s{S_T+1}, s{S_WQ}, 6
    s_add_u32 s{S_T}, s{S_T}, s{S_T+1}
    v_add3_u32 v{V_WOFF}, v17, v18, s{S_T}
    s_mov_b32 s{S_SLOT}, 0
    s_waitcnt lgkmcnt(0)
    s_mov_b32 s{S_A}, s46
    s_mov_b32 s{S_A+1}, s47
    s_mov_b32 s{S_A+2}, 0x10000000
    s_mov_b32 s{S_A+3}, 0x20000
    s_mov_b32 s{S_WD}, s42
    s_mov_b32 s{S_WD+1}, s43
    s_mov_b32 s{S_WD+2}, {3584*2048}
    s_mov_b32 s{S_WD+3}, 0x20000
    ''')
    sa = f's[{S_A}:{S_A+3}]'; wd = f's[{S_WD}:{S_WD+3}]'; ws = f's[{S_WS}:{S_WS+3}]'
    def dma():
        return [f's_add_u32 m0, s{S_LA}, s{S_SLOT}', f's_add_u32 s{S_T}, s{S_LW}, s{S_SLOT}',
                f'buffer_load_dwordx4 v{V_L16}, {sa}, s{S_AK} offen sc1 lds',
                f's_mov_b32 m0, s{S_T}', f's_add_u32 s{S_AK}, s{S_AK}, 2048',
                f'buffer_load_dwordx4 v{V_WOFF}, {wd}, s{S_WK} offen lds',
                f's_add_u32 s{S_WK}, s{S_WK}, {32*2048}',
                f's_add_u32 s{S_SLOT}, s{S_SLOT}, {SB}',
                f's_cmp_eq_u32 s{S_SLOT}, {R*SB}',
                f's_cselect_b32 s{S_SLOT}, 0, s{S_SLOT}']
    for s_ in range(2):
        for l in dma(): a(l)
    a(f'''
    s_mov_b32 s{S_WS}, s46
    s_mov_b32 s{S_WS+1}, s47
    s_mov_b32 s{S_WS+2}, 0x10000000
    s_mov_b32 s{S_WS+3}, 0x20000
    s_mov_b32 s{S_OUT}, s44
    s_mov_b32 s{S_OUT+1}, s45
    s_mov_b32 s{S_OUT+2}, {2048*2048}
    s_mov_b32 s{S_OUT+3}, 0x20000
    v_and_b32 v17, 15, v0
    v_lshrrev_b32 v18, 4, v0
    v_lshlrev_b32 v19, 9, v18
    v_lshl_add_u32 v19, v17, 4, v19
    s_lshl_b32 s{S_T}, s{S_WR}, 12
    s_lshl_b32 s{S_T+1}, s{S_KH}, 11
    s_add_u32 s{S_T}, s{S_T}, s{S_T+1}
    v_add_u32 v{V_AB}, s{S_T}, v19
    v_xor_b32 v{V_AB2}, 2048, v{V_AB}
    v_lshrrev_b32 v19, 5, v0
    v_lshlrev_b32 v19, 12, v19
    v_and_b32 v18, 1, v18
    v_lshl_add_u32 v19, v18, 9, v19
    v_lshl_add_u32 v19, v18, 5, v19
    v_lshrrev_b32 v18, 2, v17
    v_lshl_add_u32 v19, v18, 6, v19
    v_and_b32 v18, 3, v17
    v_lshl_add_u32 v19, v18, 3, v19
    s_lshl_b32 s{S_T}, s{S_WQ}, 10
    s_add_u32 s{S_T}, s{S_T}, 8192
    v_add_u32 v{V_WB}, s{S_T}, v19
    v_xor_b32 v{V_WB2}, 32, v{V_WB}
    s_mov_b32 s{S_RS}, {SB}
    s_mov_b32 s{S_CNT}, 35
    v_mov_b32 v{V_Z}, 0
    s_lshr_b32 s{S_FA}, s{S_RB}, 1
    s_lshl_b32 s{S_FA}, s{S_FA}, 7
    s_add_u32 s{S_FA}, s{S_FA}, {WS_FLAG:#x}
    s_lshl_b32 s{S_FP}, s2, 3
    s_add_u32 s{S_FP}, s{S_FP}, s{S_W}
    s_lshl_b32 s{S_FP}, s{S_FP}, 6
    s_add_u32 s{S_FP}, s{S_FP}, {WS_FLAG:#x}
    s_lshl_b32 s{S_TB0}, s{S_RB}, 2
    s_lshl_b32 s{S_T}, s{S_WR}, 1
    s_add_u32 s{S_TB0}, s{S_TB0}, s{S_T}
    s_add_u32 s{S_TB0}, s{S_TB0}, s{S_KH}
    s_lshl_b32 s{S_T+4}, s{S_TB0}, 7
    s_add_u32 s{S_T+4}, s{S_T+4}, {WS_G:#x}
    s_xor_b32 s{S_T+5}, s{S_T+4}, 128
    v_lshlrev_b32 v17, 2, v17
    ''')
    for r in range(ACC, ACC + 32): a(f'v_mov_b32 v{r}, 0')
    def reads(st_, va, va2, vw, vw2):
        f = FR[st_]
        W = [f'ds_read_b64_tr_b16 v[{f+16+4*p+2*h}:{f+16+4*p+2*h+1}], v{(vw, vw2)[p]} offset:{h*256}' for p in range(2) for h in range(2)]
        A = [f'ds_read_b128 {r4(f+4*t)}, v{(va, va2)[t>>1]} offset:{(t&1)*256}' for t in range(4)]
        return W[:2] + A + W[2:]
    def mfmas(st_):
        f = FR[st_]
        return [f'v_mfma_f32_16x16x32_bf16 {r4(ACC+8*t+4*p)}, {r4(f+16+4*p)}, {r4(f+4*t)}, {r4(ACC+8*t+4*p)}' for p in range(2) for t in range(4)]
    def stage(u, vm, ndma, extra=()):
        a(f'''
        v_add_u32 v{V_ARD}, s{S_RS}, v{V_AB}
        v_add_u32 v{V_ARD2}, s{S_RS}, v{V_AB2}
        v_add_u32 v{V_WRD}, s{S_RS}, v{V_WB}
        v_add_u32 v{V_WRD2}, s{S_RS}, v{V_WB2}
        s_add_u32 s{S_RS}, s{S_RS}, {SB}
        s_cmp_eq_u32 s{S_RS}, {R*SB}
        s_cselect_b32 s{S_RS}, 0, s{S_RS}
        s_waitcnt vmcnt({vm}) lgkmcnt(0)
        s_barrier
        ''')
        rd = reads(1 - u, V_ARD, V_ARD2, V_WRD, V_WRD2); mm = mfmas(u)
        side = []
        for k in range(ndma): side += dma()
        side += list(extra)
        for i in range(8):
            a(mm[i])
            if i < 4: a(rd[2*i]); a(rd[2*i+1])
            elif i < 7:
                n = (len(side) + 2) // 3
                for l in side[(i-4)*n:(i-3)*n]: a(l)
    a(f's_waitcnt vmcnt(2)\ns_barrier')
    for l in reads(0, V_AB, V_AB2, V_WB, V_WB2): a(l)
    for l in dma(): a(l)
    if stamp: a('s_memtime s[88:89]')
    stage(0, 2, 2)
    stage(1, 4, 2, [f'buffer_load_dword v{V_G+t}, v17, {ws}, s{S_T+4+(t>>1)} offen offset:{(t&1)*64}' for t in range(4)])
    m0 = a.mark()
    a.label(f'{name}_loop')
    stage(0, 2*(R-2), 1)
    a(f's_cmp_eq_u32 s{S_CNT}, 11\ns_cbranch_scc1 {name}_sw')
    a.label(f'{name}_b1')
    stage(1, 2*(R-2), 1)
    import re as _re
    mq = _re.search(r'q(\d+)', exp)
    if mq: a(f's_cmp_eq_u32 s{S_CNT}, {mq.group(1)}\ns_cbranch_scc1 {name}_pr')
    a(f'''
    s_cmp_eq_u32 s{S_CNT}, 14
    s_cbranch_scc1 {name}_fl
    s_cmp_eq_u32 s{S_CNT}, 9
    s_cbranch_scc1 {name}_sc
    ''')
    a.label(f'{name}_b2')
    a(f's_sub_u32 s{S_CNT}, s{S_CNT}, 1\ns_cmp_lg_u32 s{S_CNT}, 0\ns_cbranch_scc1 {name}_loop')
    m1 = a.mark()
    if stamp: a('s_memtime s[82:83]')
    a(f'''
    s_sub_u32 s52, s2, 256
    s_lshl_b32 s52, s52, 3
    s_add_u32 s52, s52, s{S_W}
    s_lshl_b32 s52, s52, 11
    s_add_u32 s52, s52, {WS_PART:#x}
    s_xor_b32 s53, s52, {8*2048}
    ''')
    for j in range(8): a(f'v_cvt_pk_bf16_f32 v{PT+j}, v{ACC+16+2*j}, v{ACC+16+2*j+1}')
    for j in range(8): a(f'v_max_u32 v{PT+j}, 1, v{PT+j}')
    for h in range(2): a(f'buffer_store_dwordx4 {r4(PT+4*h)}, v{V_L16}, {ws}, s52 offen offset:{h*1024} sc1')
    a(f'''
    v_and_b32 v18, 15, v0
    v_lshrrev_b32 v19, 4, v0
    v_lshlrev_b32 v18, 11, v18
    v_and_b32 v{V_ARD}, 1, v19
    v_lshl_add_u32 v18, v{V_ARD}, 5, v18
    v_lshrrev_b32 v19, 1, v19
    v_lshl_add_u32 v18, v19, 4, v18
    s_lshl_b32 s55, s{S_TB0}, 16
    s_lshl_b32 s{S_T}, s{S_CB}, 8
    s_add_u32 s55, s55, s{S_T}
    s_lshl_b32 s{S_T}, s{S_WQ}, 6
    s_add_u32 s55, s55, s{S_T}
    s_add_u32 s56, s55, {16*2048}
    s_mov_b32 s57, 0xffff0000
    s_waitcnt lgkmcnt(0)
    ''')
    a.label(f'{name}_poll')
    a(f'''
    buffer_load_dwordx4 {r4(PT+8)}, v{V_L16}, {ws}, s53 offen sc1
    buffer_load_dwordx4 {r4(PT+12)}, v{V_L16}, {ws}, s53 offen offset:1024 sc1
    s_waitcnt vmcnt(0)
    v_min3_u32 v17, v{PT+8}, v{PT+9}, v{PT+10}
    v_min3_u32 v19, v{PT+11}, v{PT+12}, v{PT+13}
    v_min3_u32 v17, v17, v{PT+14}, v{PT+15}
    v_min_u32 v17, v17, v19
    v_cmp_eq_u32 vcc, 0, v17
    s_cmp_lg_u64 vcc, 0
    s_cbranch_scc1 {name}_poll
    ''')
    for t in range(2):
        for j in range(4):
            a(f'v_lshlrev_b32 v{FR[0]+2*j}, 16, v{PT+8+4*t+j}\nv_and_b32 v{FR[0]+2*j+1}, s57, v{PT+8+4*t+j}')
        for r in range(8): a(f'v_add_f32 v{ACC+8*t+r}, v{ACC+8*t+r}, v{FR[0]+r}')
        o = FR[1] + 4*t
        for j in range(4): a(f'v_cvt_pk_bf16_f32 v{o+j}, v{ACC+8*t+2*j}, v{ACC+8*t+2*j+1}')
        a(f'v_permlane16_swap_b32 v{o}, v{o+2}\nv_permlane16_swap_b32 v{o+1}, v{o+3}')
        a(f'buffer_store_dwordx4 {r4(o)}, v18, s[{S_OUT}:{S_OUT+3}], s{55+t} offen')
    if stamp: stamp_out(a, ws, S_W, 0x8300000, 256)
    a('s_endpgm')
    e0 = a.mark()
    a.label(f'{name}_pr')
    a(f's_setprio 0\ns_branch {name}_b2')
    e0b = a.mark()
    a.label(f'{name}_fl')
    a(f'buffer_load_dword v{V_FL}, v{V_Z}, {ws}, s{S_FA} offen sc1\ns_branch {name}_b2')
    e1 = a.mark()
    a.label(f'{name}_sw')
    if stamp: a('s_memtime s[94:95]')
    a(f'''
    s_lshl_b32 s{S_T}, s{S_KH}, 15
    s_add_u32 s{S_AK}, s{S_AO}, s{S_T}
    s_and_b32 s{S_T}, s{S_AK}, 0xfffff800
    s_add_u32 s{S_A+2}, s{S_T}, {512*64}
    s_mov_b32 s{S_WD}, s40
    s_mov_b32 s{S_WD+1}, s41
    s_lshl_b32 s{S_WK}, s{S_KH}, 20
    s_add_u32 s{S_WD+2}, s{S_WK}, {512*2048}
    s_cmp_lg_u32 s{S_W}, 0
    s_cbranch_scc1 {name}_b1
    ''')
    a.label(f'{name}_sw2')
    a(f'''
    v_readfirstlane_b32 s{S_T}, v{V_FL}
    s_cmp_ge_u32 s{S_T}, 32
    s_cbranch_scc1 {name}_b1
    s_sleep 3
    buffer_load_dword v{V_FL}, v{V_Z}, {ws}, s{S_FA} offen sc1
    s_waitcnt vmcnt(0)
    s_branch {name}_sw2
    ''')
    e2 = a.mark()
    a.label(f'{name}_sc')
    if stamp: a('s_memtime s[84:85]')
    a('s_nop 4')
    for t in range(4): a(f'v_sub_f32 v{V_G+t}, 1.0, v{V_G+t}')
    for t in range(4):
        for r in range(8): a(f'v_mul_f32 v{ACC+8*t+r}, v{ACC+8*t+r}, v{V_G+t}')
    a(f's_branch {name}_b2')
    e3 = a.mark()
    body = a.ins[m0:m1]
    ib1 = [i for i, x in enumerate(body) if x.text == f'{name}_b1:'][0]
    ib2 = [i for i, x in enumerate(body) if x.text == f'{name}_b2:'][0]
    tr = a.ins[st:m1] + body[:ib2] + a.ins[e0b:e1] + body[ib2:] + body + body + body[:ib1] + a.ins[e1:e2-4] + body[ib1:] + body + body[:ib2] + a.ins[e2:e3] + body[ib2:] + body + a.ins[m1:e0]
    return list(dict.fromkeys(check_seq(tr, name)))

def gen(name='k2_kernel', stamp=False, force_slow=False, prio_a=0, prio_g=0, only=None, exp=''):
    a = Asm()
    a(f'''
    s_cmp_ge_u32 s2, 512
    s_cbranch_scc1 {name}_end
    s_cmp_ge_u32 s2, 256
    s_cbranch_scc1 {name + ('_end' if only == 'a' else '_down')}
    ''')
    if only == 'g': a(f's_branch {name}_end')
    errs = attention(a, name, stamp, force_slow, prio_a, exp)
    a.label(f'{name}_down')
    errs += down(a, name + '_d', stamp, prio_g, exp)
    a.label(f'{name}_end')
    a('s_endpgm')
    for e in errs[:20]: print('CHECK', e)
    return kernel_text(name, a, NV, 102, NV), LDS_BYTES
```

```python
from asmlib import *
import struct

WS_QKV = 0
WS_OH = 0x1000000
WS_G = 0x2200000
WS_FLAG = 0x2300000
WS_PART = 0x2400000
OH_TB = 4608 * 64
LOG2E = 1.4426950408889634
def f2u(f): return struct.unpack('<I', struct.pack('<f', f))[0]
QSCALE = f2u(32 ** -0.5 * LOG2E)
NLOG2E = f2u(-LOG2E)

XBUF = [0, 32768]
WBUF = [65536, 65536 + 40960]
LDS_BYTES = 65536 + 81920

def acc(half, t, tb):
    idx = (t * 2 + half) * 8 + tb
    if idx < 52: return ('v', 48 + 4 * idx)
    return ('a', 4 * (idx - 52))
def rng(r, n=4): return f'{r[0]}[{r[1]}:{r[1]+n-1}]'
def xfrag(st, tb): return ('a', 112 + 72 * st + 4 * tb)
def wfrag(st, half, t): return ('a', 112 + 72 * st + 32 + 4 * (half * 5 + t))

V_XOFF = 1
V_WOFF = 9
V_XRD = 12
V_WRD = 14
V_PF = 16
V_PD = 17
S_X, S_WA, S_WB, S_WC4, S_WS, S_PF = 4, 8, 12, 16, 20, 24
S_XK, S_WK, S_WI = 28, 29, 32
S_LX, S_LW, S_CNT, S_W, S_WR, S_WC, S_RB, S_CT, S_PK, S_PI = 35, 36, 37, 38, 39, 40, 41, 42, 43, 44
S_F0, S_N3, S_N4, S_ODD, S_HS = 45, 46, 47, 48, 49
S_PS, S_PM = 3, 57
S_T = 50
import os
PD = int(os.environ.get("PD", "1"))

def gen(name='k1_kernel', stamp=False, sched=None, store_mod='', code_from=None, code_to=None, pf=True):
    a = Asm()
    a(f'''
    s_cmp_ge_u32 s2, 256
    s_cbranch_scc1 {name}_end
    s_load_dwordx4 s[60:63], s[0:1], 0
    s_load_dwordx8 s[64:71], s[0:1], 32
    s_getpc_b64 s[{S_PF}:{S_PF+1}]
    {name}_pc0:
    s_mov_b32 s{S_PF+2}, {name}_pc-{name}_pc0
    s_mov_b32 s{S_PF+3}, 0x20000
    s_lshr_b32 s{S_T}, s2, 3
    s_lshl_b32 s{S_T}, s{S_T}, 10
    v_lshlrev_b32 v16, 2, v0
    buffer_load_dword v47, v16, s[{S_PF}:{S_PF+3}], s{S_T} offen
    s_load_dwordx2 s[72:73], s[0:1], 80
    s_load_dwordx2 s[74:75], s[0:1], 16
    v_lshrrev_b32 v16, 6, v0
    v_and_b32 v0, 63, v0
    v_readfirstlane_b32 s{S_W}, v16
    s_and_b32 s{S_T}, s2, 7
    s_lshr_b32 s{S_T+1}, s2, 3
    s_and_b32 s{S_RB}, s{S_T+1}, 7
    s_lshr_b32 s{S_T+1}, s{S_T+1}, 3
    s_lshl_b32 s{S_CT}, s{S_T}, 2
    s_add_u32 s{S_CT}, s{S_CT}, s{S_T+1}
    s_lshr_b32 s{S_WR}, s{S_W}, 1
    s_and_b32 s{S_WC}, s{S_W}, 1
    ''')
    if stamp: a('s_memtime s[90:91]\ns_memrealtime s[92:93]')
    a(f'''
    s_and_b32 s{S_ODD}, s{S_CT}, 1
    s_lshr_b32 s{S_T}, s{S_CT}, 1
    s_mul_i32 s{S_F0}, s{S_T}, 224
    s_lshl_b32 s{S_T+1}, s{S_ODD}, 7
    s_add_u32 s{S_F0}, s{S_F0}, s{S_T+1}
    s_mul_i32 s{S_N4}, s{S_T}, 192
    s_add_u32 s{S_N3}, s{S_N4}, 64
    s_add_u32 s{S_N4}, s{S_N4}, s{S_T+1}
    s_movk_i32 s{S_T+2}, 7168
    s_cmp_eq_u32 s{S_ODD}, 1
    s_cselect_b32 s{S_T+3}, 6144, s{S_T+2}
    s_lshl_b32 s{S_T+4}, s{S_WC}, 5
    s_add_u32 s{S_T+5}, s{S_N3}, s{S_T+4}
    s_add_u32 s{S_T+6}, s{S_F0}, 96
    s_cmp_eq_u32 s{S_ODD}, 1
    s_cselect_b32 s{S_T+5}, s{S_T+5}, s{S_T+6}
    s_add_u32 s{S_T+6}, s{S_N4}, s{S_T+4}
    s_mov_b32 s{S_WI}, {7168*32}
    s_lshl_b32 s{S_WI+1}, s{S_T+3}, 5
    s_mov_b32 s{S_WI+2}, {6144*32}
    s_and_b32 s{S_HS}, s2, 7
    s_lshl_b32 s{S_XK}, s{S_HS}, 8
    s_lshl_b32 s{S_HS}, s{S_HS}, 2
    s_mul_i32 s{S_WK}, s{S_HS}, s{S_WI}
    s_mul_i32 s{S_WK+1}, s{S_HS}, s{S_WI+1}
    s_mul_i32 s{S_WK+2}, s{S_HS}, s{S_WI+2}
    s_lshl_b32 s{S_LX}, s{S_W}, 13
    s_mul_i32 s{S_LW}, s{S_WR}, 10240
    s_mul_i32 s{S_T}, s{S_WC}, 5120
    s_add_u32 s{S_LW}, s{S_LW}, s{S_T}
    v_lshrrev_b32 v17, 2, v0
    s_lshl_b32 s{S_T}, s{S_WR}, 4
    v_add_u32 v17, s{S_T}, v17
    v_lshrrev_b32 v18, 5, v0
    v_lshlrev_b32 v18, 1, v18
    v_and_b32 v19, 3, v0
    v_xor_b32 v18, v18, v19
    v_lshlrev_b32 v18, 4, v18
    v_mul_u32_u24 v{V_WOFF}, 7168, v17
    v_mul_lo_u32 v{V_WOFF+1}, v17, s{S_T+3}
    v_mul_u32_u24 v{V_WOFF+2}, 6144, v17
    s_lshl_b32 s{S_T}, s{S_F0}, 1
    s_lshl_b32 s{S_T+5}, s{S_T+5}, 1
    s_lshl_b32 s{S_T+6}, s{S_T+6}, 1
    v_add3_u32 v{V_WOFF}, v{V_WOFF}, v18, s{S_T}
    v_add3_u32 v{V_WOFF+1}, v{V_WOFF+1}, v18, s{S_T+5}
    v_add3_u32 v{V_WOFF+2}, v{V_WOFF+2}, v18, s{S_T+6}
    v_lshrrev_b32 v17, 3, v0
    s_lshl_b32 s{S_T}, s{S_RB}, 8
    s_lshl_b32 s{S_T+1}, s{S_W}, 6
    s_add_u32 s{S_T}, s{S_T}, s{S_T+1}
    v_add_u32 v17, s{S_T}, v17
    v_lshlrev_b32 v17, 11, v17
    v_and_b32 v18, 7, v0
    v_lshrrev_b32 v19, 4, v0
    v_xor_b32 v18, v18, v19
    v_lshlrev_b32 v18, 4, v18
    v_add_u32 v17, v17, v18
    v_xor_b32 v18, 64, v17
    ''')
    for i in range(8):
        a(f'v_add_u32 v{V_XOFF+i}, {i*16384}, v{17 if i % 2 == 0 else 18}')
    a(f'''
    v_lshlrev_b32 v18, 4, v0
    s_lshl_b32 s{S_T}, s2, 3
    s_lshl_b32 s{S_T+1}, s{S_W}, 1
    s_add_u32 s58, s{S_T}, s{S_T+1}
    s_lshl_b32 s59, s58, 11
    s_waitcnt lgkmcnt(0)
    {'s_memtime s[78:79]' if stamp else ''}
    s_mov_b32 s{S_X}, s60
    s_mov_b32 s{S_X+1}, s61
    s_mov_b32 s{S_X+2}, {2048*1024*2}
    s_mov_b32 s{S_X+3}, 0x20000
    s_cmp_eq_u32 s{S_WC}, 0
    s_cselect_b32 s{S_WA}, s64, s66
    s_cselect_b32 s{S_WA+1}, s65, s67
    s_mov_b32 s{S_WA+2}, {7168*1024}
    s_mov_b32 s{S_WA+3}, 0x20000
    s_cmp_eq_u32 s{S_ODD}, 1
    s_cselect_b32 s{S_WB}, s62, s{S_WA}
    s_cselect_b32 s{S_WB+1}, s63, s{S_WA+1}
    s_lshl_b32 s{S_WB+2}, s{S_T+3}, 10
    s_mov_b32 s{S_WB+3}, 0x20000
    s_mov_b32 s{S_WC4}, s62
    s_mov_b32 s{S_WC4+1}, s63
    s_mov_b32 s{S_WC4+2}, {6144*1024}
    s_mov_b32 s{S_WC4+3}, 0x20000
    ''')
    def dma_x(buf):
        L = []
        for i in range(8):
            L.append([f's_add_u32 m0, s{S_LX}, {XBUF[buf] + i*1024}',
                      f'buffer_load_dwordx4 v{V_XOFF+i}, s[{S_X}:{S_X+3}], s{S_XK} offen lds'])
        L[-1] += [f's_add_u32 s{S_XK}, s{S_XK}, 128', f's_and_b32 s{S_XK}, s{S_XK}, 2047']
        return L
    def dma_w(buf, ks):
        L = []
        for q in range(5):
            g = max(0, q - 2)
            io = q * 64 if q < 3 else 0
            srd = (S_WA, S_WB, S_WC4)[g]
            L.append([f's_add_u32 m0, s{S_LW}, {WBUF[buf] + ks*20480 + q*1024 - io}',
                      f'buffer_load_dwordx4 v{V_WOFF+g}, s[{srd}:{srd+3}], s{S_WK+g} offen offset:{io} lds'])
            if q == 0: L[-1].append(f's_add_u32 s{S_HS}, s{S_HS}, 1')
            if q == 1: L[-1].append(f's_and_b32 s{S_HS}, s{S_HS}, 31')
            if q >= 2: L[-1].append(f's_mul_i32 s{S_WK+g}, s{S_HS}, s{S_WI+g}')
        return L
    def flat(L): return [x for it in L for x in it]
    for l in flat(dma_w(0, 0)) + flat(dma_x(0)): a(l)
    a(f'''
    s_mov_b32 s80, s70
    s_mov_b32 s81, s71
    s_mov_b32 s82, 2048
    s_mov_b32 s83, 0x20000
    s_mov_b32 s{S_WS}, s72
    s_mov_b32 s{S_WS+1}, s73
    s_mov_b32 s{S_WS+2}, 0x10000000
    s_mov_b32 s{S_WS+3}, 0x20000
    ''')
    gl = [[f'buffer_load_dwordx4 v[28:31], v18, s[{S_X}:{S_X+3}], s59 offen'],
          [f'buffer_load_dwordx4 v[32:35], v18, s[{S_X}:{S_X+3}], s59 offen offset:1024'],
          [f'buffer_load_dwordx4 v[36:39], v18, s[{S_X}:{S_X+3}], s59 offen offset:2048'],
          [f'buffer_load_dwordx4 v[40:43], v18, s[{S_X}:{S_X+3}], s59 offen offset:3072'],
          ['buffer_load_dwordx4 v[20:23], v18, s[80:83], 0 offen'],
          ['buffer_load_dwordx4 v[24:27], v18, s[80:83], 0 offen offset:1024']]
    pf_setup = f'''
    s_cmp_eq_u32 s{S_W}, 0
    s_cselect_b32 s{S_PF}, s62, s64
    s_cselect_b32 s{S_PF+1}, s63, s65
    s_cselect_b32 s{S_T}, 24, 28
    s_cmp_eq_u32 s{S_W}, 2
    s_cselect_b32 s{S_PF}, s66, s{S_PF}
    s_cselect_b32 s{S_PF+1}, s67, s{S_PF+1}
    s_lshl_b32 s{S_PF+2}, s{S_T}, 18
    s_lshl_b32 s{S_PI}, s{S_T}, 14
    s_mov_b32 s{S_PF+3}, 0x20000
    s_and_b32 s{S_T+1}, s2, 7
    s_lshl_b32 s{S_PS}, s{S_T+1}, 1
    s_add_u32 s{S_PS}, s{S_PS}, 1
    s_lshl_b32 s{S_T+2}, s{S_T+1}, 5
    s_lshr_b32 s{S_T+4}, s2, 3
    s_lshl_b32 s{S_T+5}, s{S_T+4}, 9
    s_add_u32 s{S_T+2}, s{S_T+2}, s{S_T+5}
    s_lshl_b32 s{S_T+5}, s{S_T+4}, 6
    s_cmp_eq_u32 s{S_W}, 3
    s_cselect_b32 s{S_PF}, s60, s{S_PF}
    s_cselect_b32 s{S_PF+1}, s61, s{S_PF+1}
    s_cselect_b32 s{S_PF+2}, s{S_X+2}, s{S_PF+2}
    s_cselect_b32 s{S_T}, 0x800, s{S_T}
    s_cselect_b32 s{S_PI}, 0x80, s{S_PI}
    s_cselect_b32 s{S_T+2}, s{S_T+5}, s{S_T+2}
    s_cselect_b32 s{S_T+4}, 5, 8
    s_mul_i32 s{S_PK}, s{S_PS}, s{S_PI}
    v_lshrrev_b32 v19, 5, v0
    v_lshlrev_b32 v19, s{S_T+4}, v19
    v_and_b32 v{V_PF}, 31, v0
    v_add3_u32 v{V_PF}, v{V_PF}, v19, s{S_T+2}
    v_mul_lo_u32 v{V_PF}, v{V_PF}, s{S_T}
    '''
    pf_switch = f'''
    s_lshl_b32 s{S_T+5}, s2, 6
    v_add_u32 v19, s{S_T+5}, v0
    v_lshlrev_b32 v19, 5, v19
    s_cmp_eq_u32 s{S_W}, 3
    s_cselect_b32 s{S_PF}, s68, s{S_PF}
    s_cselect_b32 s{S_PF+1}, s69, s{S_PF+1}
    s_cselect_b32 s{S_PF+2}, s{S_WA+2}, s{S_PF+2}
    s_cselect_b32 s{S_PI}, 0x80000, s{S_PI}
    s_cselect_b32 s{S_PS}, 0, s{S_PS}
    s_cselect_b32 s{S_PK}, 0, s{S_PK}
    s_cselect_b64 vcc, -1, 0
    v_cndmask_b32 v{V_PF}, v{V_PF}, v19, vcc
    '''
    pfi = [f'buffer_load_dword v{V_PD}, v{V_PF}, s[{S_PF}:{S_PF+3}], s{S_PK} offen', f's_add_u32 s{S_PS}, s{S_PS}, 1', f's_and_b32 s{S_PS}, s{S_PS}, 15',
           f's_mul_i32 s{S_PK}, s{S_PS}, s{S_PI}']
    a(pf_setup)
    for l in flat(dma_w(0, 1)): a(l)
    for k in range(PD):
        for l in pfi: a(l)
    a(pf_switch)
    NP = 1 if pf else 0
    if stamp: a('s_memtime s[84:85]')
    a(f'''
    v_and_b32 v44, 15, v0
    v_lshrrev_b32 v46, 4, v0
    v_lshrrev_b32 v19, 1, v44
    v_xor_b32 v19, v19, v46
    v_lshlrev_b32 v19, 4, v19
    v_lshl_add_u32 v19, v44, 7, v19
    s_lshl_b32 s{S_T}, s{S_WR}, 14
    v_add_u32 v{V_XRD}, s{S_T}, v19
    v_xor_b32 v{V_XRD+1}, 64, v{V_XRD}
    v_lshrrev_b32 v19, 5, v0
    v_mul_u32_u24 v19, 10240, v19
    v_and_b32 v45, 1, v46
    v_lshl_add_u32 v19, v45, 9, v19
    v_xor_b32 v45, s{S_WC}, v45
    v_lshl_add_u32 v19, v45, 5, v19
    v_lshrrev_b32 v45, 2, v44
    v_lshl_add_u32 v19, v45, 6, v19
    v_and_b32 v45, 3, v44
    v_lshl_add_u32 v19, v45, 3, v19
    v_add_u32 v{V_WRD}, {WBUF[0]}, v19
    v_add_u32 v{V_WRD+1}, {WBUF[1]}, v19
    ''')
    zero = [f'v_mov_b32 v{r}, 0' for r in range(48, 256)] + [f'v_accvgpr_write_b32 a{r}, 0' for r in range(112)]
    if stamp: a('s_memtime s[86:87]')
    def reads(buf, ks, st, order='w'):
        xs = [f'ds_read_b128 {rng(xfrag(st, tb))}, v{V_XRD+ks} offset:{XBUF[buf] + tb*2048}' for tb in range(8)]
        ws = []
        for t in range(5):
            for half in range(2):
                r = wfrag(st, half, t)
                for h in range(2):
                    ws.append(f'ds_read_b64_tr_b16 {r[0]}[{r[1]+2*h}:{r[1]+2*h+1}], v{V_WRD+buf} offset:{ks*20480 + half*5120 + t*1024 + h*256}')
        return ws[:2] + xs + ws[2:]
    def mf(st, half, t, tb):
        c = rng(acc(half, t, tb))
        return f'v_mfma_f32_16x16x32_bf16 {c}, {rng(wfrag(st, half, t))}, {rng(xfrag(st, tb))}, {c}'
    def mfmas(st):
        o = os.environ.get('ORD', '0')
        if o == '1': return [mf(st, half, t, tb) for tb in range(8) for t in range(5) for half in range(2)]
        if o == '2': return [mf(st, (i + tb) % 2, ((i + tb) % 10) // 2, tb) for i in range(10) for tb in range(8)]
        if o == '3': return [mf(st, half, t, tb if (2*t+half) % 2 == 0 else 7 - tb) for t in range(5) for half in range(2) for tb in range(8)]
        return [mf(st, half, t, tb) for t in range(5) for half in range(2) for tb in range(8)]
    gate = ['v_mov_b32 v44, 0', 'v_mov_b32 v45, 0']
    for j in range(8):
        gate += [f'v_dot2_f32_bf16 v44, v{28+j}, v{20+j}, v44', f'v_dot2_f32_bf16 v45, v{36+j}, v{20+j}, v45']
    for d in ('quad_perm:[1,0,3,2] row_mask:0xf', 'quad_perm:[2,3,0,1] row_mask:0xf', 'row_half_mirror row_mask:0xf', 'row_mirror row_mask:0xf',
              'row_bcast:15 row_mask:0xa', 'row_bcast:31 row_mask:0xc'):
        gate += [f'v_add_f32_dpp v44, v44, v44 {d} bank_mask:0xf', f'v_add_f32_dpp v45, v45, v45 {d} bank_mask:0xf']
    gate += [f'v_mul_f32 v44, {NLOG2E:#x}, v44', f'v_mul_f32 v45, {NLOG2E:#x}, v45', 'v_exp_f32 v44, v44', 'v_exp_f32 v45, v45',
             'v_add_f32 v44, 1.0, v44', 'v_add_f32 v45, 1.0, v45', 'v_rcp_f32 v46, v44', 'v_rcp_f32 v47, v45',
             'v_mov_b32 v20, 0', 'v_mov_b32 v21, 0', 'v_mov_b32 v22, 0', 'v_mov_b32 v23, 0', f's_lshl_b32 s{S_PM}, s58, 11', f's_add_u32 s{S_PM}, s{S_PM}, {WS_PART:#x}']
    a(f's_waitcnt vmcnt({5+PD})\ns_barrier')
    for l in reads(0, 0, 0): a(l)
    a(f's_mov_b32 s{S_CNT}, 6')
    if stamp == 2: a('s_mov_b32 s101, 0\nv_mov_b32 v19, 0')
    if stamp: a('s_memtime s[88:89]')
    def step(st, wait, rd, dm, barrier=True, sc=None, valu=(), first=False):
        a(wait)
        if barrier: a('s_barrier')
        if stamp == 2:
            a('s_mov_b32 m0, s101\ns_nop 0\nv_writelane_b32 v19, s86, m0\ns_add_u32 s101, s101, 1\ns_memtime s[86:87]')
        body = mfmas(st)
        if first: body = [m.rsplit(',', 1)[0] + ', 0' for m in body]
        rs, re_, ds, de = sc if sc else sched if sched else (1, 57, 2, 74)
        slots = {}
        for k, it in enumerate(valu):
            slots.setdefault(2 + k * 76 // len(valu), []).append([it])
        for k, it in enumerate(rd):
            slots.setdefault(rs + k * (re_ - rs) // max(len(rd), 1), []).append([it])
        for k, it in enumerate(dm):
            slots.setdefault(ds + k * (de - ds) // max(len(dm), 1), []).append(it)
        for idx, m in enumerate(body):
            pre = [it for it in slots.get(idx, []) if it[0].startswith('s_add_u32 m0')]
            for it in pre: a(it[0])
            a(m)
            for it in slots.get(idx, []):
                for l in (it[1:] if it in pre else it): a(l)
    P1 = [pfi] if pf else []
    ZF = [[f'buffer_store_dwordx4 v[20:23], v18, s[{S_WS}:{S_WS+3}], s{S_PM} offen offset:{k*1024} sc1'] for k in range(4)]
    step(0, f's_waitcnt vmcnt({PD}) lgkmcnt(0)', reads(0, 1, 1), dma_w(1, 0) + dma_x(1) + dma_w(1, 1) + dma_w(0, 0) + P1, sc=(1, 57, 0, 72), first=True)
    step(1, 's_waitcnt vmcnt(11) lgkmcnt(0)', reads(1, 0, 0), dma_x(0) + gl + P1)
    step(0, f's_waitcnt vmcnt(21) lgkmcnt(0)', reads(1, 1, 1), dma_w(0, 1) + dma_w(1, 0) + P1)
    step(1, f's_waitcnt vmcnt(12) lgkmcnt(0)', reads(0, 0, 0), dma_x(1), valu=gate)
    m0 = a.mark()
    a.label(f'{name}_loop')
    for p in range(2):
        step(0, f's_waitcnt vmcnt({13+NP}) lgkmcnt(0)', reads(p, 1, 1), dma_w(1 - p, 1) + dma_w(p, 0) + P1)
        step(1, f's_waitcnt vmcnt({10+NP}) lgkmcnt(0)', reads(1 - p, 0, 0), dma_x(p))
    a(f's_sub_u32 s{S_CNT}, s{S_CNT}, 1\ns_cmp_lg_u32 s{S_CNT}, 0\ns_cbranch_scc1 {name}_loop')
    m1 = a.mark()
    extra = [[f's_lshl_b32 s59, s58, 2', f's_add_u32 s59, s59, {WS_G:#x}', 'v_mov_b32 v18, 0', 's_mov_b32 exec_lo, 0', 's_mov_b32 exec_hi, 0x80000000',
              f'buffer_store_dwordx2 v[46:47], v18, s[{S_WS}:{S_WS+3}], s59 offen',
              f's_lshl_b32 s59, s58, 7', f's_add_u32 s59, s59, {WS_FLAG:#x}', 's_mov_b64 exec, 15', 'v_lshlrev_b32 v19, 6, v0',
              f'buffer_store_dword v18, v19, s[{S_WS}:{S_WS+3}], s59 offen', 's_mov_b64 exec, -1']]
    extra.append(['s_mov_b32 s80, s74', 's_mov_b32 s81, s75', f's_mov_b32 s82, {1024*2048}', 's_lshl_b32 s59, s58, 10', 'v_lshlrev_b32 v18, 5, v0',
                  'buffer_load_dword v6, v18, s[80:83], s59 offen'])
    NE = 3
    if code_from:
        extra.append([f's_getpc_b64 s[{S_PF}:{S_PF+1}]', f'{name}_pc:',
                      f's_mov_b32 s{S_PF+2}, {code_to}-{name}_pc', f's_lshr_b32 s{S_T}, s2, 3', f's_lshl_b32 s{S_T}, s{S_T}, 2', f's_add_u32 s{S_T}, s{S_T}, s{S_W}',
                      f's_lshl_b32 s{S_T}, s{S_T}, 9', f'v_lshlrev_b32 v{V_PF}, 3, v0',
                      f'buffer_load_dword v5, v{V_PF}, s[{S_PF}:{S_PF+3}], s{S_T} offen'])
        NE = 4
    NE += 4
    step(0, f's_waitcnt vmcnt({13+NP}) lgkmcnt(0)', reads(0, 1, 1), dma_w(1, 1) + ZF + extra)
    step(1, f's_waitcnt vmcnt({5+NE}) lgkmcnt(0)', reads(1, 0, 0), [])
    if stamp: a('s_memtime s[94:95]')

    if stamp == 2:
        a(f'''
        s_waitcnt lgkmcnt(0)
        s_mov_b32 m0, s101
        s_nop 0
        v_writelane_b32 v19, s86, m0
        s_lshl_b32 s74, s2, 2
        s_add_u32 s74, s74, s{S_W}
        s_lshl_b32 s74, s74, 8
        s_add_u32 s74, s74, 0x8400000
        v_lshlrev_b32 v18, 2, v0
        buffer_store_dword v19, v18, s[{S_WS}:{S_WS+3}], s74 offen
        s_waitcnt vmcnt(0)
        ''')
    a(f'''
    v_lshlrev_b32 v1, 4, v0
    s_mov_b32 s70, {NLOG2E:#x}
    s_mov_b32 s71, {NLOG2E:#x}
    s_lshl_b32 s{S_T}, s{S_RB}, 3
    s_lshl_b32 s{S_T+1}, s{S_WR}, 2
    s_add_u32 s{S_T}, s{S_T}, s{S_T+1}
    s_mul_i32 s72, s{S_T}, {OH_TB}
    s_lshl_b32 s{S_T+1}, s{S_F0}, 6
    s_add_u32 s72, s72, s{S_T+1}
    s_lshl_b32 s{S_T+1}, s{S_WC}, 10
    s_add_u32 s72, s72, s{S_T+1}
    s_add_u32 s72, s72, {WS_OH + 1024*64}
    s_lshl_b32 s73, s{S_T}, 10
    s_lshl_b32 s{S_T+1}, s{S_WC}, 16
    s_add_u32 s73, s73, s{S_T+1}
    s_lshl_b32 s69, s{S_T}, 11
    s_lshl_b32 s{S_T+1}, s{S_WC}, 8
    s_add_u32 s69, s69, s{S_T+1}
    v_and_b32 v18, 15, v0
    v_lshrrev_b32 v19, 4, v0
    v_lshlrev_b32 v2, 4, v18
    v_lshl_add_u32 v2, v19, 9, v2
    v_lshlrev_b32 v3, 5, v18
    v_lshl_add_u32 v3, v19, 3, v3
    v_add_u32 v3, s{S_LX}, v3
    v_lshrrev_b32 v4, 5, v0
    v_lshlrev_b32 v4, 9, v4
    v_and_b32 v19, 1, v19
    v_lshl_add_u32 v4, v19, 7, v4
    v_lshrrev_b32 v19, 2, v18
    v_lshl_add_u32 v4, v19, 5, v4
    v_and_b32 v19, 3, v18
    v_lshl_add_u32 v4, v19, 3, v4
    v_add_u32 v4, s{S_LX}, v4
    ''')
    ws = f's[{S_WS}:{S_WS+3}]'
    def M(t): return [mf(st, half, t, tb) for st in range(2) for half in range(2) for tb in range(8)]
    def getv(L, r, tmp):
        if r[0] == 'v': return r[1]
        for j in range(4): L.append(f'v_accvgpr_read_b32 v{tmp+j}, a{r[1]+j}')
        return tmp
    def epi_ffn(t):
        L = []
        for tbp in range(4):
            G = [getv(L, acc(0, t, 2*tbp + i), 16 + 4*i) for i in range(2)]
            U = [getv(L, acc(1, t, 2*tbp + i), 48 + 4*i) for i in range(2)]
            E = [24 + 12*(tbp % 2) + 4*i for i in range(2)]
            O = 32 + 12*(tbp % 2)
            for i in range(2):
                for j in (0, 2): L.append(f'v_pk_mul_f32 v[{E[i]+j}:{E[i]+j+1}], v[{G[i]+j}:{G[i]+j+1}], s[70:71]')
            for i in range(2):
                for j in range(4): L += (['@M'] if i == 0 else []) + [f'v_exp_f32 v{E[i]+j}, v{E[i]+j}']
            for i in range(2):
                for j in (0, 2): L.append(f'v_pk_mul_f32 v[{U[i]+j}:{U[i]+j+1}], v[{G[i]+j}:{G[i]+j+1}], v[{U[i]+j}:{U[i]+j+1}]')
            for i in range(2):
                for j in (0, 2): L.append(f'v_pk_add_f32 v[{E[i]+j}:{E[i]+j+1}], v[{E[i]+j}:{E[i]+j+1}], 1.0 op_sel_hi:[1,0]')
            for i in range(2):
                for j in range(4): L += (['@M'] if i == 0 else []) + [f'v_rcp_f32 v{E[i]+j}, v{E[i]+j}']
            L.append(f's_add_u32 s74, s72, {t*2048 + tbp*OH_TB}')
            for i in range(2):
                for j in (0, 2): L.append(f'v_pk_mul_f32 v[{U[i]+j}:{U[i]+j+1}], v[{U[i]+j}:{U[i]+j+1}], v[{E[i]+j}:{E[i]+j+1}]')
            for i in range(2):
                for j in range(2): L.append(f'v_cvt_pk_bf16_f32 v{O+2*i+j}, v{U[i]+2*j}, v{U[i]+2*j+1}')
            L += [f'v_permlane16_swap_b32 v{O}, v{O+2}', f'v_permlane16_swap_b32 v{O+1}, v{O+3}',
                  f'buffer_store_dwordx4 v[{O}:{O+3}], v1, {ws}, s74 offen {store_mod}']
        return L
    def epi_qk(t, scol, packed=True):
        L = [f's_cmp_lt_u32 s{scol}, 1024', f's_cselect_b32 s76, {QSCALE:#x}, 1.0', 's_mov_b32 s77, s76',
             f's_lshl_b32 s75, s{scol}, 12', 's_add_u32 s75, s75, s73']
        for half in range(2):
            for tbp in range(4):
                X = [getv(L, acc(half, t, 2*tbp + i), 48 + 4*i + 8*(tbp % 2)) for i in range(2)]
                O = 24 + 4*(tbp % 4)
                for i in range(2):
                    if packed:
                        for j in (0, 2): L.append(f'v_pk_mul_f32 v[{X[i]+j}:{X[i]+j+1}], v[{X[i]+j}:{X[i]+j+1}], s[76:77]')
                    else:
                        for j in range(4): L.append(f'v_mul_f32 v{X[i]+j}, s76, v{X[i]+j}')
                L.append(f's_add_u32 s74, s75, {WS_QKV + half*131072 + tbp*1024}')
                for i in range(2):
                    for j in range(2): L.append(f'v_cvt_pk_bf16_f32 v{O+2*i+j}, v{X[i]+2*j}, v{X[i]+2*j+1}')
                L += [f'v_permlane16_swap_b32 v{O}, v{O+2}', f'v_permlane16_swap_b32 v{O+1}, v{O+3}',
                      f'buffer_store_dwordx4 v[{O}:{O+3}], v1, {ws}, s74 offen {store_mod}']
        return L
    def epi_v(t, scol):
        L = [f's_lshl_b32 s75, s{scol}, 12', 's_add_u32 s75, s75, s69']
        units = [(half, tbp) for half in range(2) for tbp in range(4)]
        for u, (half, tbp) in enumerate(units):
            X = [getv(L, acc(half, t, 2*tbp + i), 48 + 4*i + 8*(u % 2)) for i in range(2)]
            C = 16 + 4*(u % 2)
            for i in range(2):
                for j in range(2): L.append(f'v_cvt_pk_bf16_f32 v{C+2*i+j}, v{X[i]+2*j}, v{X[i]+2*j+1}')
            for i in range(2): L.append(f'ds_write_b64 v3, v[{C+2*i}:{C+2*i+1}] offset:{u*1024 + i*512}')
        L.append('s_waitcnt lgkmcnt(0)')
        for u in range(8):
            O = 64 + 4*u
            for rr in range(2): L.append(f'ds_read_b64_tr_b16 v[{O+2*rr}:{O+2*rr+1}], v4 offset:{u*1024 + rr*256}')
        for u, (half, tbp) in enumerate(units):
            O = 64 + 4*u
            L += [f's_add_u32 s74, s75, {WS_QKV + half*131072 + tbp*2048}', f's_waitcnt lgkmcnt({14 - 2*u})',
                  f'buffer_store_dwordx4 v[{O}:{O+3}], v2, {ws}, s74 offen {store_mod}']
        return L
    def merge(mm, ep):
        if '@M' in ep:
            it = iter(mm)
            for l in ep: a(next(it) if l == '@M' else l)
            assert next(it, None) is None
            return
        n = len(mm); k = 0
        for i, m in enumerate(mm):
            a(m)
            upto = (i + 1) * len(ep) // n
            while k < upto: a(ep[k]); k += 1
    a(f's_waitcnt vmcnt({NE}) lgkmcnt(0)\ns_barrier')
    rd = reads(1, 1, 1); mm = M(0)
    for i in range(16):
        a(mm[i])
        for l in rd[2*i:2*i+2]: a(l)
    a('s_waitcnt lgkmcnt(0)')
    for i in range(16, 32): a(mm[i])
    for t in (1, 2, 3): merge(M(t), epi_ffn(t - 1))
    paths = []
    a(f's_cmp_eq_u32 s{S_ODD}, 1\ns_cbranch_scc1 {name}_o3')
    p0 = a.mark()
    merge(M(4), epi_ffn(3))
    a(f's_branch {name}_s4')
    p1 = a.mark()
    a.label(f'{name}_o3')
    a(f's_cmp_ge_u32 s{S_N3}, 2048\ns_cbranch_scc1 {name}_o3v')
    p2 = a.mark()
    merge(M(4), epi_qk(3, S_N3, packed=False))
    a(f's_branch {name}_s4')
    p3 = a.mark()
    a.label(f'{name}_o3v')
    merge(M(4), epi_v(3, S_N3))
    p4 = a.mark()
    a.label(f'{name}_s4')
    a(f's_nop 4\ns_cmp_ge_u32 s{S_N4}, 2048\ns_cbranch_scc1 {name}_o4v')
    p5 = a.mark()
    for l in epi_qk(4, S_N4): a(l)
    a(f's_branch {name}_fin')
    p6 = a.mark()
    a.label(f'{name}_o4v')
    for l in epi_v(4, S_N4): a(l)
    p7 = a.mark()
    a.label(f'{name}_fin')
    if stamp:
        a(f'''
        s_waitcnt vmcnt(0)
        s_memtime s[96:97]
        s_memrealtime s[98:99]
        s_waitcnt lgkmcnt(0)
        v_mov_b32 v4, s90
        v_mov_b32 v5, s94
        v_mov_b32 v6, s96
        v_mov_b32 v7, s92
        v_mov_b32 v8, s98
        v_mov_b32 v9, s88
        v_mov_b32 v10, 0
        s_lshl_b32 s74, s2, 2
        s_add_u32 s74, s74, s{S_W}
        s_lshl_b32 s74, s74, 6
        v_mov_b32 v12, s78
        v_mov_b32 v13, s84
        v_mov_b32 v14, s86
        v_mov_b32 v15, s86
        s_add_u32 s74, s74, 0x8000000
        s_mov_b32 exec_lo, 1
        s_mov_b32 exec_hi, 0
        buffer_store_dwordx4 v[4:7], v10, {ws}, s74 offen
        buffer_store_dwordx2 v[8:9], v10, {ws}, s74 offen offset:16
        buffer_store_dwordx4 v[12:15], v10, {ws}, s74 offen offset:32
        ''')
    a.label(f'{name}_end')
    a('s_endpgm')
    base = a.ins[:m1] + a.ins[m0:m1] + a.ins[m1:p0]
    errs = []
    for b4 in (a.ins[p0:p1], a.ins[p1:p3], a.ins[p1:p2] + a.ins[p3:p4]):
        for b5 in (a.ins[p5:p6], a.ins[p6:p7]):
            errs += check_seq(base + b4 + a.ins[p4:p5] + b5 + a.ins[p7:], name)
    errs = [e for e in dict.fromkeys(errs) if f'buffer_load_dword v{V_PD},' not in e]
    for e in errs[:20]: print('CHECK', e)
    return kernel_text(name, a, 512, 102, 256), LDS_BYTES
```

```python
from asmlib import *
import struct

WS_QKV = 0
WS_OH = 0x1000000
WS_G = 0x2200000
WS_FLAG = 0x2300000
WS_PART = 0x2400000
OH_TB = 4608 * 64
LOG2E = 1.4426950408889634
def f2u(f): return struct.unpack('<I', struct.pack('<f', f))[0]
QSCALE = f2u(32 ** -0.5 * LOG2E)
NLOG2E = f2u(-LOG2E)

XBUF = [0, 32768]
WBUF = [65536, 65536 + 40960]
LDS_BYTES = 65536 + 81920

def acc(half, t, tb):
    idx = (t * 2 + half) * 8 + tb
    if idx < 52: return ('v', 48 + 4 * idx)
    return ('a', 4 * (idx - 52))
def rng(r, n=4): return f'{r[0]}[{r[1]}:{r[1]+n-1}]'
def xfrag(st, tb): return ('a', 112 + 72 * st + 4 * tb)
def wfrag(st, half, t): return ('a', 112 + 72 * st + 32 + 4 * (half * 5 + t))

V_XOFF = 1
V_WOFF = 9
V_XRD = 12
V_WRD = 14
V_PF = 16
V_PD = 17
S_X, S_WA, S_WB, S_WC4, S_WS, S_PF = 4, 8, 12, 16, 20, 24
S_XK, S_WK, S_WI = 28, 29, 32
S_LX, S_LW, S_CNT, S_W, S_WR, S_WC, S_RB, S_CT, S_PK, S_PI = 35, 36, 37, 38, 39, 40, 41, 42, 43, 44
S_F0, S_N3, S_N4, S_ODD, S_HS = 45, 46, 47, 48, 49
S_PS, S_PM = 3, 57
S_T = 50
import os
PD = int(os.environ.get("PD", "1"))

def gen(name='k1_kernel', stamp=False, sched=None, store_mod='', code_from=None, code_to=None, pf=True):
    a = Asm()
    a(f'''
    s_cmp_ge_u32 s2, 256
    s_cbranch_scc1 {name}_end
    s_load_dwordx4 s[60:63], s[0:1], 0
    s_load_dwordx8 s[64:71], s[0:1], 32
    s_getpc_b64 s[{S_PF}:{S_PF+1}]
    {name}_pc0:
    s_mov_b32 s{S_PF+2}, {name}_pc-{name}_pc0
    s_mov_b32 s{S_PF+3}, 0x20000
    s_lshr_b32 s{S_T}, s2, 3
    s_lshl_b32 s{S_T}, s{S_T}, 10
    v_lshlrev_b32 v16, 2, v0
    buffer_load_dword v47, v16, s[{S_PF}:{S_PF+3}], s{S_T} offen
    s_load_dwordx2 s[72:73], s[0:1], 80
    s_load_dwordx2 s[74:75], s[0:1], 16
    v_lshrrev_b32 v16, 6, v0
    v_and_b32 v0, 63, v0
    v_readfirstlane_b32 s{S_W}, v16
    s_and_b32 s{S_T}, s2, 7
    s_lshr_b32 s{S_T+1}, s2, 3
    s_and_b32 s{S_RB}, s{S_T+1}, 7
    s_lshr_b32 s{S_T+1}, s{S_T+1}, 3
    s_lshl_b32 s{S_CT}, s{S_T}, 2
    s_add_u32 s{S_CT}, s{S_CT}, s{S_T+1}
    s_lshr_b32 s{S_WR}, s{S_W}, 1
    s_and_b32 s{S_WC}, s{S_W}, 1
    ''')
    if stamp: a('s_memtime s[90:91]\ns_memrealtime s[92:93]')
    a(f'''
    s_and_b32 s{S_ODD}, s{S_CT}, 1
    s_lshr_b32 s{S_T}, s{S_CT}, 1
    s_mul_i32 s{S_F0}, s{S_T}, 224
    s_lshl_b32 s{S_T+1}, s{S_ODD}, 7
    s_add_u32 s{S_F0}, s{S_F0}, s{S_T+1}
    s_lshl_b32 s{S_N4}, s{S_T}, 6
    s_add_u32 s{S_N3}, s{S_N4}, 1024
    s_lshl_b32 s{S_T+2}, s{S_ODD}, 11
    s_add_u32 s{S_N4}, s{S_N4}, s{S_T+2}
    s_movk_i32 s{S_T+2}, 7168
    s_cmp_eq_u32 s{S_ODD}, 1
    s_cselect_b32 s{S_T+3}, 6144, s{S_T+2}
    s_lshl_b32 s{S_T+4}, s{S_WC}, 5
    s_add_u32 s{S_T+5}, s{S_N3}, s{S_T+4}
    s_add_u32 s{S_T+6}, s{S_F0}, 96
    s_cmp_eq_u32 s{S_ODD}, 1
    s_cselect_b32 s{S_T+5}, s{S_T+5}, s{S_T+6}
    s_add_u32 s{S_T+6}, s{S_N4}, s{S_T+4}
    s_mov_b32 s{S_WI}, {7168*32}
    s_lshl_b32 s{S_WI+1}, s{S_T+3}, 5
    s_mov_b32 s{S_WI+2}, {6144*32}
    s_and_b32 s{S_HS}, s2, 7
    s_lshl_b32 s{S_XK}, s{S_HS}, 8
    s_lshl_b32 s{S_HS}, s{S_HS}, 2
    s_mul_i32 s{S_WK}, s{S_HS}, s{S_WI}
    s_mul_i32 s{S_WK+1}, s{S_HS}, s{S_WI+1}
    s_mul_i32 s{S_WK+2}, s{S_HS}, s{S_WI+2}
    s_lshl_b32 s{S_LX}, s{S_W}, 13
    s_mul_i32 s{S_LW}, s{S_WR}, 10240
    s_mul_i32 s{S_T}, s{S_WC}, 5120
    s_add_u32 s{S_LW}, s{S_LW}, s{S_T}
    v_lshrrev_b32 v17, 2, v0
    s_lshl_b32 s{S_T}, s{S_WR}, 4
    v_add_u32 v17, s{S_T}, v17
    v_lshrrev_b32 v18, 5, v0
    v_lshlrev_b32 v18, 1, v18
    v_and_b32 v19, 3, v0
    v_xor_b32 v18, v18, v19
    v_lshlrev_b32 v18, 4, v18
    v_mul_u32_u24 v{V_WOFF}, 7168, v17
    v_mul_lo_u32 v{V_WOFF+1}, v17, s{S_T+3}
    v_mul_u32_u24 v{V_WOFF+2}, 6144, v17
    s_lshl_b32 s{S_T}, s{S_F0}, 1
    s_lshl_b32 s{S_T+5}, s{S_T+5}, 1
    s_lshl_b32 s{S_T+6}, s{S_T+6}, 1
    v_add3_u32 v{V_WOFF}, v{V_WOFF}, v18, s{S_T}
    v_add3_u32 v{V_WOFF+1}, v{V_WOFF+1}, v18, s{S_T+5}
    v_add3_u32 v{V_WOFF+2}, v{V_WOFF+2}, v18, s{S_T+6}
    v_lshrrev_b32 v17, 3, v0
    s_lshl_b32 s{S_T}, s{S_RB}, 8
    s_lshl_b32 s{S_T+1}, s{S_W}, 6
    s_add_u32 s{S_T}, s{S_T}, s{S_T+1}
    v_add_u32 v17, s{S_T}, v17
    v_lshlrev_b32 v17, 11, v17
    v_and_b32 v18, 7, v0
    v_lshrrev_b32 v19, 4, v0
    v_xor_b32 v18, v18, v19
    v_lshlrev_b32 v18, 4, v18
    v_add_u32 v17, v17, v18
    v_xor_b32 v18, 64, v17
    ''')
    for i in range(8):
        a(f'v_add_u32 v{V_XOFF+i}, {i*16384}, v{17 if i % 2 == 0 else 18}')
    a(f'''
    v_lshlrev_b32 v18, 4, v0
    s_lshl_b32 s{S_T}, s2, 3
    s_lshl_b32 s{S_T+1}, s{S_W}, 1
    s_add_u32 s58, s{S_T}, s{S_T+1}
    s_lshl_b32 s59, s58, 11
    s_waitcnt lgkmcnt(0)
    {'s_memtime s[78:79]' if stamp else ''}
    s_mov_b32 s{S_X}, s60
    s_mov_b32 s{S_X+1}, s61
    s_mov_b32 s{S_X+2}, {2048*1024*2}
    s_mov_b32 s{S_X+3}, 0x20000
    s_cmp_eq_u32 s{S_WC}, 0
    s_cselect_b32 s{S_WA}, s64, s66
    s_cselect_b32 s{S_WA+1}, s65, s67
    s_mov_b32 s{S_WA+2}, {7168*1024}
    s_mov_b32 s{S_WA+3}, 0x20000
    s_cmp_eq_u32 s{S_ODD}, 1
    s_cselect_b32 s{S_WB}, s62, s{S_WA}
    s_cselect_b32 s{S_WB+1}, s63, s{S_WA+1}
    s_lshl_b32 s{S_WB+2}, s{S_T+3}, 10
    s_mov_b32 s{S_WB+3}, 0x20000
    s_mov_b32 s{S_WC4}, s62
    s_mov_b32 s{S_WC4+1}, s63
    s_mov_b32 s{S_WC4+2}, {6144*1024}
    s_mov_b32 s{S_WC4+3}, 0x20000
    ''')
    def dma_x(buf):
        L = []
        for i in range(8):
            L.append([f's_add_u32 m0, s{S_LX}, {XBUF[buf] + i*1024}',
                      f'buffer_load_dwordx4 v{V_XOFF+i}, s[{S_X}:{S_X+3}], s{S_XK} offen lds'])
        L[-1] += [f's_add_u32 s{S_XK}, s{S_XK}, 128', f's_and_b32 s{S_XK}, s{S_XK}, 2047']
        return L
    def dma_w(buf, ks):
        L = []
        for q in range(5):
            g = max(0, q - 2)
            io = q * 64 if q < 3 else 0
            srd = (S_WA, S_WB, S_WC4)[g]
            L.append([f's_add_u32 m0, s{S_LW}, {WBUF[buf] + ks*20480 + q*1024 - io}',
                      f'buffer_load_dwordx4 v{V_WOFF+g}, s[{srd}:{srd+3}], s{S_WK+g} offen offset:{io} lds'])
            if q == 0: L[-1].append(f's_add_u32 s{S_HS}, s{S_HS}, 1')
            if q == 1: L[-1].append(f's_and_b32 s{S_HS}, s{S_HS}, 31')
            if q >= 2: L[-1].append(f's_mul_i32 s{S_WK+g}, s{S_HS}, s{S_WI+g}')
        return L
    def flat(L): return [x for it in L for x in it]
    for l in flat(dma_w(0, 0)) + flat(dma_x(0)): a(l)
    a(f'''
    s_mov_b32 s80, s70
    s_mov_b32 s81, s71
    s_mov_b32 s82, 2048
    s_mov_b32 s83, 0x20000
    s_mov_b32 s{S_WS}, s72
    s_mov_b32 s{S_WS+1}, s73
    s_mov_b32 s{S_WS+2}, 0x10000000
    s_mov_b32 s{S_WS+3}, 0x20000
    ''')
    gl = [[f'buffer_load_dwordx4 v[28:31], v18, s[{S_X}:{S_X+3}], s59 offen'],
          [f'buffer_load_dwordx4 v[32:35], v18, s[{S_X}:{S_X+3}], s59 offen offset:1024'],
          [f'buffer_load_dwordx4 v[36:39], v18, s[{S_X}:{S_X+3}], s59 offen offset:2048'],
          [f'buffer_load_dwordx4 v[40:43], v18, s[{S_X}:{S_X+3}], s59 offen offset:3072'],
          ['buffer_load_dwordx4 v[20:23], v18, s[80:83], 0 offen'],
          ['buffer_load_dwordx4 v[24:27], v18, s[80:83], 0 offen offset:1024']]
    pf_setup = f'''
    s_cmp_eq_u32 s{S_W}, 0
    s_cselect_b32 s{S_PF}, s62, s64
    s_cselect_b32 s{S_PF+1}, s63, s65
    s_cselect_b32 s{S_T}, 24, 28
    s_cmp_eq_u32 s{S_W}, 2
    s_cselect_b32 s{S_PF}, s66, s{S_PF}
    s_cselect_b32 s{S_PF+1}, s67, s{S_PF+1}
    s_lshl_b32 s{S_PF+2}, s{S_T}, 18
    s_lshl_b32 s{S_PI}, s{S_T}, 14
    s_mov_b32 s{S_PF+3}, 0x20000
    s_and_b32 s{S_T+1}, s2, 7
    s_lshl_b32 s{S_PS}, s{S_T+1}, 1
    s_add_u32 s{S_PS}, s{S_PS}, 1
    s_lshl_b32 s{S_T+2}, s{S_T+1}, 5
    s_lshr_b32 s{S_T+4}, s2, 3
    s_lshl_b32 s{S_T+5}, s{S_T+4}, 9
    s_add_u32 s{S_T+2}, s{S_T+2}, s{S_T+5}
    s_lshl_b32 s{S_T+5}, s{S_T+4}, 6
    s_cmp_eq_u32 s{S_W}, 3
    s_cselect_b32 s{S_PF}, s60, s{S_PF}
    s_cselect_b32 s{S_PF+1}, s61, s{S_PF+1}
    s_cselect_b32 s{S_PF+2}, s{S_X+2}, s{S_PF+2}
    s_cselect_b32 s{S_T}, 0x800, s{S_T}
    s_cselect_b32 s{S_PI}, 0x80, s{S_PI}
    s_cselect_b32 s{S_T+2}, s{S_T+5}, s{S_T+2}
    s_cselect_b32 s{S_T+4}, 5, 8
    s_mul_i32 s{S_PK}, s{S_PS}, s{S_PI}
    v_lshrrev_b32 v19, 5, v0
    v_lshlrev_b32 v19, s{S_T+4}, v19
    v_and_b32 v{V_PF}, 31, v0
    v_add3_u32 v{V_PF}, v{V_PF}, v19, s{S_T+2}
    v_mul_lo_u32 v{V_PF}, v{V_PF}, s{S_T}
    v_bfe_u32 v19, v0, 3, 2
    v_min_u32 v19, 2, v19
    v_lshlrev_b32 v19, 11, v19
    v_and_b32 v44, 7, v0
    v_lshl_add_u32 v19, v44, 5, v19
    v_lshrrev_b32 v44, 5, v0
    s_lshr_b32 s{S_T+4}, s2, 3
    s_lshl_b32 s{S_T+4}, s{S_T+4}, 1
    v_add_u32 v44, s{S_T+4}, v44
    v_mul_u32_u24 v44, 6144, v44
    s_lshl_b32 s{S_T+4}, s{S_T+1}, 8
    v_add3_u32 v19, v19, v44, s{S_T+4}
    s_cmp_eq_u32 s{S_W}, 0
    s_cselect_b64 vcc, -1, 0
    v_cndmask_b32 v{V_PF}, v{V_PF}, v19, vcc
    '''
    pf_switch = f'''
    s_lshl_b32 s{S_T+5}, s2, 6
    v_add_u32 v19, s{S_T+5}, v0
    v_lshlrev_b32 v19, 5, v19
    s_cmp_eq_u32 s{S_W}, 3
    s_cselect_b32 s{S_PF}, s68, s{S_PF}
    s_cselect_b32 s{S_PF+1}, s69, s{S_PF+1}
    s_cselect_b32 s{S_PF+2}, s{S_WA+2}, s{S_PF+2}
    s_cselect_b32 s{S_PI}, 0x80000, s{S_PI}
    s_cselect_b32 s{S_PS}, 0, s{S_PS}
    s_cselect_b32 s{S_PK}, 0, s{S_PK}
    s_cselect_b64 vcc, -1, 0
    v_cndmask_b32 v{V_PF}, v{V_PF}, v19, vcc
    '''
    pfi = [f'buffer_load_dword v{V_PD}, v{V_PF}, s[{S_PF}:{S_PF+3}], s{S_PK} offen', f's_add_u32 s{S_PS}, s{S_PS}, 1', f's_and_b32 s{S_PS}, s{S_PS}, 15',
           f's_mul_i32 s{S_PK}, s{S_PS}, s{S_PI}']
    a(pf_setup)
    for l in flat(dma_w(0, 1)): a(l)
    for k in range(PD):
        for l in pfi: a(l)
    a(pf_switch)
    NP = 1 if pf else 0
    if stamp: a('s_memtime s[84:85]')
    a(f'''
    v_and_b32 v44, 15, v0
    v_lshrrev_b32 v46, 4, v0
    v_lshrrev_b32 v19, 1, v44
    v_xor_b32 v19, v19, v46
    v_lshlrev_b32 v19, 4, v19
    v_lshl_add_u32 v19, v44, 7, v19
    s_lshl_b32 s{S_T}, s{S_WR}, 14
    v_add_u32 v{V_XRD}, s{S_T}, v19
    v_xor_b32 v{V_XRD+1}, 64, v{V_XRD}
    v_lshrrev_b32 v19, 5, v0
    v_mul_u32_u24 v19, 10240, v19
    v_and_b32 v45, 1, v46
    v_lshl_add_u32 v19, v45, 9, v19
    v_xor_b32 v45, s{S_WC}, v45
    v_lshl_add_u32 v19, v45, 5, v19
    v_lshrrev_b32 v45, 2, v44
    v_lshl_add_u32 v19, v45, 6, v19
    v_and_b32 v45, 3, v44
    v_lshl_add_u32 v19, v45, 3, v19
    v_add_u32 v{V_WRD}, {WBUF[0]}, v19
    v_add_u32 v{V_WRD+1}, {WBUF[1]}, v19
    ''')
    zero = [f'v_mov_b32 v{r}, 0' for r in range(48, 256)] + [f'v_accvgpr_write_b32 a{r}, 0' for r in range(112)]
    if stamp: a('s_memtime s[86:87]')
    def reads(buf, ks, st, order='w'):
        xs = [f'ds_read_b128 {rng(xfrag(st, tb))}, v{V_XRD+ks} offset:{XBUF[buf] + tb*2048}' for tb in range(8)]
        ws = []
        for t in range(5):
            for half in range(2):
                r = wfrag(st, half, t)
                for h in range(2):
                    ws.append(f'ds_read_b64_tr_b16 {r[0]}[{r[1]+2*h}:{r[1]+2*h+1}], v{V_WRD+buf} offset:{ks*20480 + half*5120 + t*1024 + h*256}')
        return ws[:2] + xs + ws[2:]
    def mf(st, half, t, tb):
        c = rng(acc(half, t, tb))
        return f'v_mfma_f32_16x16x32_bf16 {c}, {rng(wfrag(st, half, t))}, {rng(xfrag(st, tb))}, {c}'
    def mfmas(st):
        o = os.environ.get('ORD', '0')
        if o == '1': return [mf(st, half, t, tb) for tb in range(8) for t in range(5) for half in range(2)]
        if o == '2': return [mf(st, (i + tb) % 2, ((i + tb) % 10) // 2, tb) for i in range(10) for tb in range(8)]
        if o == '3': return [mf(st, half, t, tb if (2*t+half) % 2 == 0 else 7 - tb) for t in range(5) for half in range(2) for tb in range(8)]
        return [mf(st, half, t, tb) for t in range(5) for half in range(2) for tb in range(8)]
    gate = ['v_mov_b32 v44, 0', 'v_mov_b32 v45, 0']
    for j in range(8):
        gate += [f'v_dot2_f32_bf16 v44, v{28+j}, v{20+j}, v44', f'v_dot2_f32_bf16 v45, v{36+j}, v{20+j}, v45']
    for d in ('quad_perm:[1,0,3,2] row_mask:0xf', 'quad_perm:[2,3,0,1] row_mask:0xf', 'row_half_mirror row_mask:0xf', 'row_mirror row_mask:0xf',
              'row_bcast:15 row_mask:0xa', 'row_bcast:31 row_mask:0xc'):
        gate += [f'v_add_f32_dpp v44, v44, v44 {d} bank_mask:0xf', f'v_add_f32_dpp v45, v45, v45 {d} bank_mask:0xf']
    gate += [f'v_mul_f32 v44, {NLOG2E:#x}, v44', f'v_mul_f32 v45, {NLOG2E:#x}, v45', 'v_exp_f32 v44, v44', 'v_exp_f32 v45, v45',
             'v_add_f32 v44, 1.0, v44', 'v_add_f32 v45, 1.0, v45', 'v_rcp_f32 v46, v44', 'v_rcp_f32 v47, v45',
             'v_mov_b32 v20, 0', 'v_mov_b32 v21, 0', 'v_mov_b32 v22, 0', 'v_mov_b32 v23, 0', f's_lshl_b32 s{S_PM}, s58, 11', f's_add_u32 s{S_PM}, s{S_PM}, {WS_PART:#x}']
    a(f's_waitcnt vmcnt({5+PD})\ns_barrier')
    for l in reads(0, 0, 0): a(l)
    a(f's_mov_b32 s{S_CNT}, 6')
    if stamp == 2: a('s_mov_b32 s101, 0\nv_mov_b32 v19, 0')
    if stamp: a('s_memtime s[88:89]')
    def step(st, wait, rd, dm, barrier=True, sc=None, valu=(), first=False):
        a(wait)
        if barrier: a('s_barrier')
        if stamp == 2:
            a('s_mov_b32 m0, s101\ns_nop 0\nv_writelane_b32 v19, s86, m0\ns_add_u32 s101, s101, 1\ns_memtime s[86:87]')
        body = mfmas(st)
        if first: body = [m.rsplit(',', 1)[0] + ', 0' for m in body]
        rs, re_, ds, de = sc if sc else sched if sched else (1, 57, 2, 74)
        slots = {}
        for k, it in enumerate(valu):
            slots.setdefault(2 + k * 76 // len(valu), []).append([it])
        for k, it in enumerate(rd):
            slots.setdefault(rs + k * (re_ - rs) // max(len(rd), 1), []).append([it])
        for k, it in enumerate(dm):
            slots.setdefault(ds + k * (de - ds) // max(len(dm), 1), []).append(it)
        for idx, m in enumerate(body):
            pre = [it for it in slots.get(idx, []) if it[0].startswith('s_add_u32 m0')]
            for it in pre: a(it[0])
            a(m)
            for it in slots.get(idx, []):
                for l in (it[1:] if it in pre else it): a(l)
    P1 = [pfi] if pf else []
    ZF = [[f'buffer_store_dwordx4 v[20:23], v18, s[{S_WS}:{S_WS+3}], s{S_PM} offen offset:{k*1024} sc1'] for k in range(4)]
    step(0, f's_waitcnt vmcnt({PD}) lgkmcnt(0)', reads(0, 1, 1), dma_w(1, 0) + dma_x(1) + dma_w(1, 1) + dma_w(0, 0) + P1, sc=(1, 57, 0, 72), first=True)
    step(1, 's_waitcnt vmcnt(11) lgkmcnt(0)', reads(1, 0, 0), dma_x(0) + gl + P1)
    step(0, f's_waitcnt vmcnt(21) lgkmcnt(0)', reads(1, 1, 1), dma_w(0, 1) + dma_w(1, 0) + P1)
    step(1, f's_waitcnt vmcnt(12) lgkmcnt(0)', reads(0, 0, 0), dma_x(1), valu=gate)
    m0 = a.mark()
    a.label(f'{name}_loop')
    for p in range(2):
        step(0, f's_waitcnt vmcnt({13+NP}) lgkmcnt(0)', reads(p, 1, 1), dma_w(1 - p, 1) + dma_w(p, 0) + P1)
        step(1, f's_waitcnt vmcnt({10+NP}) lgkmcnt(0)', reads(1 - p, 0, 0), dma_x(p))
    a(f's_sub_u32 s{S_CNT}, s{S_CNT}, 1\ns_cmp_lg_u32 s{S_CNT}, 0\ns_cbranch_scc1 {name}_loop')
    m1 = a.mark()
    extra = [[f's_lshl_b32 s59, s58, 2', f's_add_u32 s59, s59, {WS_G:#x}', 'v_mov_b32 v18, 0', 's_mov_b32 exec_lo, 0', 's_mov_b32 exec_hi, 0x80000000',
              f'buffer_store_dwordx2 v[46:47], v18, s[{S_WS}:{S_WS+3}], s59 offen',
              f's_lshl_b32 s59, s58, 7', f's_add_u32 s59, s59, {WS_FLAG:#x}', 's_mov_b64 exec, 15', 'v_lshlrev_b32 v19, 6, v0',
              f'buffer_store_dword v18, v19, s[{S_WS}:{S_WS+3}], s59 offen', 's_mov_b64 exec, -1']]
    extra.append(['s_mov_b32 s80, s74', 's_mov_b32 s81, s75', f's_mov_b32 s82, {1024*2048}', 's_lshl_b32 s59, s58, 10', 'v_lshlrev_b32 v18, 5, v0',
                  'buffer_load_dword v6, v18, s[80:83], s59 offen'])
    NE = 3
    if code_from:
        extra.append([f's_getpc_b64 s[{S_PF}:{S_PF+1}]', f'{name}_pc:',
                      f's_mov_b32 s{S_PF+2}, {code_to}-{name}_pc', f's_lshr_b32 s{S_T}, s2, 3', f's_lshl_b32 s{S_T}, s{S_T}, 2', f's_add_u32 s{S_T}, s{S_T}, s{S_W}',
                      f's_lshl_b32 s{S_T}, s{S_T}, 9', f'v_lshlrev_b32 v{V_PF}, 3, v0',
                      f'buffer_load_dword v5, v{V_PF}, s[{S_PF}:{S_PF+3}], s{S_T} offen'])
        NE = 4
    NE += 4
    step(0, f's_waitcnt vmcnt({13+NP}) lgkmcnt(0)', reads(0, 1, 1), dma_w(1, 1) + ZF + extra)
    step(1, f's_waitcnt vmcnt({5+NE}) lgkmcnt(0)', reads(1, 0, 0), [])
    if stamp: a('s_memtime s[94:95]')

    if stamp == 2:
        a(f'''
        s_waitcnt lgkmcnt(0)
        s_mov_b32 m0, s101
        s_nop 0
        v_writelane_b32 v19, s86, m0
        s_lshl_b32 s74, s2, 2
        s_add_u32 s74, s74, s{S_W}
        s_lshl_b32 s74, s74, 8
        s_add_u32 s74, s74, 0x8400000
        v_lshlrev_b32 v18, 2, v0
        buffer_store_dword v19, v18, s[{S_WS}:{S_WS+3}], s74 offen
        s_waitcnt vmcnt(0)
        ''')
    a(f'''
    v_lshlrev_b32 v1, 4, v0
    s_mov_b32 s70, {NLOG2E:#x}
    s_mov_b32 s71, {NLOG2E:#x}
    s_lshl_b32 s{S_T}, s{S_RB}, 3
    s_lshl_b32 s{S_T+1}, s{S_WR}, 2
    s_add_u32 s{S_T}, s{S_T}, s{S_T+1}
    s_mul_i32 s72, s{S_T}, {OH_TB}
    s_lshl_b32 s{S_T+1}, s{S_F0}, 6
    s_add_u32 s72, s72, s{S_T+1}
    s_lshl_b32 s{S_T+1}, s{S_WC}, 10
    s_add_u32 s72, s72, s{S_T+1}
    s_add_u32 s72, s72, {WS_OH + 1024*64}
    s_lshl_b32 s73, s{S_T}, 10
    s_lshl_b32 s{S_T+1}, s{S_WC}, 16
    s_add_u32 s73, s73, s{S_T+1}
    s_lshl_b32 s69, s{S_T}, 11
    s_lshl_b32 s{S_T+1}, s{S_WC}, 8
    s_add_u32 s69, s69, s{S_T+1}
    v_and_b32 v18, 15, v0
    v_lshrrev_b32 v19, 4, v0
    v_lshlrev_b32 v2, 4, v18
    v_lshl_add_u32 v2, v19, 9, v2
    v_lshlrev_b32 v3, 5, v18
    v_lshl_add_u32 v3, v19, 3, v3
    v_add_u32 v3, s{S_LX}, v3
    v_lshrrev_b32 v4, 5, v0
    v_lshlrev_b32 v4, 9, v4
    v_and_b32 v19, 1, v19
    v_lshl_add_u32 v4, v19, 7, v4
    v_lshrrev_b32 v19, 2, v18
    v_lshl_add_u32 v4, v19, 5, v4
    v_and_b32 v19, 3, v18
    v_lshl_add_u32 v4, v19, 3, v4
    v_add_u32 v4, s{S_LX}, v4
    ''')
    ws = f's[{S_WS}:{S_WS+3}]'
    qkv_mod = os.environ.get('QM', store_mod)
    def M(t): return [mf(st, half, t, tb) for st in range(2) for half in range(2) for tb in range(8)]
    def getv(L, r, tmp):
        if r[0] == 'v': return r[1]
        for j in range(4): L.append(f'v_accvgpr_read_b32 v{tmp+j}, a{r[1]+j}')
        return tmp
    def epi_ffn(t):
        L = []
        for tbp in range(4):
            G = [getv(L, acc(0, t, 2*tbp + i), 16 + 4*i) for i in range(2)]
            U = [getv(L, acc(1, t, 2*tbp + i), 48 + 4*i) for i in range(2)]
            E = [24 + 12*(tbp % 2) + 4*i for i in range(2)]
            O = 32 + 12*(tbp % 2)
            for i in range(2):
                for j in (0, 2): L.append(f'v_pk_mul_f32 v[{E[i]+j}:{E[i]+j+1}], v[{G[i]+j}:{G[i]+j+1}], s[70:71]')
            for i in range(2):
                for j in range(4): L += (['@M'] if i == 0 else []) + [f'v_exp_f32 v{E[i]+j}, v{E[i]+j}']
            for i in range(2):
                for j in (0, 2): L.append(f'v_pk_mul_f32 v[{U[i]+j}:{U[i]+j+1}], v[{G[i]+j}:{G[i]+j+1}], v[{U[i]+j}:{U[i]+j+1}]')
            for i in range(2):
                for j in (0, 2): L.append(f'v_pk_add_f32 v[{E[i]+j}:{E[i]+j+1}], v[{E[i]+j}:{E[i]+j+1}], 1.0 op_sel_hi:[1,0]')
            for i in range(2):
                for j in range(4): L += (['@M'] if i == 0 else []) + [f'v_rcp_f32 v{E[i]+j}, v{E[i]+j}']
            L.append(f's_add_u32 s74, s72, {t*2048 + tbp*OH_TB}')
            for i in range(2):
                for j in (0, 2): L.append(f'v_pk_mul_f32 v[{U[i]+j}:{U[i]+j+1}], v[{U[i]+j}:{U[i]+j+1}], v[{E[i]+j}:{E[i]+j+1}]')
            for i in range(2):
                for j in range(2): L.append(f'v_cvt_pk_bf16_f32 v{O+2*i+j}, v{U[i]+2*j}, v{U[i]+2*j+1}')
            L += [f'v_permlane16_swap_b32 v{O}, v{O+2}', f'v_permlane16_swap_b32 v{O+1}, v{O+3}',
                  f'buffer_store_dwordx4 v[{O}:{O+3}], v1, {ws}, s74 offen {store_mod}']
        return L
    def epi_qk(t, scol, packed=True):
        L = [f's_mov_b32 s76, {QSCALE:#x}', 's_mov_b32 s77, s76', f's_lshl_b32 s75, s{scol}, 12', 's_add_u32 s75, s75, s73']
        for half in range(2):
            for tbp in range(4):
                X = [getv(L, acc(half, t, 2*tbp + i), 48 + 4*i + 8*(tbp % 2)) for i in range(2)]
                O = 24 + 4*(tbp % 4)
                for i in range(2):
                    if packed:
                        for j in (0, 2): L.append(f'v_pk_mul_f32 v[{X[i]+j}:{X[i]+j+1}], v[{X[i]+j}:{X[i]+j+1}], s[76:77]')

                L.append(f's_add_u32 s74, s75, {WS_QKV + half*131072 + tbp*1024}')
                for i in range(2):
                    for j in range(2): L.append(f'v_cvt_pk_bf16_f32 v{O+2*i+j}, v{X[i]+2*j}, v{X[i]+2*j+1}')
                L += [f'v_permlane16_swap_b32 v{O}, v{O+2}', f'v_permlane16_swap_b32 v{O+1}, v{O+3}',
                      f'buffer_store_dwordx4 v[{O}:{O+3}], v1, {ws}, s74 offen {qkv_mod}']
        return L
    def epi_v(t, scol):
        L = [f's_lshl_b32 s75, s{scol}, 12', 's_add_u32 s75, s75, s69']
        units = [(half, tbp) for half in range(2) for tbp in range(4)]
        for u, (half, tbp) in enumerate(units):
            X = [getv(L, acc(half, t, 2*tbp + i), 48 + 4*i + 8*(u % 2)) for i in range(2)]
            C = 16 + 4*(u % 2)
            for i in range(2):
                for j in range(2): L.append(f'v_cvt_pk_bf16_f32 v{C+2*i+j}, v{X[i]+2*j}, v{X[i]+2*j+1}')
            for i in range(2): L.append(f'ds_write_b64 v3, v[{C+2*i}:{C+2*i+1}] offset:{u*1024 + i*512}')
        L.append('s_waitcnt lgkmcnt(0)')
        for u in range(8):
            O = 64 + 4*u
            for rr in range(2): L.append(f'ds_read_b64_tr_b16 v[{O+2*rr}:{O+2*rr+1}], v4 offset:{u*1024 + rr*256}')
        for u, (half, tbp) in enumerate(units):
            O = 64 + 4*u
            L += [f's_add_u32 s74, s75, {WS_QKV + half*131072 + tbp*2048}', f's_waitcnt lgkmcnt({14 - 2*u})',
                  f'buffer_store_dwordx4 v[{O}:{O+3}], v2, {ws}, s74 offen {qkv_mod}']
        return L
    def merge(mm, ep):
        if '@M' in ep:
            it = iter(mm)
            for l in ep: a(next(it) if l == '@M' else l)
            assert next(it, None) is None
            return
        n = len(mm); k = 0
        for i, m in enumerate(mm):
            a(m)
            upto = (i + 1) * len(ep) // n
            while k < upto: a(ep[k]); k += 1
    a(f's_waitcnt vmcnt({NE}) lgkmcnt(0)\ns_barrier')
    rd = reads(1, 1, 1); mm = M(0)
    for i in range(16):
        a(mm[i])
        for l in rd[2*i:2*i+2]: a(l)
    a('s_waitcnt lgkmcnt(0)')
    for i in range(16, 32): a(mm[i])
    for t in (1, 2, 3): merge(M(t), epi_ffn(t - 1))
    a(f's_cmp_eq_u32 s{S_ODD}, 1\ns_cbranch_scc1 {name}_o3')
    p0 = a.mark()
    merge(M(4), epi_ffn(3))
    for l in epi_qk(4, S_N4): a(l)
    a(f's_branch {name}_fin')
    p1 = a.mark()
    a.label(f'{name}_o3')
    merge(M(4), epi_qk(3, S_N3, packed=False))
    for l in epi_v(4, S_N4): a(l)
    p7 = a.mark()
    a.label(f'{name}_fin')
    if stamp:
        a(f'''
        s_waitcnt vmcnt(0)
        s_memtime s[96:97]
        s_memrealtime s[98:99]
        s_waitcnt lgkmcnt(0)
        v_mov_b32 v4, s90
        v_mov_b32 v5, s94
        v_mov_b32 v6, s96
        v_mov_b32 v7, s92
        v_mov_b32 v8, s98
        v_mov_b32 v9, s88
        v_mov_b32 v10, 0
        s_lshl_b32 s74, s2, 2
        s_add_u32 s74, s74, s{S_W}
        s_lshl_b32 s74, s74, 6
        v_mov_b32 v12, s78
        v_mov_b32 v13, s84
        v_mov_b32 v14, s86
        v_mov_b32 v15, s86
        s_add_u32 s74, s74, 0x8000000
        s_mov_b32 exec_lo, 1
        s_mov_b32 exec_hi, 0
        buffer_store_dwordx4 v[4:7], v10, {ws}, s74 offen
        buffer_store_dwordx2 v[8:9], v10, {ws}, s74 offen offset:16
        buffer_store_dwordx4 v[12:15], v10, {ws}, s74 offen offset:32
        ''')
    a.label(f'{name}_end')
    a('s_endpgm')
    base = a.ins[:m1] + a.ins[m0:m1] + a.ins[m1:p0]
    errs = []
    for b4 in (a.ins[p0:p1], a.ins[p1:p7]):
        errs += check_seq(base + b4 + a.ins[p7:], name)
    errs = [e for e in dict.fromkeys(errs) if f'buffer_load_dword v{V_PD},' not in e]
    for e in errs[:20]: print('CHECK', e)
    return kernel_text(name, a, 512, 102, 256), LDS_BYTES
```

```python
from asmlib import *
import struct, os

WS_QKV = 0
WS_OH = 0x1000000
WS_G = 0x2200000
WS_FLAG = 0x2300000
WS_PART = 0x2400000
OH_TB = 4608 * 64
LOG2E = 1.4426950408889634
def f2u(f): return struct.unpack('<I', struct.pack('<f', f))[0]
QSCALE = f2u(32 ** -0.5 * LOG2E)
NLOG2E = f2u(-LOG2E)

XBUF = [0, 32768]
WBUF = [65536, 65536 + 40960]
LDS_BYTES = 65536 + 81920

def acc(half, t, tb):
    idx = (t * 2 + half) * 8 + tb
    if os.environ.get('RA') == '1':
        return ('v', 48 + 4 * idx) if idx < 16 else ('a', 4 * (idx - 16))
    if idx < 52: return ('v', 48 + 4 * idx)
    return ('a', 4 * (idx - 52))
def rng(r, n=4): return f'{r[0]}[{r[1]}:{r[1]+n-1}]'
FK = 'v' if os.environ.get('RA') == '1' else 'a'
def xfrag(st, tb): return (FK, 112 + 72 * st + 4 * tb)
def wfrag(st, half, t): return (FK, 112 + 72 * st + 32 + 4 * (half * 5 + t))

V_XOFF = 1
V_WOFF = 9
V_XRD = 12
V_WRD = 14
V_PF = 16
V_PD = 17
S_X, S_WA, S_WB, S_WC4, S_WS, S_PF = 4, 8, 12, 16, 20, 24
S_XK, S_WK, S_WI = 28, 29, 32
S_LX, S_LW, S_CNT, S_W, S_WR, S_WC, S_RB, S_CT, S_PK, S_PI = 35, 36, 37, 38, 39, 40, 41, 42, 43, 44
S_F0, S_N3, S_N4, S_ODD, S_HS = 45, 46, 47, 48, 49
S_PS, S_PM = 3, 57
S_T = 50
XM = os.environ.get('XM', ''); WM = os.environ.get('WM', '')
import os
PD = int(os.environ.get("PD", "1"))

def gen(name='k1_kernel', stamp=False, sched=None, store_mod='', code_from=None, code_to=None, pf=True):
    a = Asm()
    a(f'''
    s_cmp_ge_u32 s2, 256
    s_cbranch_scc1 {name}_end
    s_load_dwordx4 s[60:63], s[0:1], 0
    s_load_dwordx8 s[64:71], s[0:1], 32
    s_getpc_b64 s[{S_PF}:{S_PF+1}]
    {name}_pc0:
    s_mov_b32 s{S_PF+2}, {name}_pc-{name}_pc0
    s_mov_b32 s{S_PF+3}, 0x20000
    s_lshr_b32 s{S_T}, s2, 3
    s_lshl_b32 s{S_T}, s{S_T}, 10
    v_lshlrev_b32 v16, 2, v0
    buffer_load_dword v47, v16, s[{S_PF}:{S_PF+3}], s{S_T} offen
    s_load_dwordx2 s[72:73], s[0:1], 80
    s_load_dwordx2 s[74:75], s[0:1], 16
    v_lshrrev_b32 v16, 6, v0
    v_and_b32 v0, 63, v0
    v_readfirstlane_b32 s{S_W}, v16
    s_and_b32 s{S_T}, s2, 7
    s_lshr_b32 s{S_T+1}, s2, 3
    s_and_b32 s{S_RB}, s{S_T+1}, 7
    s_lshr_b32 s{S_T+1}, s{S_T+1}, 3
    s_lshl_b32 s{S_CT}, s{S_T}, 2
    s_add_u32 s{S_CT}, s{S_CT}, s{S_T+1}
    s_lshr_b32 s{S_WR}, s{S_W}, 1
    s_and_b32 s{S_WC}, s{S_W}, 1
    ''')
    if stamp: a('s_memtime s[90:91]\ns_memrealtime s[92:93]')
    a(f'''
    s_and_b32 s{S_ODD}, s{S_CT}, 1
    s_lshr_b32 s{S_T}, s{S_CT}, 1
    s_mul_i32 s{S_F0}, s{S_T}, 224
    s_lshl_b32 s{S_T+1}, s{S_ODD}, 7
    s_add_u32 s{S_F0}, s{S_F0}, s{S_T+1}
    s_lshl_b32 s{S_N4}, s{S_T}, 6
    s_add_u32 s{S_N3}, s{S_N4}, 1024
    s_lshl_b32 s{S_T+2}, s{S_ODD}, 11
    s_add_u32 s{S_N4}, s{S_N4}, s{S_T+2}
    s_movk_i32 s{S_T+2}, 7168
    s_cmp_eq_u32 s{S_ODD}, 1
    s_cselect_b32 s{S_T+3}, 6144, s{S_T+2}
    s_lshl_b32 s{S_T+4}, s{S_WC}, 5
    s_add_u32 s{S_T+5}, s{S_N3}, s{S_T+4}
    s_add_u32 s{S_T+6}, s{S_F0}, 96
    s_cmp_eq_u32 s{S_ODD}, 1
    s_cselect_b32 s{S_T+5}, s{S_T+5}, s{S_T+6}
    s_add_u32 s{S_T+6}, s{S_N4}, s{S_T+4}
    s_mov_b32 s{S_WI}, {7168*32}
    s_lshl_b32 s{S_WI+1}, s{S_T+3}, 5
    s_mov_b32 s{S_WI+2}, {6144*32}
    s_and_b32 s{S_HS}, s2, 7
    s_lshl_b32 s{S_XK}, s{S_HS}, 8
    s_lshl_b32 s{S_HS}, s{S_HS}, 2
    s_mul_i32 s{S_WK}, s{S_HS}, s{S_WI}
    s_mul_i32 s{S_WK+1}, s{S_HS}, s{S_WI+1}
    s_mul_i32 s{S_WK+2}, s{S_HS}, s{S_WI+2}
    s_lshl_b32 s{S_LX}, s{S_W}, 13
    s_mul_i32 s{S_LW}, s{S_WR}, 10240
    s_mul_i32 s{S_T}, s{S_WC}, 5120
    s_add_u32 s{S_LW}, s{S_LW}, s{S_T}
    v_lshrrev_b32 v17, 2, v0
    s_lshl_b32 s{S_T}, s{S_WR}, 4
    v_add_u32 v17, s{S_T}, v17
    v_lshrrev_b32 v18, 5, v0
    v_lshlrev_b32 v18, 1, v18
    v_and_b32 v19, 3, v0
    v_xor_b32 v18, v18, v19
    v_lshlrev_b32 v18, 4, v18
    v_mul_u32_u24 v{V_WOFF}, 7168, v17
    v_mul_lo_u32 v{V_WOFF+1}, v17, s{S_T+3}
    v_mul_u32_u24 v{V_WOFF+2}, 6144, v17
    s_lshl_b32 s{S_T}, s{S_F0}, 1
    s_lshl_b32 s{S_T+5}, s{S_T+5}, 1
    s_lshl_b32 s{S_T+6}, s{S_T+6}, 1
    v_add3_u32 v{V_WOFF}, v{V_WOFF}, v18, s{S_T}
    v_add3_u32 v{V_WOFF+1}, v{V_WOFF+1}, v18, s{S_T+5}
    v_add3_u32 v{V_WOFF+2}, v{V_WOFF+2}, v18, s{S_T+6}
    v_lshrrev_b32 v17, 3, v0
    s_lshl_b32 s{S_T}, s{S_RB}, 8
    s_lshl_b32 s{S_T+1}, s{S_W}, 6
    s_add_u32 s{S_T}, s{S_T}, s{S_T+1}
    v_add_u32 v17, s{S_T}, v17
    v_lshlrev_b32 v17, 11, v17
    v_and_b32 v18, 7, v0
    v_lshrrev_b32 v19, 4, v0
    v_xor_b32 v18, v18, v19
    v_lshlrev_b32 v18, 4, v18
    v_add_u32 v17, v17, v18
    v_xor_b32 v18, 64, v17
    ''')
    for i in range(8):
        a(f'v_add_u32 v{V_XOFF+i}, {i*16384}, v{17 if i % 2 == 0 else 18}')
    a(f'''
    v_lshlrev_b32 v18, 4, v0
    s_lshl_b32 s{S_T}, s2, 3
    s_lshl_b32 s{S_T+1}, s{S_W}, 1
    s_add_u32 s58, s{S_T}, s{S_T+1}
    s_lshl_b32 s59, s58, 11
    s_waitcnt lgkmcnt(0)
    {'s_memtime s[78:79]' if stamp else ''}
    s_mov_b32 s{S_X}, s60
    s_mov_b32 s{S_X+1}, s61
    s_mov_b32 s{S_X+2}, {2048*1024*2}
    s_mov_b32 s{S_X+3}, 0x20000
    s_cmp_eq_u32 s{S_WC}, 0
    s_cselect_b32 s{S_WA}, s64, s66
    s_cselect_b32 s{S_WA+1}, s65, s67
    s_mov_b32 s{S_WA+2}, {7168*1024}
    s_mov_b32 s{S_WA+3}, 0x20000
    s_cmp_eq_u32 s{S_ODD}, 1
    s_cselect_b32 s{S_WB}, s62, s{S_WA}
    s_cselect_b32 s{S_WB+1}, s63, s{S_WA+1}
    s_lshl_b32 s{S_WB+2}, s{S_T+3}, 10
    s_mov_b32 s{S_WB+3}, 0x20000
    s_mov_b32 s{S_WC4}, s62
    s_mov_b32 s{S_WC4+1}, s63
    s_mov_b32 s{S_WC4+2}, {6144*1024}
    s_mov_b32 s{S_WC4+3}, 0x20000
    ''')
    def dma_x(buf):
        L = []
        for i in range(8):
            L.append([f's_add_u32 m0, s{S_LX}, {XBUF[buf] + i*1024}',
                      f'buffer_load_dwordx4 v{V_XOFF+i}, s[{S_X}:{S_X+3}], s{S_XK} offen {XM} lds'])
        L[-1] += [f's_add_u32 s{S_XK}, s{S_XK}, 128', f's_and_b32 s{S_XK}, s{S_XK}, 2047']
        return L
    def dma_w(buf, ks):
        L = []
        for q in range(5):
            g = max(0, q - 2)
            io = q * 64 if q < 3 else 0
            srd = (S_WA, S_WB, S_WC4)[g]
            L.append([f's_add_u32 m0, s{S_LW}, {WBUF[buf] + ks*20480 + q*1024 - io}',
                      f'buffer_load_dwordx4 v{V_WOFF+g}, s[{srd}:{srd+3}], s{S_WK+g} offen offset:{io} {WM} lds'])
            if q == 0: L[-1].append(f's_add_u32 s{S_HS}, s{S_HS}, 1')
            if q == 1: L[-1].append(f's_and_b32 s{S_HS}, s{S_HS}, 31')
            if q >= 2: L[-1].append(f's_mul_i32 s{S_WK+g}, s{S_HS}, s{S_WI+g}')
        return L
    def flat(L): return [x for it in L for x in it]
    for l in flat(dma_w(0, 0)) + flat(dma_x(0)): a(l)
    a(f'''
    s_mov_b32 s80, s70
    s_mov_b32 s81, s71
    s_mov_b32 s82, 2048
    s_mov_b32 s83, 0x20000
    s_mov_b32 s{S_WS}, s72
    s_mov_b32 s{S_WS+1}, s73
    s_mov_b32 s{S_WS+2}, 0x10000000
    s_mov_b32 s{S_WS+3}, 0x20000
    ''')
    gl = [[f'buffer_load_dwordx4 v[28:31], v18, s[{S_X}:{S_X+3}], s59 offen'],
          [f'buffer_load_dwordx4 v[32:35], v18, s[{S_X}:{S_X+3}], s59 offen offset:1024'],
          [f'buffer_load_dwordx4 v[36:39], v18, s[{S_X}:{S_X+3}], s59 offen offset:2048'],
          [f'buffer_load_dwordx4 v[40:43], v18, s[{S_X}:{S_X+3}], s59 offen offset:3072'],
          ['buffer_load_dwordx4 v[20:23], v18, s[80:83], 0 offen'],
          ['buffer_load_dwordx4 v[24:27], v18, s[80:83], 0 offen offset:1024']]
    pf_setup = f'''
    s_cmp_eq_u32 s{S_W}, 0
    s_cselect_b32 s{S_PF}, s62, s64
    s_cselect_b32 s{S_PF+1}, s63, s65
    s_cselect_b32 s{S_T}, 24, 28
    s_cmp_eq_u32 s{S_W}, 2
    s_cselect_b32 s{S_PF}, s66, s{S_PF}
    s_cselect_b32 s{S_PF+1}, s67, s{S_PF+1}
    s_lshl_b32 s{S_PF+2}, s{S_T}, 18
    s_lshl_b32 s{S_PI}, s{S_T}, 14
    s_mov_b32 s{S_PF+3}, 0x20000
    s_and_b32 s{S_T+1}, s2, 7
    s_lshl_b32 s{S_PS}, s{S_T+1}, 1
    s_add_u32 s{S_PS}, s{S_PS}, 1
    s_lshl_b32 s{S_T+2}, s{S_T+1}, 5
    s_lshr_b32 s{S_T+4}, s2, 3
    s_lshl_b32 s{S_T+5}, s{S_T+4}, 9
    s_add_u32 s{S_T+2}, s{S_T+2}, s{S_T+5}
    s_lshl_b32 s{S_T+5}, s{S_T+4}, 6
    s_cmp_eq_u32 s{S_W}, 3
    s_cselect_b32 s{S_PF}, s60, s{S_PF}
    s_cselect_b32 s{S_PF+1}, s61, s{S_PF+1}
    s_cselect_b32 s{S_PF+2}, s{S_X+2}, s{S_PF+2}
    s_cselect_b32 s{S_T}, 0x800, s{S_T}
    s_cselect_b32 s{S_PI}, 0x80, s{S_PI}
    s_cselect_b32 s{S_T+2}, s{S_T+5}, s{S_T+2}
    s_cselect_b32 s{S_T+4}, 5, 8
    s_mul_i32 s{S_PK}, s{S_PS}, s{S_PI}
    v_lshrrev_b32 v19, 5, v0
    v_lshlrev_b32 v19, s{S_T+4}, v19
    v_and_b32 v{V_PF}, 31, v0
    v_add3_u32 v{V_PF}, v{V_PF}, v19, s{S_T+2}
    v_mul_lo_u32 v{V_PF}, v{V_PF}, s{S_T}
    v_bfe_u32 v19, v0, 3, 2
    v_min_u32 v19, 2, v19
    v_lshlrev_b32 v19, 11, v19
    v_and_b32 v44, 7, v0
    v_lshl_add_u32 v19, v44, 5, v19
    v_lshrrev_b32 v44, 5, v0
    s_lshr_b32 s{S_T+4}, s2, 3
    s_lshl_b32 s{S_T+4}, s{S_T+4}, 1
    v_add_u32 v44, s{S_T+4}, v44
    v_mul_u32_u24 v44, 6144, v44
    s_lshl_b32 s{S_T+4}, s{S_T+1}, 8
    v_add3_u32 v19, v19, v44, s{S_T+4}
    s_cmp_eq_u32 s{S_W}, 0
    s_cselect_b64 vcc, -1, 0
    v_cndmask_b32 v{V_PF}, v{V_PF}, v19, vcc
    '''
    pf_switch = f'''
    s_lshl_b32 s{S_T+5}, s2, 6
    v_add_u32 v19, s{S_T+5}, v0
    v_lshlrev_b32 v19, 5, v19
    s_cmp_eq_u32 s{S_W}, 3
    s_cselect_b32 s{S_PF}, s68, s{S_PF}
    s_cselect_b32 s{S_PF+1}, s69, s{S_PF+1}
    s_cselect_b32 s{S_PF+2}, s{S_WA+2}, s{S_PF+2}
    s_cselect_b32 s{S_PI}, 0x80000, s{S_PI}
    s_cselect_b32 s{S_PS}, 0, s{S_PS}
    s_cselect_b32 s{S_PK}, 0, s{S_PK}
    s_cselect_b64 vcc, -1, 0
    v_cndmask_b32 v{V_PF}, v{V_PF}, v19, vcc
    '''
    pfi = [f'buffer_load_dword v{V_PD}, v{V_PF}, s[{S_PF}:{S_PF+3}], s{S_PK} offen', f's_add_u32 s{S_PS}, s{S_PS}, 1', f's_and_b32 s{S_PS}, s{S_PS}, 15',
           f's_mul_i32 s{S_PK}, s{S_PS}, s{S_PI}']
    a(pf_setup)
    for l in flat(dma_w(0, 1)): a(l)
    for k in range(PD):
        for l in pfi: a(l)
    a(pf_switch)
    NP = 1 if pf else 0
    if stamp: a('s_memtime s[84:85]')
    a(f'''
    v_and_b32 v44, 15, v0
    v_lshrrev_b32 v46, 4, v0
    v_lshrrev_b32 v19, 1, v44
    v_xor_b32 v19, v19, v46
    v_lshlrev_b32 v19, 4, v19
    v_lshl_add_u32 v19, v44, 7, v19
    s_lshl_b32 s{S_T}, s{S_WR}, 14
    v_add_u32 v{V_XRD}, s{S_T}, v19
    v_xor_b32 v{V_XRD+1}, 64, v{V_XRD}
    v_lshrrev_b32 v19, 5, v0
    v_mul_u32_u24 v19, 10240, v19
    v_and_b32 v45, 1, v46
    v_lshl_add_u32 v19, v45, 9, v19
    v_xor_b32 v45, s{S_WC}, v45
    v_lshl_add_u32 v19, v45, 5, v19
    v_lshrrev_b32 v45, 2, v44
    v_lshl_add_u32 v19, v45, 6, v19
    v_and_b32 v45, 3, v44
    v_lshl_add_u32 v19, v45, 3, v19
    v_add_u32 v{V_WRD}, {WBUF[0]}, v19
    v_add_u32 v{V_WRD+1}, {WBUF[1]}, v19
    ''')
    zero = [f'v_mov_b32 v{r}, 0' for r in range(48, 256)] + [f'v_accvgpr_write_b32 a{r}, 0' for r in range(112)]
    if stamp: a('s_memtime s[86:87]')
    def reads(buf, ks, st, order='w'):
        xs = [f'ds_read_b128 {rng(xfrag(st, tb))}, v{V_XRD+ks} offset:{XBUF[buf] + tb*2048}' for tb in range(8)]
        ws = []
        for t in range(5):
            for half in range(2):
                r = wfrag(st, half, t)
                for h in range(2):
                    ws.append(f'ds_read_b64_tr_b16 {r[0]}[{r[1]+2*h}:{r[1]+2*h+1}], v{V_WRD+buf} offset:{ks*20480 + half*5120 + t*1024 + h*256}')
        return ws[:2] + xs + ws[2:]
    def mf(st, half, t, tb):
        c = rng(acc(half, t, tb))
        return f'v_mfma_f32_16x16x32_bf16 {c}, {rng(wfrag(st, half, t))}, {rng(xfrag(st, tb))}, {c}'
    def mfmas(st):
        o = os.environ.get('ORD', '0')
        if o == '1': return [mf(st, half, t, tb) for tb in range(8) for t in range(5) for half in range(2)]
        if o == '2': return [mf(st, (i + tb) % 2, ((i + tb) % 10) // 2, tb) for i in range(10) for tb in range(8)]
        if o == '3': return [mf(st, half, t, tb if (2*t+half) % 2 == 0 else 7 - tb) for t in range(5) for half in range(2) for tb in range(8)]
        return [mf(st, half, t, tb) for t in range(5) for half in range(2) for tb in range(8)]
    gate = ['v_mov_b32 v44, 0', 'v_mov_b32 v45, 0']
    for j in range(8):
        gate += [f'v_dot2_f32_bf16 v44, v{28+j}, v{20+j}, v44', f'v_dot2_f32_bf16 v45, v{36+j}, v{20+j}, v45']
    for d in ('quad_perm:[1,0,3,2] row_mask:0xf', 'quad_perm:[2,3,0,1] row_mask:0xf', 'row_half_mirror row_mask:0xf', 'row_mirror row_mask:0xf',
              'row_bcast:15 row_mask:0xa', 'row_bcast:31 row_mask:0xc'):
        gate += [f'v_add_f32_dpp v44, v44, v44 {d} bank_mask:0xf', f'v_add_f32_dpp v45, v45, v45 {d} bank_mask:0xf']
    gate += [f'v_mul_f32 v44, {NLOG2E:#x}, v44', f'v_mul_f32 v45, {NLOG2E:#x}, v45', 'v_exp_f32 v44, v44', 'v_exp_f32 v45, v45',
             'v_add_f32 v44, 1.0, v44', 'v_add_f32 v45, 1.0, v45', 'v_rcp_f32 v46, v44', 'v_rcp_f32 v47, v45',
             'v_mov_b32 v20, 0', 'v_mov_b32 v21, 0', 'v_mov_b32 v22, 0', 'v_mov_b32 v23, 0', f's_lshl_b32 s{S_PM}, s58, 11', f's_add_u32 s{S_PM}, s{S_PM}, {WS_PART:#x}']
    a(f's_waitcnt vmcnt({5+PD})\ns_barrier')
    for l in reads(0, 0, 0): a(l)
    a(f's_mov_b32 s{S_CNT}, 6')
    if stamp == 2: a('s_mov_b32 s101, 0\nv_mov_b32 v19, 0')
    if stamp: a('s_memtime s[88:89]')
    def step(st, wait, rd, dm, barrier=True, sc=None, valu=(), first=False):
        a(wait)
        if barrier: a('s_barrier')
        if stamp == 2:
            a('s_mov_b32 m0, s101\ns_nop 0\nv_writelane_b32 v19, s86, m0\ns_add_u32 s101, s101, 1\ns_memtime s[86:87]')
        body = mfmas(st)
        if os.environ.get('NORD'): rd = rd[:int(os.environ['NORD'])]
        if os.environ.get('NODMA') and not first: dm = [[l for l in it if ' lds' not in l] for it in dm]
        if first: body = [m.rsplit(',', 1)[0] + ', 0' for m in body]
        rs, re_, ds, de = sc if sc else sched if sched else (1, 57, 2, 74)
        slots = {}
        for k, it in enumerate(valu):
            slots.setdefault(2 + k * 76 // len(valu), []).append([it])
        for k, it in enumerate(rd):
            slots.setdefault(rs + k * (re_ - rs) // max(len(rd), 1), []).append([it])
        for k, it in enumerate(dm):
            slots.setdefault(ds + k * (de - ds) // max(len(dm), 1), []).append(it)
        for idx, m in enumerate(body):
            pre = [it for it in slots.get(idx, []) if it[0].startswith('s_add_u32 m0')]
            for it in pre: a(it[0])
            a(m)
            for it in slots.get(idx, []):
                for l in (it[1:] if it in pre else it): a(l)
    P1 = [pfi] if pf else []
    ZF = [[f'buffer_store_dwordx4 v[20:23], v18, s[{S_WS}:{S_WS+3}], s{S_PM} offen offset:{k*1024} sc1'] for k in range(4)]
    step(0, f's_waitcnt vmcnt({PD}) lgkmcnt(0)', reads(0, 1, 1), dma_w(1, 0) + dma_x(1) + dma_w(1, 1) + dma_w(0, 0) + P1, sc=(1, 57, 0, 72), first=True)
    step(1, 's_waitcnt vmcnt(11) lgkmcnt(0)', reads(1, 0, 0), dma_x(0) + gl + P1)
    step(0, f's_waitcnt vmcnt(21) lgkmcnt(0)', reads(1, 1, 1), dma_w(0, 1) + dma_w(1, 0) + P1)
    step(1, f's_waitcnt vmcnt(12) lgkmcnt(0)', reads(0, 0, 0), dma_x(1), valu=gate)
    m0 = a.mark()
    a.label(f'{name}_loop')
    for p in range(2):
        step(0, f's_waitcnt vmcnt({13+NP}) lgkmcnt(0)', reads(p, 1, 1), dma_w(1 - p, 1) + dma_w(p, 0) + P1)
        step(1, f's_waitcnt vmcnt({10+NP}) lgkmcnt(0)', reads(1 - p, 0, 0), dma_x(p))
    a(f's_sub_u32 s{S_CNT}, s{S_CNT}, 1\ns_cmp_lg_u32 s{S_CNT}, 0\ns_cbranch_scc1 {name}_loop')
    m1 = a.mark()
    extra = [[f's_lshl_b32 s59, s58, 2', f's_add_u32 s59, s59, {WS_G:#x}', 'v_mov_b32 v18, 0', 's_mov_b32 exec_lo, 0', 's_mov_b32 exec_hi, 0x80000000',
              f'buffer_store_dwordx2 v[46:47], v18, s[{S_WS}:{S_WS+3}], s59 offen',
              f's_lshl_b32 s59, s58, 7', f's_add_u32 s59, s59, {WS_FLAG:#x}', 's_mov_b64 exec, 15', 'v_lshlrev_b32 v19, 6, v0',
              f'buffer_store_dword v18, v19, s[{S_WS}:{S_WS+3}], s59 offen', 's_mov_b64 exec, -1']]
    extra.append(['s_mov_b32 s80, s74', 's_mov_b32 s81, s75', f's_mov_b32 s82, {1024*2048}', 's_lshl_b32 s59, s58, 10', 'v_lshlrev_b32 v18, 5, v0',
                  'buffer_load_dword v6, v18, s[80:83], s59 offen'])
    NE = 3
    if code_from:
        extra.append([f's_getpc_b64 s[{S_PF}:{S_PF+1}]', f'{name}_pc:',
                      f's_mov_b32 s{S_PF+2}, {code_to}-{name}_pc', f's_lshr_b32 s{S_T}, s2, 3', f's_lshl_b32 s{S_T}, s{S_T}, 2', f's_add_u32 s{S_T}, s{S_T}, s{S_W}',
                      f's_lshl_b32 s{S_T}, s{S_T}, 9', f'v_lshlrev_b32 v{V_PF}, 3, v0',
                      f'buffer_load_dword v5, v{V_PF}, s[{S_PF}:{S_PF+3}], s{S_T} offen'])
        NE = 4
    NE += 4
    step(0, f's_waitcnt vmcnt({13+NP}) lgkmcnt(0)', reads(0, 1, 1), dma_w(1, 1) + ZF + extra)
    step(1, f's_waitcnt vmcnt({5+NE}) lgkmcnt(0)', reads(1, 0, 0), [])
    if stamp: a('s_memtime s[94:95]')

    if stamp == 2:
        a(f'''
        s_waitcnt lgkmcnt(0)
        s_mov_b32 m0, s101
        s_nop 0
        v_writelane_b32 v19, s86, m0
        s_lshl_b32 s74, s2, 2
        s_add_u32 s74, s74, s{S_W}
        s_lshl_b32 s74, s74, 8
        s_add_u32 s74, s74, 0x8400000
        v_lshlrev_b32 v18, 2, v0
        buffer_store_dword v19, v18, s[{S_WS}:{S_WS+3}], s74 offen
        s_waitcnt vmcnt(0)
        ''')
    a(f'''
    v_lshlrev_b32 v1, 4, v0
    s_mov_b32 s70, {NLOG2E:#x}
    s_mov_b32 s71, {NLOG2E:#x}
    s_lshl_b32 s{S_T}, s{S_RB}, 3
    s_lshl_b32 s{S_T+1}, s{S_WR}, 2
    s_add_u32 s{S_T}, s{S_T}, s{S_T+1}
    s_mul_i32 s72, s{S_T}, {OH_TB}
    s_lshl_b32 s{S_T+1}, s{S_F0}, 6
    s_add_u32 s72, s72, s{S_T+1}
    s_lshl_b32 s{S_T+1}, s{S_WC}, 10
    s_add_u32 s72, s72, s{S_T+1}
    s_add_u32 s72, s72, {WS_OH + 1024*64}
    s_lshl_b32 s73, s{S_T}, 10
    s_lshl_b32 s{S_T+1}, s{S_WC}, 16
    s_add_u32 s73, s73, s{S_T+1}
    s_lshl_b32 s69, s{S_T}, 11
    s_lshl_b32 s{S_T+1}, s{S_WC}, 8
    s_add_u32 s69, s69, s{S_T+1}
    v_and_b32 v18, 15, v0
    v_lshrrev_b32 v19, 4, v0
    v_lshlrev_b32 v2, 4, v18
    v_lshl_add_u32 v2, v19, 9, v2
    v_lshlrev_b32 v3, 5, v18
    v_lshl_add_u32 v3, v19, 3, v3
    v_add_u32 v3, s{S_LX}, v3
    v_lshrrev_b32 v4, 5, v0
    v_lshlrev_b32 v4, 9, v4
    v_and_b32 v19, 1, v19
    v_lshl_add_u32 v4, v19, 7, v4
    v_lshrrev_b32 v19, 2, v18
    v_lshl_add_u32 v4, v19, 5, v4
    v_and_b32 v19, 3, v18
    v_lshl_add_u32 v4, v19, 3, v4
    v_add_u32 v4, s{S_LX}, v4
    ''')
    ws = f's[{S_WS}:{S_WS+3}]'
    qkv_mod = os.environ.get('QM', store_mod)
    def M(t): return [mf(st, half, t, tb) for st in range(2) for half in range(2) for tb in range(8)]
    def getv(L, r, tmp):
        if r[0] == 'v': return r[1]
        for j in range(4): L.append(f'v_accvgpr_read_b32 v{tmp+j}, a{r[1]+j}')
        return tmp
    def epi_ffn(t):
        L = []
        for tbp in range(4):
            G = [getv(L, acc(0, t, 2*tbp + i), 16 + 4*i) for i in range(2)]
            U = [getv(L, acc(1, t, 2*tbp + i), 48 + 4*i) for i in range(2)]
            E = [24 + 12*(tbp % 2) + 4*i for i in range(2)]
            O = 32 + 12*(tbp % 2)
            for i in range(2):
                for j in (0, 2): L.append(f'v_pk_mul_f32 v[{E[i]+j}:{E[i]+j+1}], v[{G[i]+j}:{G[i]+j+1}], s[70:71]')
            for i in range(2):
                for j in range(4): L += (['@M'] if i == 0 else []) + [f'v_exp_f32 v{E[i]+j}, v{E[i]+j}']
            for i in range(2):
                for j in (0, 2): L.append(f'v_pk_mul_f32 v[{U[i]+j}:{U[i]+j+1}], v[{G[i]+j}:{G[i]+j+1}], v[{U[i]+j}:{U[i]+j+1}]')
            for i in range(2):
                for j in (0, 2): L.append(f'v_pk_add_f32 v[{E[i]+j}:{E[i]+j+1}], v[{E[i]+j}:{E[i]+j+1}], 1.0 op_sel_hi:[1,0]')
            for i in range(2):
                for j in range(4): L += (['@M'] if i == 0 else []) + [f'v_rcp_f32 v{E[i]+j}, v{E[i]+j}']
            L.append(f's_add_u32 s74, s72, {t*2048 + tbp*OH_TB}')
            for i in range(2):
                for j in (0, 2): L.append(f'v_pk_mul_f32 v[{U[i]+j}:{U[i]+j+1}], v[{U[i]+j}:{U[i]+j+1}], v[{E[i]+j}:{E[i]+j+1}]')
            for i in range(2):
                for j in range(2): L.append(f'v_cvt_pk_bf16_f32 v{O+2*i+j}, v{U[i]+2*j}, v{U[i]+2*j+1}')
            L += [f'v_permlane16_swap_b32 v{O}, v{O+2}', f'v_permlane16_swap_b32 v{O+1}, v{O+3}',
                  f'buffer_store_dwordx4 v[{O}:{O+3}], v1, {ws}, s74 offen {store_mod}']
        return L
    def epi_qk(t, scol, packed=True):
        L = [f's_mov_b32 s76, {QSCALE:#x}', 's_mov_b32 s77, s76', f's_lshl_b32 s75, s{scol}, 12', 's_add_u32 s75, s75, s73']
        for half in range(2):
            for tbp in range(4):
                X = [getv(L, acc(half, t, 2*tbp + i), 48 + 4*i + 8*(tbp % 2)) for i in range(2)]
                O = 24 + 4*(tbp % 4)
                for i in range(2):
                    if packed:
                        for j in (0, 2): L.append(f'v_pk_mul_f32 v[{X[i]+j}:{X[i]+j+1}], v[{X[i]+j}:{X[i]+j+1}], s[76:77]')

                L.append(f's_add_u32 s74, s75, {WS_QKV + half*131072 + tbp*1024}')
                for i in range(2):
                    for j in range(2): L.append(f'v_cvt_pk_bf16_f32 v{O+2*i+j}, v{X[i]+2*j}, v{X[i]+2*j+1}')
                L += [f'v_permlane16_swap_b32 v{O}, v{O+2}', f'v_permlane16_swap_b32 v{O+1}, v{O+3}',
                      f'buffer_store_dwordx4 v[{O}:{O+3}], v1, {ws}, s74 offen {qkv_mod}']
        return L
    def epi_v(t, scol):
        L = [f's_lshl_b32 s75, s{scol}, 12', 's_add_u32 s75, s75, s69']
        units = [(half, tbp) for half in range(2) for tbp in range(4)]
        for u, (half, tbp) in enumerate(units):
            X = [getv(L, acc(half, t, 2*tbp + i), 48 + 4*i + 8*(u % 2)) for i in range(2)]
            C = 16 + 4*(u % 2)
            for i in range(2):
                for j in range(2): L.append(f'v_cvt_pk_bf16_f32 v{C+2*i+j}, v{X[i]+2*j}, v{X[i]+2*j+1}')
            for i in range(2): L.append(f'ds_write_b64 v3, v[{C+2*i}:{C+2*i+1}] offset:{u*1024 + i*512}')
        L.append('s_waitcnt lgkmcnt(0)')
        for u in range(8):
            O = 64 + 4*u
            for rr in range(2): L.append(f'ds_read_b64_tr_b16 v[{O+2*rr}:{O+2*rr+1}], v4 offset:{u*1024 + rr*256}')
        for u, (half, tbp) in enumerate(units):
            O = 64 + 4*u
            L += [f's_add_u32 s74, s75, {WS_QKV + half*131072 + tbp*2048}', f's_waitcnt lgkmcnt({14 - 2*u})',
                  f'buffer_store_dwordx4 v[{O}:{O+3}], v2, {ws}, s74 offen {qkv_mod}']
        return L
    def merge(mm, ep):
        if '@M' in ep:
            it = iter(mm)
            for l in ep: a(next(it) if l == '@M' else l)
            assert next(it, None) is None
            return
        n = len(mm); k = 0
        for i, m in enumerate(mm):
            a(m)
            upto = (i + 1) * len(ep) // n
            while k < upto: a(ep[k]); k += 1
    a(f's_waitcnt vmcnt({NE}) lgkmcnt(0)\ns_barrier')
    rd = reads(1, 1, 1); mm = M(0)
    for i in range(16):
        a(mm[i])
        for l in rd[2*i:2*i+2]: a(l)
    a('s_waitcnt lgkmcnt(0)')
    for i in range(16, 32): a(mm[i])
    for t in (1, 2, 3): merge(M(t), epi_ffn(t - 1))
    a(f's_cmp_eq_u32 s{S_ODD}, 1\ns_cbranch_scc1 {name}_o3')
    p0 = a.mark()
    merge(M(4), epi_ffn(3))
    for l in epi_qk(4, S_N4): a(l)
    a(f's_branch {name}_fin')
    p1 = a.mark()
    a.label(f'{name}_o3')
    merge(M(4), epi_qk(3, S_N3, packed=False))
    for l in epi_v(4, S_N4): a(l)
    p7 = a.mark()
    a.label(f'{name}_fin')
    if stamp:
        a(f'''
        s_waitcnt vmcnt(0)
        s_memtime s[96:97]
        s_memrealtime s[98:99]
        s_waitcnt lgkmcnt(0)
        v_mov_b32 v4, s90
        v_mov_b32 v5, s94
        v_mov_b32 v6, s96
        v_mov_b32 v7, s92
        v_mov_b32 v8, s98
        v_mov_b32 v9, s88
        v_mov_b32 v10, 0
        s_lshl_b32 s74, s2, 2
        s_add_u32 s74, s74, s{S_W}
        s_lshl_b32 s74, s74, 6
        v_mov_b32 v12, s78
        v_mov_b32 v13, s84
        v_mov_b32 v14, s86
        v_mov_b32 v15, s86
        s_add_u32 s74, s74, 0x8000000
        s_mov_b32 exec_lo, 1
        s_mov_b32 exec_hi, 0
        buffer_store_dwordx4 v[4:7], v10, {ws}, s74 offen
        buffer_store_dwordx2 v[8:9], v10, {ws}, s74 offen offset:16
        buffer_store_dwordx4 v[12:15], v10, {ws}, s74 offen offset:32
        ''')
    a.label(f'{name}_end')
    a('s_endpgm')
    base = a.ins[:m1] + a.ins[m0:m1] + a.ins[m1:p0]
    errs = []
    for b4 in (a.ins[p0:p1], a.ins[p1:p7]):
        errs += check_seq(base + b4 + a.ins[p7:], name)
    errs = [e for e in dict.fromkeys(errs) if f'buffer_load_dword v{V_PD},' not in e]
    for e in errs[:20]: print('CHECK', e)
    return kernel_text(name, a, 512, 102, 256), LDS_BYTES
```

```python
from asmlib import *
from k1 import WS_QKV, WS_OH, WS_G, WS_FLAG, OH_TB

from k1 import WS_PART
RING = 4
CH = 16384
LDS_BYTES = 81920
NV = 128

def r4(b): return f'v[{b}:{b+3}]'
def r16(b): return f'v[{b}:{b+15}]'

def stamp_out(a, srd, s_w, base, idsub=0):
    a(f'''
    s_waitcnt vmcnt(0)
    s_memtime s[96:97]
    s_memrealtime s[98:99]
    s_waitcnt lgkmcnt(0)
    v_mov_b32 v4, s90
    v_mov_b32 v5, s94
    v_mov_b32 v6, s96
    v_mov_b32 v7, s92
    v_mov_b32 v8, s98
    v_mov_b32 v9, s88
    v_mov_b32 v10, 0
    s_sub_u32 s74, s2, {idsub}
    s_lshl_b32 s74, s74, 3
    s_add_u32 s74, s74, s{s_w}
    s_lshl_b32 s74, s74, 5
    s_add_u32 s74, s74, {base:#x}
    s_mov_b32 exec_lo, 1
    s_mov_b32 exec_hi, 0
    buffer_store_dwordx4 v[4:7], v10, {srd}, s74 offen
    buffer_store_dwordx2 v[8:9], v10, {srd}, s74 offen offset:16
    v_mov_b32 v12, s84
    v_mov_b32 v13, s82
    buffer_store_dwordx2 v[12:13], v10, {srd}, s74 offen offset:24
    ''')

def attention(a, name, stamp, force_slow, prio, exp=''):
    V_L16, V_G, V_IDX = 1, 2, 4
    Q, ONES, L, O, CM = 16, 24, 28, 32, 48
    S = [64, 80]
    P, KF, VF = 96, 104, 112
    S_WS = 4
    S_W, S_HD, S_TB, S_KB, S_VB, S_LD, S_CNT, S_T = 8, 9, 10, 11, 12, 13, 14, 16
    a(f'''
    s_load_dwordx2 s[20:21], s[0:1], 80
    v_lshrrev_b32 v8, 6, v0
    v_and_b32 v0, 63, v0
    v_readfirstlane_b32 s{S_W}, v8
    s_and_b32 s{S_T}, s2, 7
    s_lshr_b32 s{S_T+1}, s2, 3
    s_lshr_b32 s{S_T+2}, s{S_T+1}, 3
    s_lshl_b32 s{S_HD}, s{S_T}, 2
    s_add_u32 s{S_HD}, s{S_HD}, s{S_T+2}
    s_and_b32 s{S_T+1}, s{S_T+1}, 7
    s_lshl_b32 s{S_TB}, s{S_T+1}, 3
    s_add_u32 s{S_TB}, s{S_TB}, s{S_W}
    v_lshlrev_b32 v{V_L16}, 4, v0
    ''')
    if prio: a(f's_setprio {prio}')
    if stamp: a('s_memtime s[90:91]\ns_memrealtime s[92:93]')
    a(f'''
    s_and_b32 s{S_T}, s{S_W}, 1
    s_lshr_b32 s{S_T+1}, s{S_W}, 1
    s_lshl_b32 s{S_KB}, s{S_HD}, 17
    s_lshl_b32 s{S_T+2}, s{S_T}, 16
    s_add_u32 s{S_KB}, s{S_KB}, s{S_T+2}
    s_lshl_b32 s{S_T+2}, s{S_T+1}, 10
    s_add_u32 s{S_KB}, s{S_KB}, s{S_T+2}
    s_add_u32 s{S_KB}, s{S_KB}, {WS_QKV + 32*131072}
    s_lshl_b32 s{S_LD}, s{S_W}, 10
    s_lshl_b32 s{S_VB}, s{S_HD}, 17
    s_add_u32 s{S_VB}, s{S_VB}, s{S_LD}
    s_add_u32 s{S_VB}, s{S_VB}, {WS_QKV + 64*131072}
    s_waitcnt lgkmcnt(0)
    s_mov_b32 s{S_WS}, s20
    s_mov_b32 s{S_WS+1}, s21
    s_mov_b32 s{S_WS+2}, 0x10000000
    s_mov_b32 s{S_WS+3}, 0x20000
    ''')
    srd = f's[{S_WS}:{S_WS+3}]'
    def dma(slot):
        return [[f's_add_u32 m0, s{S_LD}, {slot*CH}', f'buffer_load_dwordx4 v{V_L16}, {srd}, s{S_KB} offen lds', f's_add_u32 s{S_KB}, s{S_KB}, 4096'],
                [f's_add_u32 m0, s{S_LD}, {slot*CH + 8192}', f'buffer_load_dwordx4 v{V_L16}, {srd}, s{S_VB} offen lds', f's_add_u32 s{S_VB}, s{S_VB}, 8192']]
    for l in dma(0)[0]: a(l)
    a(f'''
    s_lshl_b32 s{S_T}, s{S_HD}, 17
    s_lshl_b32 s{S_T+1}, s{S_TB}, 10
    s_add_u32 s{S_T}, s{S_T}, s{S_T+1}
    s_add_u32 s{S_T+1}, s{S_T}, 65536
    buffer_load_dwordx4 {r4(Q)}, v{V_L16}, {srd}, s{S_T} offen
    buffer_load_dwordx4 {r4(Q+4)}, v{V_L16}, {srd}, s{S_T+1} offen
    v_and_b32 v3, 31, v0
    v_lshlrev_b32 v3, 2, v3
    s_lshl_b32 s{S_T+2}, s{S_TB}, 7
    s_add_u32 s{S_T+2}, s{S_T+2}, {WS_G:#x}
    ''')
    for l in dma(0)[1]: a(l)
    a(f'''
    v_bfe_u32 v8, v0, 4, 1
    v_and_b32 v9, 6, v0
    v_mov_b32 v10, 0x3f803f80
    v_cmp_eq_u32 vcc, 0, v9
    v_cndmask_b32 v{ONES}, 0, v10, vcc
    v_cndmask_b32 v{ONES+1}, 0, v10, vcc
    v_cmp_eq_u32 vcc, 4, v9
    v_cndmask_b32 v{ONES+2}, 0, v10, vcc
    v_cndmask_b32 v{ONES+3}, 0, v10, vcc
    v_and_b32 v9, 1, v0
    v_mul_u32_u24 v9, 0xaaaa, v9
    v_add_u32 v{V_IDX}, 0x4444, v9
    v_lshl_or_b32 v{V_IDX}, v{V_IDX}, 16, v{V_IDX}
    ''')
    for r in range(4): a(f'v_mov_b32 v{L+r}, 0')
    for r in range(16): a(f'v_mov_b32 v{O+r}, 0')
    for r in range(8): a(f'v_mov_b32 v{P+r}, 0')
    for r in range(8): a(f'v_mov_b32 v{VF+r}, 0')

    def off(blk): return ((blk >> 2) % RING) * CH + (blk & 3) * 2048
    def kread(blk, kk): return 's_nop 0' if ('L' in exp and blk > 1 and blk % 2) else f'ds_read_b128 {r4(KF + 4*kk)}, v{V_L16} offset:{off(blk) + kk*1024}'
    def vread(blk, m): return 's_nop 0' if ('L' in exp and blk % 2) else f'ds_read_b128 {r4(VF + 4*m)}, v{V_L16} offset:{off(blk) + 8192 + m*1024}'
    def qk(blk, c):
        s = S[blk & 1]
        return [f'v_mfma_f32_32x32x16_bf16 {r16(s)}, {r4(KF)}, {r4(Q)}, {c}',
                f'v_mfma_f32_32x32x16_bf16 {r16(s)}, {r4(KF+4)}, {r4(Q+4)}, {r16(s)}']
    def rowmax(s, dst, tmp):
        a(f'v_max3_f32 v{dst}, v{s}, v{s+1}, v{s+2}')
        a(f'v_max3_f32 v{tmp}, v{s+3}, v{s+4}, v{s+5}')
        for j in range(6, 14, 4):
            a(f'v_max3_f32 v{dst}, v{dst}, v{s+j}, v{s+j+1}')
            a(f'v_max3_f32 v{tmp}, v{tmp}, v{s+j+2}, v{s+j+3}')
        a(f'v_max3_f32 v{dst}, v{dst}, v{s+14}, v{s+15}')
        a(f'v_max_f32 v{dst}, v{dst}, v{tmp}')
        a(f'v_mov_b32 v{tmp}, v{dst}')
        a(f'v_permlane32_swap_b32 v{dst}, v{tmp}')
        a(f'v_max_f32 v{dst}, v{dst}, v{tmp}')

    a('s_waitcnt vmcnt(0)\ns_barrier')
    a(kread(0, 0)); a(kread(0, 1))
    for it in dma(1):
        for l in it: a(l)
    a('s_waitcnt lgkmcnt(0)')
    for l in qk(0, '0'): a(l)
    a(kread(1, 0)); a(kread(1, 1))
    a(f'''
    buffer_load_dword v{V_G}, v3, {srd}, s{S_T+2} offen
    ''')
    for it in dma(2):
        for l in it: a(l)
    rowmax(S[0], 8, 9)
    for r in range(16): a(f'v_sub_f32 v{CM+r}, 0, v8')
    for r in range(16): a(f'v_sub_f32 v{S[0]+r}, v{S[0]+r}, v8')
    a(f's_mov_b32 s{S_CNT}, 4')
    a('s_waitcnt lgkmcnt(0)')
    if stamp: a('s_memtime s[88:89]\ns_waitcnt lgkmcnt(0)')

    summ = f'v_smfmac_f32_16x16x64_bf16 {r4(L)}, {r4(ONES)}, v[{P}:{P+7}], v{V_IDX}'
    def pv(vf, pp): return f'v_mfma_f32_32x32x16_bf16 {r16(O)}, {r4(vf)}, {r4(pp)}, {r16(O)}'
    def body(i, last_iter=False):
        s = S[i & 1]
        final = last_iter and i == 15
        nok = last_iter and i >= 14
        ex = lambda j: f'v_exp_f32 v{s+j}, v{s+j}'
        cv = lambda j: f'v_cvt_pk_bf16_f32 v{P+j}, v{s+2*j}, v{s+2*j+1}'
        q = qk(i + 1, r16(CM)) if not final else [None, None]
        sync = ((i + 2) & 3) == 0 and not nok
        prevk = 0 if (last_iter and i == 15) else 1
        d = [[], []]
        early = 'E' in exp
        if sync:
            c = (i + 2) >> 2
            nxt = not (last_iter and c >= 2)
            a(f's_waitcnt vmcnt({2 if not (last_iter and c == 3) else 0})' + ('' if early else f' lgkmcnt({1 + prevk})'))
            a('s_barrier')
            if nxt: d = dma((c + 2) % RING)
        elif not early:
            a(f's_waitcnt lgkmcnt({1 + prevk})')
        k0 = kread(i + 2, 0) if not nok else None
        k1 = kread(i + 2, 1) if not nok else None
        w2 = f's_waitcnt lgkmcnt({1 + (0 if nok else 1)})'
        E = [ex(j) for j in range(16)]; C = [cv(j) for j in range(8)]
        d00 = d[0][:1]; d01 = d[0][1:]; d10 = d[1][:1]; d11 = d[1][1:]
        if 'E' in exp:
            if 'F' in exp:
                seq = d00 + [q[0], k0] + d01 + E[0:4] + [pv(VF, P), vread(i, 0)] + E[4:8] + [summ, w2] + C[0:4] + d10 + [q[1], k1] + d11 + E[8:12] + [pv(VF + 4, P + 4), vread(i, 1), w2] + E[12:16] + C[4:8]
            else:
                seq = [q[0], k0, E[0], E[1]] + d00 + [E[2]] + d01 + [E[3], pv(VF, P), vread(i, 0)] + E[4:8] + [summ, w2] + C[0:4] + [q[1], k1, E[8], E[9]] + d10 + [E[10]] + d11 + [E[11], pv(VF + 4, P + 4), vread(i, 1), w2] + E[12:16] + C[4:8]
        elif 'A' in exp:
            seq = [q[0], k0, E[0], E[1]] + d00 + [E[2]] + d01 + [E[3], pv(VF, P), vread(i, 0)] + E[4:8] + [summ] + C[0:4] + [w2, q[1], k1, E[8], E[9]] + d10 + [E[10]] + d11 + [E[11], pv(VF + 4, P + 4), vread(i, 1)] + E[12:16] + C[4:8]
        elif 'B' in exp:
            seq = [q[0], E[0], k0, E[1]] + d00 + [E[2]] + d01 + [E[3], pv(VF, P), E[4], vread(i, 0), E[5], summ, E[6], C[0], E[7], C[1], w2, q[1], E[8], k1, C[2], E[9]] + d10 + [C[3], E[10]] + d11 + [E[11], pv(VF + 4, P + 4), E[12], vread(i, 1), C[4], E[13], C[5], E[14], E[15], C[6], C[7]]
        elif 'C' in exp:
            seq = [q[0], E[0], k0, E[1]] + d00 + [E[2]] + d01 + [E[3], summ, E[4], pv(VF, P), E[5], vread(i, 0), E[6], E[7], C[0], C[1], C[2], w2, q[1], C[3], E[8], k1, E[9]] + d10 + [E[10]] + d11 + [E[11], E[12], pv(VF + 4, P + 4), E[13], vread(i, 1), E[14], E[15]] + C[4:8]
        else:
            seq = [q[0], E[0], k0, E[1]] + d00 + [E[2]] + d01 + [E[3], pv(VF, P), E[4], vread(i, 0)] + E[5:8] + [summ] + C[0:4] + [w2, q[1], E[8], k1, E[9]] + d10 + [E[10]] + d11 + [E[11], pv(VF + 4, P + 4), E[12], vread(i, 1)] + E[13:16] + C[4:8]
        for l in seq:
            if l: a(l)
    m0 = a.mark()
    a.label(f'{name}_loop')
    for i in range(16): body(i)
    a(f's_sub_u32 s{S_CNT}, s{S_CNT}, 1\ns_cmp_lg_u32 s{S_CNT}, 1\ns_cbranch_scc1 {name}_loop')
    m1 = a.mark()
    for i in range(16):
        body(i, last_iter=True)
    a('s_waitcnt lgkmcnt(0)')
    a(summ)
    for h in range(2): a(pv(VF + 4*h, P + 4*h))
    a(f'v_add_f32 v{L}, v{L}, v{L+1}')
    if stamp: a('s_memtime s[94:95]')
    a(f'v_mov_b32 v8, 0x207\nv_mov_b32 v9, 0x5f800000\nv_cmp_nlt_f32 s[22:23], v{L}, v9')
    for r in range(16):
        a(f'v_cmp_class_f32 vcc, v{O+r}, v8')
        a('s_or_b64 s[22:23], s[22:23], vcc')
    if force_slow: a(f's_branch {name}_slow')
    a(f's_cmp_lg_u64 s[22:23], 0\ns_cbranch_scc1 {name}_slow')
    a.label(f'{name}_fin')
    a(f'''
    v_rcp_f32 v8, v{L}
    s_mul_i32 s{S_T}, s{S_TB}, {OH_TB}
    s_lshl_b32 s{S_T+1}, s{S_HD}, 11
    s_add_u32 s{S_T}, s{S_T}, s{S_T+1}
    s_add_u32 s{S_T}, s{S_T}, {WS_OH:#x}
    v_mul_f32 v8, v8, v{V_G}
    ''')
    for r in range(16): a(f'v_mul_f32 v{O+r}, v{O+r}, v8')
    for j in range(8): a(f'v_cvt_pk_bf16_f32 v{S[0]+j}, v{O+2*j}, v{O+2*j+1}')
    for pr in range(2):
        b = S[0] + 4*pr
        a(f'v_permlane32_swap_b32 v{b}, v{b+2}\nv_permlane32_swap_b32 v{b+1}, v{b+3}')
        a(f'buffer_store_dwordx4 {r4(b)}, v{V_L16}, {srd}, s{S_T} offen offset:{pr*1024} sc1')
    a(f'''
    s_lshr_b32 s{S_T}, s{S_TB}, 3
    s_lshl_b32 s{S_T}, s{S_T}, 7
    s_add_u32 s{S_T}, s{S_T}, {WS_FLAG:#x}
    v_mov_b32 v8, 0
    v_mov_b32 v9, 1
    s_waitcnt vmcnt(0)
    s_barrier
    s_cmp_lg_u32 s{S_W}, 0
    s_cbranch_scc1 {name}_sig
    s_mov_b64 exec, 1
    buffer_atomic_add v9, v8, {srd}, s{S_T} offen sc1
    s_mov_b64 exec, -1
    ''')
    a.label(f'{name}_sig')
    if stamp: stamp_out(a, srd, S_W, 0x8100000)
    a('s_endpgm')
    m2 = a.mark()
    a.label(f'{name}_slow')
    M, AL, T2 = 8, 9, 10
    a(f'''
    s_lshl_b32 s{S_KB}, s{S_HD}, 17
    s_add_u32 s{S_VB}, s{S_KB}, {WS_QKV + 64*131072}
    s_add_u32 s{S_KB}, s{S_KB}, {WS_QKV + 32*131072}
    v_mov_b32 v{M}, 0xff800000
    s_mov_b32 s{S_CNT}, 64
    ''')
    for r in range(4): a(f'v_mov_b32 v{L+r}, 0')
    for r in range(16): a(f'v_mov_b32 v{O+r}, 0')
    s0 = a.mark()
    a.label(f'{name}_sloop')
    a(f'''
    s_add_u32 s{S_T}, s{S_KB}, 65536
    buffer_load_dwordx4 {r4(KF)}, v{V_L16}, {srd}, s{S_KB} offen
    buffer_load_dwordx4 {r4(KF+4)}, v{V_L16}, {srd}, s{S_T} offen
    buffer_load_dwordx4 {r4(VF)}, v{V_L16}, {srd}, s{S_VB} offen
    buffer_load_dwordx4 {r4(VF+4)}, v{V_L16}, {srd}, s{S_VB} offen offset:1024
    s_add_u32 s{S_KB}, s{S_KB}, 1024
    s_add_u32 s{S_VB}, s{S_VB}, 2048
    s_waitcnt vmcnt(0)
    ''')
    for l in qk(0, '0'): a(l)
    rowmax(S[0], AL, T2)
    a(f'''
    v_max_f32 v{T2}, v{AL}, v{M}
    v_sub_f32 v{AL}, v{M}, v{T2}
    v_exp_f32 v{AL}, v{AL}
    v_mov_b32 v{M}, v{T2}
    ''')
    for r in range(16): a(f'v_sub_f32 v{S[0]+r}, v{S[0]+r}, v{M}')
    for r in range(16): a(f'v_exp_f32 v{S[0]+r}, v{S[0]+r}')
    for r in range(4): a(f'v_mul_f32 v{L+r}, v{L+r}, v{AL}')
    for r in range(16): a(f'v_mul_f32 v{O+r}, v{O+r}, v{AL}')
    for j in range(8): a(f'v_cvt_pk_bf16_f32 v{P+j}, v{S[0]+2*j}, v{S[0]+2*j+1}')
    a(summ)
    for m in range(2): a(pv(VF + 4*m, P + 4*m))
    a(f's_nop 15\ns_sub_u32 s{S_CNT}, s{S_CNT}, 1\ns_cmp_lg_u32 s{S_CNT}, 0\ns_cbranch_scc1 {name}_sloop')
    s1 = a.mark()
    a(f'v_add_f32 v{L}, v{L}, v{L+1}\ns_branch {name}_fin')
    tr = a.ins[:m1] + a.ins[m0:m1] + a.ins[m1:m2]
    return check_seq(tr, name) + check_seq(a.ins[m2:s1] + a.ins[s0:s1], name + '_slow')

def down(a, name, stamp, prio, exp=''):
    R, SB = 5, 16384
    V_L16, V_WOFF, V_AB, V_AB2, V_WB, V_WB2, V_ARD, V_ARD2, V_WRD, V_WRD2, V_FL, V_Z, V_G = 1, 2, 3, 4, 5, 6, 7, 8, 9, 10, 11, 12, 13
    ACC = 20
    FR = [52, 76]
    PT = 100
    S_A, S_WD, S_WS, S_OUT = 4, 8, 12, 48
    S_W, S_WR, S_WQ, S_RB, S_CB, S_KH, S_AK, S_WK, S_LA, S_LW, S_SLOT, S_CNT, S_RS, S_T = 16, 17, 18, 19, 20, 21, 22, 23, 24, 25, 26, 27, 28, 30
    S_TB0, S_FA, S_FP, S_AO = 36, 37, 38, 39
    st = a.mark()
    a(f'''
    s_load_dwordx2 s[40:41], s[0:1], 16
    s_load_dwordx2 s[42:43], s[0:1], 48
    s_load_dwordx2 s[44:45], s[0:1], 64
    s_load_dwordx2 s[46:47], s[0:1], 80
    v_lshrrev_b32 v17, 6, v0
    v_and_b32 v0, 63, v0
    v_readfirstlane_b32 s{S_W}, v17
    s_and_b32 s{S_T}, s2, 7
    s_lshr_b32 s{S_T+1}, s2, 3
    s_and_b32 s{S_T+1}, s{S_T+1}, 31
    s_and_b32 s{S_KH}, s{S_T}, 1
    s_lshr_b32 s{S_T}, s{S_T}, 1
    s_lshl_b32 s{S_RB}, s{S_T}, 2
    s_lshr_b32 s{S_T+2}, s{S_T+1}, 3
    s_add_u32 s{S_RB}, s{S_RB}, s{S_T+2}
    s_and_b32 s{S_CB}, s{S_T+1}, 7
    s_lshr_b32 s{S_WR}, s{S_W}, 2
    s_and_b32 s{S_WQ}, s{S_W}, 3
    v_lshlrev_b32 v{V_L16}, 4, v0
    ''')
    if prio: a(f's_setprio {prio}')
    if stamp: a('s_memtime s[90:91]\ns_memrealtime s[92:93]')
    a(f'''
    s_lshl_b32 s{S_T}, s{S_RB}, 2
    s_lshr_b32 s{S_T+1}, s{S_W}, 1
    s_add_u32 s{S_T}, s{S_T}, s{S_T+1}
    s_mul_i32 s{S_AO}, s{S_T}, {OH_TB}
    s_add_u32 s{S_AO}, s{S_AO}, {WS_OH:#x}
    s_and_b32 s{S_T}, s{S_W}, 1
    s_lshl_b32 s{S_T}, s{S_T}, 10
    s_add_u32 s{S_AO}, s{S_AO}, s{S_T}
    s_mul_i32 s{S_T}, s{S_KH}, {1792*64}
    s_add_u32 s{S_AK}, s{S_AO}, s{S_T}
    s_add_u32 s{S_AK}, s{S_AK}, {1024*64}
    s_mul_i32 s{S_WK}, s{S_KH}, {1792*2048}
    s_lshl_b32 s{S_LA}, s{S_W}, 10
    s_add_u32 s{S_LW}, s{S_LA}, 8192
    v_lshrrev_b32 v17, 2, v0
    s_lshl_b32 s{S_T}, s{S_WR}, 4
    v_add_u32 v17, s{S_T}, v17
    v_lshlrev_b32 v17, 11, v17
    v_lshrrev_b32 v18, 5, v0
    v_lshlrev_b32 v18, 1, v18
    v_and_b32 v19, 3, v0
    v_xor_b32 v18, v18, v19
    v_lshlrev_b32 v18, 4, v18
    s_lshl_b32 s{S_T}, s{S_CB}, 8
    s_lshl_b32 s{S_T+1}, s{S_WQ}, 6
    s_add_u32 s{S_T}, s{S_T}, s{S_T+1}
    v_add3_u32 v{V_WOFF}, v17, v18, s{S_T}
    s_mov_b32 s{S_SLOT}, 0
    s_waitcnt lgkmcnt(0)
    s_mov_b32 s{S_A}, s46
    s_mov_b32 s{S_A+1}, s47
    s_mov_b32 s{S_A+2}, 0x10000000
    s_mov_b32 s{S_A+3}, 0x20000
    s_mov_b32 s{S_WD}, s42
    s_mov_b32 s{S_WD+1}, s43
    s_mov_b32 s{S_WD+2}, {3584*2048}
    s_mov_b32 s{S_WD+3}, 0x20000
    ''')
    sa = f's[{S_A}:{S_A+3}]'; wd = f's[{S_WD}:{S_WD+3}]'; ws = f's[{S_WS}:{S_WS+3}]'
    WOFS = R * 8192
    def dma(slot):
        return [[f's_add_u32 m0, s{S_LA}, {slot*8192}', f'buffer_load_dwordx4 v{V_L16}, {sa}, s{S_AK} offen sc1 lds', f's_add_u32 s{S_AK}, s{S_AK}, 2048'],
                [f's_add_u32 m0, s{S_LA}, {WOFS + slot*8192}', f'buffer_load_dwordx4 v{V_WOFF}, {wd}, s{S_WK} offen lds', f's_add_u32 s{S_WK}, s{S_WK}, {32*2048}']]
    for s_ in range(2):
        for it in dma(s_):
            for l in it: a(l)
    a(f'''
    s_mov_b32 s{S_WS}, s46
    s_mov_b32 s{S_WS+1}, s47
    s_mov_b32 s{S_WS+2}, 0x10000000
    s_mov_b32 s{S_WS+3}, 0x20000
    s_mov_b32 s{S_OUT}, s44
    s_mov_b32 s{S_OUT+1}, s45
    s_mov_b32 s{S_OUT+2}, {2048*2048}
    s_mov_b32 s{S_OUT+3}, 0x20000
    v_and_b32 v17, 15, v0
    v_lshrrev_b32 v18, 4, v0
    v_lshlrev_b32 v19, 9, v18
    v_lshl_add_u32 v19, v17, 4, v19
    s_lshl_b32 s{S_T}, s{S_WR}, 12
    s_lshl_b32 s{S_T+1}, s{S_KH}, 11
    s_add_u32 s{S_T}, s{S_T}, s{S_T+1}
    v_add_u32 v{V_AB}, s{S_T}, v19
    v_xor_b32 v{V_AB2}, 2048, v{V_AB}
    v_lshrrev_b32 v19, 5, v0
    v_lshlrev_b32 v19, 12, v19
    v_and_b32 v18, 1, v18
    v_lshl_add_u32 v19, v18, 9, v19
    v_lshl_add_u32 v19, v18, 5, v19
    v_lshrrev_b32 v18, 2, v17
    v_lshl_add_u32 v19, v18, 6, v19
    v_and_b32 v18, 3, v17
    v_lshl_add_u32 v19, v18, 3, v19
    s_lshl_b32 s{S_T}, s{S_WQ}, 10
    s_add_u32 s{S_T}, s{S_T}, {WOFS}
    v_add_u32 v{V_WB}, s{S_T}, v19
    v_xor_b32 v{V_WB2}, 32, v{V_WB}
    s_mov_b32 s{S_CNT}, 7
    v_mov_b32 v{V_Z}, 0
    s_lshr_b32 s{S_FA}, s{S_RB}, 1
    s_lshl_b32 s{S_FA}, s{S_FA}, 7
    s_add_u32 s{S_FA}, s{S_FA}, {WS_FLAG:#x}
    s_lshl_b32 s{S_FP}, s2, 3
    s_add_u32 s{S_FP}, s{S_FP}, s{S_W}
    s_lshl_b32 s{S_FP}, s{S_FP}, 6
    s_add_u32 s{S_FP}, s{S_FP}, {WS_FLAG:#x}
    s_lshl_b32 s{S_TB0}, s{S_RB}, 2
    s_lshl_b32 s{S_T}, s{S_WR}, 1
    s_add_u32 s{S_TB0}, s{S_TB0}, s{S_T}
    s_add_u32 s{S_TB0}, s{S_TB0}, s{S_KH}
    s_lshl_b32 s{S_T+4}, s{S_TB0}, 7
    s_add_u32 s{S_T+4}, s{S_T+4}, {WS_G:#x}
    s_xor_b32 s{S_T+5}, s{S_T+4}, 128
    v_lshlrev_b32 v17, 2, v17
    ''')
    for r in range(ACC, ACC + 32): a(f'v_mov_b32 v{r}, 0')
    def reads(st_, slot):
        f = FR[st_]
        W = [f'ds_read_b64_tr_b16 v[{f+16+4*p+2*h}:{f+16+4*p+2*h+1}], v{(V_WB, V_WB2)[p]} offset:{slot*8192 + h*256}' for p in range(2) for h in range(2)]
        A = [f'ds_read_b128 {r4(f+4*t)}, v{(V_AB, V_AB2)[t>>1]} offset:{slot*8192 + (t&1)*256}' for t in range(4)]
        return W[:2] + A + W[2:]
    def mfmas(st_):
        f = FR[st_]
        return [f'v_mfma_f32_16x16x32_bf16 {r4(ACC+8*t+4*p)}, {r4(f+16+4*p)}, {r4(f+4*t)}, {r4(ACC+8*t+4*p)}' for p in range(2) for t in range(4)]
    def stage(j, vm, slots, extra=()):
        a(f's_waitcnt vmcnt({vm}) lgkmcnt(0)\ns_barrier')
        rd = reads(1 - (j & 1), (j + 1) % R); mm = mfmas(j & 1)
        dm = []
        for sl in slots: dm += dma(sl)
        dm += [[None, l] for l in extra]
        n = (len(dm) + 1) // 2
        d0, r0 = (0, 2) if 'o' in exp else (4, 0)
        if 'O' in exp:
            for l in rd: a(l)
            d0, r0 = 1, 99
        for i in range(8):
            its = dm[(i-d0)*n:(i-d0+1)*n] if d0 <= i < d0 + 2 else []
            if its and its[0][0]: a(its[0][0])
            a(mm[i])
            for k, it in enumerate(its):
                for l in (it[1:] if k == 0 else [x for x in it if x]): a(l)
            if r0 <= i < r0 + 4: a(rd[2*(i-r0)]); a(rd[2*(i-r0)+1])
    a(f's_waitcnt vmcnt(2)\ns_barrier')
    for l in reads(0, 0): a(l)
    for it in dma(2):
        for l in it: a(l)
    if stamp: a('s_memtime s[88:89]')
    stage(0, 2, [3, 4])
    stage(1, 4, [0, 1], [f'buffer_load_dword v{V_G+t}, v17, {ws}, s{S_T+4+(t>>1)} offen offset:{(t&1)*64}' for t in range(4)])
    m0 = a.mark()
    a.label(f'{name}_loop')
    for k in range(10):
        j = 2 + k
        if k == 9:
            a(f's_cmp_eq_u32 s{S_CNT}, 3\ns_cbranch_scc1 {name}_sw')
            a.label(f'{name}_b1')
        stage(j, 2*(R-2), [j % R])
        if k == 3:
            if 'S' in exp: a(f's_cmp_eq_u32 s{S_CNT}, 3\ns_cbranch_scc1 {name}_fl')
            a(f'''
            s_cmp_eq_u32 s{S_CNT}, 2
            s_cbranch_scc1 {name}_sc
            ''')
            a.label(f'{name}_b2')
    a(f's_sub_u32 s{S_CNT}, s{S_CNT}, 1\ns_cmp_lg_u32 s{S_CNT}, 0\ns_cbranch_scc1 {name}_loop')
    m1 = a.mark()
    if stamp: a('s_memtime s[82:83]')
    a(f'''
    s_sub_u32 s52, s2, 256
    s_lshl_b32 s52, s52, 3
    s_add_u32 s52, s52, s{S_W}
    s_lshl_b32 s52, s52, 11
    s_add_u32 s52, s52, {WS_PART:#x}
    s_xor_b32 s53, s52, {8*2048}
    ''')
    for j in range(8): a(f'v_cvt_pk_bf16_f32 v{PT+j}, v{ACC+16+2*j}, v{ACC+16+2*j+1}')
    for j in range(8): a(f'v_max_u32 v{PT+j}, 1, v{PT+j}')
    for h in range(2): a(f'buffer_store_dwordx4 {r4(PT+4*h)}, v{V_L16}, {ws}, s52 offen offset:{h*1024} sc1')
    a(f'''
    v_and_b32 v18, 15, v0
    v_lshrrev_b32 v19, 4, v0
    v_lshlrev_b32 v18, 11, v18
    v_and_b32 v{V_ARD}, 1, v19
    v_lshl_add_u32 v18, v{V_ARD}, 5, v18
    v_lshrrev_b32 v19, 1, v19
    v_lshl_add_u32 v18, v19, 4, v18
    s_lshl_b32 s55, s{S_TB0}, 16
    s_lshl_b32 s{S_T}, s{S_CB}, 8
    s_add_u32 s55, s55, s{S_T}
    s_lshl_b32 s{S_T}, s{S_WQ}, 6
    s_add_u32 s55, s55, s{S_T}
    s_add_u32 s56, s55, {16*2048}
    s_mov_b32 s57, 0xffff0000
    s_waitcnt lgkmcnt(0)
    ''')
    a.label(f'{name}_poll')
    a(f'''
    buffer_load_dwordx4 {r4(PT+8)}, v{V_L16}, {ws}, s53 offen sc1
    buffer_load_dwordx4 {r4(PT+12)}, v{V_L16}, {ws}, s53 offen offset:1024 sc1
    s_waitcnt vmcnt(0)
    v_min3_u32 v17, v{PT+8}, v{PT+9}, v{PT+10}
    v_min3_u32 v19, v{PT+11}, v{PT+12}, v{PT+13}
    v_min3_u32 v17, v17, v{PT+14}, v{PT+15}
    v_min_u32 v17, v17, v19
    v_cmp_eq_u32 vcc, 0, v17
    s_cmp_lg_u64 vcc, 0
    s_cbranch_scc1 {name}_poll
    ''')
    for t in range(2):
        for j in range(4):
            a(f'v_lshlrev_b32 v{FR[0]+2*j}, 16, v{PT+8+4*t+j}\nv_and_b32 v{FR[0]+2*j+1}, s57, v{PT+8+4*t+j}')
        for r in range(8): a(f'v_add_f32 v{ACC+8*t+r}, v{ACC+8*t+r}, v{FR[0]+r}')
        o = FR[1] + 4*t
        for j in range(4): a(f'v_cvt_pk_bf16_f32 v{o+j}, v{ACC+8*t+2*j}, v{ACC+8*t+2*j+1}')
        a(f'v_permlane16_swap_b32 v{o}, v{o+2}\nv_permlane16_swap_b32 v{o+1}, v{o+3}')
        a(f'buffer_store_dwordx4 {r4(o)}, v18, s[{S_OUT}:{S_OUT+3}], s{55+t} offen')
    if stamp: stamp_out(a, ws, S_W, 0x8300000, 256)
    a('s_endpgm')
    e0 = a.mark()
    if 'S' in exp:
        a.label(f'{name}_fl')
        a(f'buffer_load_dword v{V_FL}, v{V_Z}, {ws}, s{S_FA} offen sc1\ns_branch {name}_b2')
        e1 = a.mark()
        a.label(f'{name}_sw')
        if stamp: a('s_memtime s[94:95]')
        a(f'''
        s_lshl_b32 s{S_T}, s{S_KH}, 15
        s_add_u32 s{S_AK}, s{S_AO}, s{S_T}
        s_and_b32 s{S_T}, s{S_AK}, 0xfffff800
        s_add_u32 s{S_A+2}, s{S_T}, {512*64}
        s_mov_b32 s{S_WD}, s40
        s_mov_b32 s{S_WD+1}, s41
        s_lshl_b32 s{S_WK}, s{S_KH}, 20
        s_add_u32 s{S_WD+2}, s{S_WK}, {512*2048}
        s_cmp_lg_u32 s{S_W}, 0
        s_cbranch_scc1 {name}_b1
        ''')
        a.label(f'{name}_sw2')
        a(f'''
        v_readfirstlane_b32 s{S_T}, v{V_FL}
        s_cmp_ge_u32 s{S_T}, 32
        s_cbranch_scc1 {name}_b1
        s_sleep 3
        buffer_load_dword v{V_FL}, v{V_Z}, {ws}, s{S_FA} offen sc1
        s_waitcnt vmcnt(0)
        s_branch {name}_sw2
        ''')
        e2 = a.mark()
        a.label(f'{name}_sc')
        if stamp: a('s_memtime s[84:85]')
        a('s_nop 4')
        for t in range(4): a(f'v_sub_f32 v{V_G+t}, 1.0, v{V_G+t}')
        for t in range(4):
            for r in range(8): a(f'v_mul_f32 v{ACC+8*t+r}, v{ACC+8*t+r}, v{V_G+t}')
        a(f's_branch {name}_b2')
        e3 = a.mark()
        body = a.ins[m0:m1]
        ib1 = [i for i, x in enumerate(body) if x.text == f'{name}_b1:'][0]
        ib2 = [i for i, x in enumerate(body) if x.text == f'{name}_b2:'][0]
        tr = a.ins[st:m1] + body[:ib2] + a.ins[e0:e1] + body[ib2:ib1] + a.ins[e1:e2-4] + body[ib1:] + body[:ib2] + a.ins[e2:e3] + body[ib2:] + body + a.ins[m1:e0]
        return list(dict.fromkeys(check_seq(tr, name)))
    e1 = a.mark()
    a.label(f'{name}_sw')
    a(f'''
    s_mov_b32 s{S_A+2}, 0
    s_mov_b32 s{S_WD}, s40
    s_mov_b32 s{S_WD+1}, s41
    s_lshl_b32 s{S_WK}, s{S_KH}, 20
    s_add_u32 s{S_WD+2}, s{S_WK}, {512*2048}
    s_branch {name}_b1
    ''')
    e2 = a.mark()
    a.label(f'{name}_sc')
    if stamp: a('s_memtime s[94:95]')
    a(f'buffer_load_dword v{V_FL}, v{V_Z}, {ws}, s{S_FA} offen sc1')
    for t in range(4): a(f'v_sub_f32 v{V_G+t}, 1.0, v{V_G+t}')
    a(f'''
    s_lshl_b32 s{S_T}, s{S_KH}, 15
    s_add_u32 s{S_AK}, s{S_AO}, s{S_T}
    s_and_b32 s{S_T}, s{S_AK}, 0xfffff800
    s_add_u32 s{S_A+2}, s{S_T}, {512*64}
    s_mov_b32 s{S_T+1}, 0x7fff0000
    ''')
    for t in range(4):
        for r in range(8): a(f'v_mul_f32 v{ACC+8*t+r}, v{ACC+8*t+r}, v{V_G+t}')
    a(f's_waitcnt vmcnt(0) lgkmcnt(0)\ns_cmp_lg_u32 s{S_W}, 0\ns_cbranch_scc1 {name}_go')
    a.label(f'{name}_sw2')
    a(f'''
    v_readfirstlane_b32 s{S_T}, v{V_FL}
    s_cmp_ge_u32 s{S_T}, 32
    s_cbranch_scc1 {name}_go
    s_sleep 3
    buffer_load_dword v{V_FL}, v{V_Z}, {ws}, s{S_FA} offen sc1
    s_waitcnt vmcnt(0)
    s_branch {name}_sw2
    ''')
    a.label(f'{name}_go')
    a('s_barrier')
    if stamp: a('s_memtime s[84:85]')
    for j in range(56, 61):
        for l in dma(j % R)[0]: a(l)
        a(f'buffer_load_dword v{V_FL}, v{V_Z}, {sa}, s{S_T+1} offen')
    a('s_waitcnt vmcnt(9)\ns_barrier')
    for l in reads(0, 56 % R)[2:6]: a(l)
    a(f's_branch {name}_b2')
    e3 = a.mark()
    body = a.ins[m0:m1]
    ib1 = [i for i, x in enumerate(body) if x.text == f'{name}_b1:'][0]
    ib2 = [i for i, x in enumerate(body) if x.text == f'{name}_b2:'][0]
    tr = a.ins[st:m1] + body[:ib1] + a.ins[e1:e2] + body[ib1:] + body[:ib2] + a.ins[e2:e3] + body[ib2:] + body + a.ins[m1:e0]
    return [e for e in dict.fromkeys(check_seq(tr, name)) if f'buffer_load_dword v{V_FL}, v{V_Z}, {sa}' not in e]
    return list(dict.fromkeys(check_seq(tr, name)))

def gen(name='k2_kernel', stamp=False, force_slow=False, prio_a=0, prio_g=0, only=None, exp=''):
    a = Asm()
    a(f'''
    s_cmp_ge_u32 s2, 512
    s_cbranch_scc1 {name}_end
    s_cmp_ge_u32 s2, 256
    s_cbranch_scc1 {name + ('_end' if only == 'a' else '_down')}
    ''')
    if only == 'g': a(f's_branch {name}_end')
    errs = attention(a, name, stamp, force_slow, prio_a, exp)
    a.label(f'{name}_down')
    errs += down(a, name + '_d', stamp, prio_g, exp)
    a.label(f'{name}_end')
    a('s_endpgm')
    for e in errs[:20]: print('CHECK', e)
    return kernel_text(name, a, NV, 102, NV), LDS_BYTES
```

```python
from asmlib import *
import struct, os

WS_QKV = 0
WS_OH = 0x1000000
WS_G = 0x2200000
WS_FLAG = 0x2300000
WS_PART = 0x2400000
OH_TB = 4608 * 64
LOG2E = 1.4426950408889634
def f2u(f): return struct.unpack('<I', struct.pack('<f', f))[0]
QSCALE = f2u(32 ** -0.5 * LOG2E)
NLOG2E = f2u(-LOG2E)

XBUF = [0, 32768]
WBUF = [65536, 65536 + 40960]
LDS_BYTES = 65536 + 81920

def acc(half, t, tb):
    idx = (t * 2 + half) * 8 + tb
    if os.environ.get('RA') == '1':
        return ('v', 48 + 4 * idx) if idx < 16 else ('a', 4 * (idx - 16))
    if idx < 52: return ('v', 48 + 4 * idx)
    return ('a', 4 * (idx - 52))
def rng(r, n=4): return f'{r[0]}[{r[1]}:{r[1]+n-1}]'
FK = 'v' if os.environ.get('RA') == '1' else 'a'
def xfrag(st, tb): return (FK, 112 + 72 * st + 4 * tb)
def wfrag(st, half, t): return (FK, 112 + 72 * st + 32 + 4 * (half * 5 + t))

V_XOFF = 1
V_WOFF = 9
V_XRD = 12
V_WRD = 14
V_PF = 16
V_PD = 17
S_X, S_WA, S_WB, S_WC4, S_WS, S_PF = 4, 8, 12, 16, 20, 24
S_XK, S_WK, S_WI = 28, 29, 32
S_LX, S_LW, S_CNT, S_W, S_WR, S_WC, S_RB, S_CT, S_PK, S_PI = 35, 36, 37, 38, 39, 40, 41, 42, 43, 44
S_F0, S_N3, S_N4, S_ODD, S_HS = 45, 46, 47, 48, 49
S_PS, S_PM = 3, 57
S_T = 50
XM = os.environ.get('XM', ''); WM = os.environ.get('WM', '')
import os
PD = int(os.environ.get("PD", "1"))

def gen(name='k1_kernel', stamp=False, sched=None, store_mod='', code_from=None, code_to=None, pf=True):
    a = Asm()
    a(f'''
    s_cmp_ge_u32 s2, 256
    s_cbranch_scc1 {name}_end
    s_load_dwordx4 s[60:63], s[0:1], 0
    s_load_dwordx8 s[64:71], s[0:1], 32
    s_getpc_b64 s[{S_PF}:{S_PF+1}]
    {name}_pc0:
    s_mov_b32 s{S_PF+2}, {name}_pc-{name}_pc0
    s_mov_b32 s{S_PF+3}, 0x20000
    s_lshr_b32 s{S_T}, s2, 3
    s_lshl_b32 s{S_T}, s{S_T}, 10
    v_lshlrev_b32 v16, 2, v0
    buffer_load_dword v47, v16, s[{S_PF}:{S_PF+3}], s{S_T} offen
    s_load_dwordx2 s[72:73], s[0:1], 80
    s_load_dwordx2 s[74:75], s[0:1], 16
    v_lshrrev_b32 v16, 6, v0
    v_and_b32 v0, 63, v0
    v_readfirstlane_b32 s{S_W}, v16
    s_and_b32 s{S_T}, s2, 7
    s_lshr_b32 s{S_T+1}, s2, 3
    s_and_b32 s{S_RB}, s{S_T+1}, 7
    s_lshr_b32 s{S_T+1}, s{S_T+1}, 3
    s_lshl_b32 s{S_CT}, s{S_T}, 2
    s_add_u32 s{S_CT}, s{S_CT}, s{S_T+1}
    s_lshr_b32 s{S_WR}, s{S_W}, 1
    s_and_b32 s{S_WC}, s{S_W}, 1
    ''')
    if stamp: a('s_memtime s[90:91]\ns_memrealtime s[92:93]')
    a(f'''
    s_and_b32 s{S_ODD}, s{S_CT}, 1
    s_lshr_b32 s{S_T}, s{S_CT}, 1
    s_mul_i32 s{S_F0}, s{S_T}, 224
    s_lshl_b32 s{S_T+1}, s{S_ODD}, 7
    s_add_u32 s{S_F0}, s{S_F0}, s{S_T+1}
    s_lshl_b32 s{S_N4}, s{S_T}, 6
    s_add_u32 s{S_N3}, s{S_N4}, 1024
    s_lshl_b32 s{S_T+2}, s{S_ODD}, 11
    s_add_u32 s{S_N4}, s{S_N4}, s{S_T+2}
    s_movk_i32 s{S_T+2}, 7168
    s_cmp_eq_u32 s{S_ODD}, 1
    s_cselect_b32 s{S_T+3}, 6144, s{S_T+2}
    s_lshl_b32 s{S_T+4}, s{S_WC}, 5
    s_add_u32 s{S_T+5}, s{S_N3}, s{S_T+4}
    s_add_u32 s{S_T+6}, s{S_F0}, 96
    s_cmp_eq_u32 s{S_ODD}, 1
    s_cselect_b32 s{S_T+5}, s{S_T+5}, s{S_T+6}
    s_add_u32 s{S_T+6}, s{S_N4}, s{S_T+4}
    s_mov_b32 s{S_WI}, {7168*32}
    s_lshl_b32 s{S_WI+1}, s{S_T+3}, 5
    s_mov_b32 s{S_WI+2}, {6144*32}
    s_and_b32 s{S_HS}, s2, 7
    s_lshl_b32 s{S_XK}, s{S_HS}, 8
    s_lshl_b32 s{S_HS}, s{S_HS}, 2
    s_mul_i32 s{S_WK}, s{S_HS}, s{S_WI}
    s_mul_i32 s{S_WK+1}, s{S_HS}, s{S_WI+1}
    s_mul_i32 s{S_WK+2}, s{S_HS}, s{S_WI+2}
    s_lshl_b32 s{S_LX}, s{S_W}, 13
    s_mul_i32 s{S_LW}, s{S_WR}, 10240
    s_mul_i32 s{S_T}, s{S_WC}, 5120
    s_add_u32 s{S_LW}, s{S_LW}, s{S_T}
    v_lshrrev_b32 v17, 2, v0
    s_lshl_b32 s{S_T}, s{S_WR}, 4
    v_add_u32 v17, s{S_T}, v17
    v_lshrrev_b32 v18, 5, v0
    v_lshlrev_b32 v18, 1, v18
    v_and_b32 v19, 3, v0
    v_xor_b32 v18, v18, v19
    v_lshlrev_b32 v18, 4, v18
    v_mul_u32_u24 v{V_WOFF}, 7168, v17
    v_mul_lo_u32 v{V_WOFF+1}, v17, s{S_T+3}
    v_mul_u32_u24 v{V_WOFF+2}, 6144, v17
    s_lshl_b32 s{S_T}, s{S_F0}, 1
    s_lshl_b32 s{S_T+5}, s{S_T+5}, 1
    s_lshl_b32 s{S_T+6}, s{S_T+6}, 1
    v_add3_u32 v{V_WOFF}, v{V_WOFF}, v18, s{S_T}
    v_add3_u32 v{V_WOFF+1}, v{V_WOFF+1}, v18, s{S_T+5}
    v_add3_u32 v{V_WOFF+2}, v{V_WOFF+2}, v18, s{S_T+6}
    v_lshrrev_b32 v17, 3, v0
    s_lshl_b32 s{S_T}, s{S_RB}, 8
    s_lshl_b32 s{S_T+1}, s{S_W}, 6
    s_add_u32 s{S_T}, s{S_T}, s{S_T+1}
    v_add_u32 v17, s{S_T}, v17
    v_lshlrev_b32 v17, 11, v17
    v_and_b32 v18, 7, v0
    v_lshrrev_b32 v19, 4, v0
    v_xor_b32 v18, v18, v19
    v_lshlrev_b32 v18, 4, v18
    v_add_u32 v17, v17, v18
    v_xor_b32 v18, 64, v17
    ''')
    for i in range(8):
        a(f'v_add_u32 v{V_XOFF+i}, {i*16384}, v{17 if i % 2 == 0 else 18}')
    a(f'''
    v_lshlrev_b32 v18, 4, v0
    s_lshl_b32 s{S_T}, s2, 3
    s_lshl_b32 s{S_T+1}, s{S_W}, 1
    s_add_u32 s58, s{S_T}, s{S_T+1}
    s_lshl_b32 s59, s58, 11
    s_waitcnt lgkmcnt(0)
    {'s_memtime s[78:79]' if stamp else ''}
    s_mov_b32 s{S_X}, s60
    s_mov_b32 s{S_X+1}, s61
    s_mov_b32 s{S_X+2}, {2048*1024*2}
    s_mov_b32 s{S_X+3}, 0x20000
    s_cmp_eq_u32 s{S_WC}, 0
    s_cselect_b32 s{S_WA}, s64, s66
    s_cselect_b32 s{S_WA+1}, s65, s67
    s_mov_b32 s{S_WA+2}, {7168*1024}
    s_mov_b32 s{S_WA+3}, 0x20000
    s_cmp_eq_u32 s{S_ODD}, 1
    s_cselect_b32 s{S_WB}, s62, s{S_WA}
    s_cselect_b32 s{S_WB+1}, s63, s{S_WA+1}
    s_lshl_b32 s{S_WB+2}, s{S_T+3}, 10
    s_mov_b32 s{S_WB+3}, 0x20000
    s_mov_b32 s{S_WC4}, s62
    s_mov_b32 s{S_WC4+1}, s63
    s_mov_b32 s{S_WC4+2}, {6144*1024}
    s_mov_b32 s{S_WC4+3}, 0x20000
    ''')
    def dma_x(buf):
        L = []
        for i in range(8):
            L.append([f's_add_u32 m0, s{S_LX}, {XBUF[buf] + i*1024}',
                      f'buffer_load_dwordx4 v{V_XOFF+i}, s[{S_X}:{S_X+3}], s{S_XK} offen {XM} lds'])
        L[-1] += [f's_add_u32 s{S_XK}, s{S_XK}, 128', f's_and_b32 s{S_XK}, s{S_XK}, 2047']
        return L
    def dma_w(buf, ks):
        L = []
        for q in range(5):
            g = max(0, q - 2)
            io = q * 64 if q < 3 else 0
            srd = (S_WA, S_WB, S_WC4)[g]
            L.append([f's_add_u32 m0, s{S_LW}, {WBUF[buf] + ks*20480 + q*1024 - io}',
                      f'buffer_load_dwordx4 v{V_WOFF+g}, s[{srd}:{srd+3}], s{S_WK+g} offen offset:{io} {WM} lds'])
            if q == 0: L[-1].append(f's_add_u32 s{S_HS}, s{S_HS}, 1')
            if q == 1: L[-1].append(f's_and_b32 s{S_HS}, s{S_HS}, 31')
            if q >= 2: L[-1].append(f's_mul_i32 s{S_WK+g}, s{S_HS}, s{S_WI+g}')
        return L
    def flat(L): return [x for it in L for x in it]
    for l in flat(dma_w(0, 0)) + flat(dma_x(0)): a(l)
    a(f'''
    s_mov_b32 s80, s70
    s_mov_b32 s81, s71
    s_mov_b32 s82, 2048
    s_mov_b32 s83, 0x20000
    s_mov_b32 s{S_WS}, s72
    s_mov_b32 s{S_WS+1}, s73
    s_mov_b32 s{S_WS+2}, 0x10000000
    s_mov_b32 s{S_WS+3}, 0x20000
    ''')
    gl = [[f'buffer_load_dwordx4 v[28:31], v18, s[{S_X}:{S_X+3}], s59 offen'],
          [f'buffer_load_dwordx4 v[32:35], v18, s[{S_X}:{S_X+3}], s59 offen offset:1024'],
          [f'buffer_load_dwordx4 v[36:39], v18, s[{S_X}:{S_X+3}], s59 offen offset:2048'],
          [f'buffer_load_dwordx4 v[40:43], v18, s[{S_X}:{S_X+3}], s59 offen offset:3072'],
          ['buffer_load_dwordx4 v[20:23], v18, s[80:83], 0 offen'],
          ['buffer_load_dwordx4 v[24:27], v18, s[80:83], 0 offen offset:1024']]
    pf_setup = f'''
    s_cmp_eq_u32 s{S_W}, 0
    s_cselect_b32 s{S_PF}, s62, s64
    s_cselect_b32 s{S_PF+1}, s63, s65
    s_cselect_b32 s{S_T}, 24, 28
    s_cmp_eq_u32 s{S_W}, 2
    s_cselect_b32 s{S_PF}, s66, s{S_PF}
    s_cselect_b32 s{S_PF+1}, s67, s{S_PF+1}
    s_lshl_b32 s{S_PF+2}, s{S_T}, 18
    s_lshl_b32 s{S_PI}, s{S_T}, 14
    s_mov_b32 s{S_PF+3}, 0x20000
    s_and_b32 s{S_T+1}, s2, 7
    s_lshl_b32 s{S_PS}, s{S_T+1}, 1
    s_add_u32 s{S_PS}, s{S_PS}, 1
    s_lshl_b32 s{S_T+2}, s{S_T+1}, 5
    s_lshr_b32 s{S_T+4}, s2, 3
    s_lshl_b32 s{S_T+5}, s{S_T+4}, 9
    s_add_u32 s{S_T+2}, s{S_T+2}, s{S_T+5}
    s_lshl_b32 s{S_T+5}, s{S_T+4}, 6
    s_cmp_eq_u32 s{S_W}, 3
    s_cselect_b32 s{S_PF}, s60, s{S_PF}
    s_cselect_b32 s{S_PF+1}, s61, s{S_PF+1}
    s_cselect_b32 s{S_PF+2}, s{S_X+2}, s{S_PF+2}
    s_cselect_b32 s{S_T}, 0x800, s{S_T}
    s_cselect_b32 s{S_PI}, 0x80, s{S_PI}
    s_cselect_b32 s{S_T+2}, s{S_T+5}, s{S_T+2}
    s_cselect_b32 s{S_T+4}, 5, 8
    s_mul_i32 s{S_PK}, s{S_PS}, s{S_PI}
    v_lshrrev_b32 v19, 5, v0
    v_lshlrev_b32 v19, s{S_T+4}, v19
    v_and_b32 v{V_PF}, 31, v0
    v_add3_u32 v{V_PF}, v{V_PF}, v19, s{S_T+2}
    v_mul_lo_u32 v{V_PF}, v{V_PF}, s{S_T}
    v_bfe_u32 v19, v0, 3, 2
    v_min_u32 v19, 2, v19
    v_lshlrev_b32 v19, 11, v19
    v_and_b32 v44, 7, v0
    v_lshl_add_u32 v19, v44, 5, v19
    v_lshrrev_b32 v44, 5, v0
    s_lshr_b32 s{S_T+4}, s2, 3
    s_lshl_b32 s{S_T+4}, s{S_T+4}, 1
    v_add_u32 v44, s{S_T+4}, v44
    v_mul_u32_u24 v44, 6144, v44
    s_lshl_b32 s{S_T+4}, s{S_T+1}, 8
    v_add3_u32 v19, v19, v44, s{S_T+4}
    s_cmp_eq_u32 s{S_W}, 0
    s_cselect_b64 vcc, -1, 0
    v_cndmask_b32 v{V_PF}, v{V_PF}, v19, vcc
    '''
    pf_switch = f'''
    s_lshl_b32 s{S_T+5}, s2, 6
    v_add_u32 v19, s{S_T+5}, v0
    v_lshlrev_b32 v19, 5, v19
    s_cmp_eq_u32 s{S_W}, 3
    s_cselect_b32 s{S_PF}, s68, s{S_PF}
    s_cselect_b32 s{S_PF+1}, s69, s{S_PF+1}
    s_cselect_b32 s{S_PF+2}, s{S_WA+2}, s{S_PF+2}
    s_cselect_b32 s{S_PI}, 0x80000, s{S_PI}
    s_cselect_b32 s{S_PS}, 0, s{S_PS}
    s_cselect_b32 s{S_PK}, 0, s{S_PK}
    s_cselect_b64 vcc, -1, 0
    v_cndmask_b32 v{V_PF}, v{V_PF}, v19, vcc
    '''
    pfi = [f'buffer_load_dword v{V_PD}, v{V_PF}, s[{S_PF}:{S_PF+3}], s{S_PK} offen', f's_add_u32 s{S_PS}, s{S_PS}, 1', f's_and_b32 s{S_PS}, s{S_PS}, 15',
           f's_mul_i32 s{S_PK}, s{S_PS}, s{S_PI}']
    a(pf_setup)
    for l in flat(dma_w(0, 1)): a(l)
    for k in range(PD):
        for l in pfi: a(l)
    a(pf_switch)
    NP = 1 if pf else 0
    if stamp: a('s_memtime s[84:85]')
    a(f'''
    v_and_b32 v44, 15, v0
    v_lshrrev_b32 v46, 4, v0
    v_lshrrev_b32 v19, 1, v44
    v_xor_b32 v19, v19, v46
    v_lshlrev_b32 v19, 4, v19
    v_lshl_add_u32 v19, v44, 7, v19
    s_lshl_b32 s{S_T}, s{S_WR}, 14
    v_add_u32 v{V_XRD}, s{S_T}, v19
    v_xor_b32 v{V_XRD+1}, 64, v{V_XRD}
    v_lshrrev_b32 v19, 5, v0
    v_mul_u32_u24 v19, 10240, v19
    v_and_b32 v45, 1, v46
    v_lshl_add_u32 v19, v45, 9, v19
    v_xor_b32 v45, s{S_WC}, v45
    v_lshl_add_u32 v19, v45, 5, v19
    v_lshrrev_b32 v45, 2, v44
    v_lshl_add_u32 v19, v45, 6, v19
    v_and_b32 v45, 3, v44
    v_lshl_add_u32 v19, v45, 3, v19
    v_add_u32 v{V_WRD}, {WBUF[0]}, v19
    v_add_u32 v{V_WRD+1}, {WBUF[1]}, v19
    ''')
    zero = [f'v_mov_b32 v{r}, 0' for r in range(48, 256)] + [f'v_accvgpr_write_b32 a{r}, 0' for r in range(112)]
    if stamp: a('s_memtime s[86:87]')
    def reads(buf, ks, st, order='w'):
        xs = [f'ds_read_b128 {rng(xfrag(st, tb))}, v{V_XRD+ks} offset:{XBUF[buf] + tb*2048}' for tb in range(8)]
        ws = []
        for t in range(5):
            for half in range(2):
                r = wfrag(st, half, t)
                for h in range(2):
                    ws.append(f'ds_read_b64_tr_b16 {r[0]}[{r[1]+2*h}:{r[1]+2*h+1}], v{V_WRD+buf} offset:{ks*20480 + half*5120 + t*1024 + h*256}')
        return ws[:2] + xs + ws[2:]
    def mf(st, half, t, tb):
        c = rng(acc(half, t, tb))
        return f'v_mfma_f32_16x16x32_bf16 {c}, {rng(wfrag(st, half, t))}, {rng(xfrag(st, tb))}, {c}'
    def mfmas(st):
        o = os.environ.get('ORD', '0')
        if o == '1': return [mf(st, half, t, tb) for tb in range(8) for t in range(5) for half in range(2)]
        if o == '2': return [mf(st, (i + tb) % 2, ((i + tb) % 10) // 2, tb) for i in range(10) for tb in range(8)]
        if o == '3': return [mf(st, half, t, tb if (2*t+half) % 2 == 0 else 7 - tb) for t in range(5) for half in range(2) for tb in range(8)]
        return [mf(st, half, t, tb) for t in range(5) for half in range(2) for tb in range(8)]
    gate = ['v_mov_b32 v44, 0', 'v_mov_b32 v45, 0']
    for j in range(8):
        gate += [f'v_dot2_f32_bf16 v44, v{28+j}, v{20+j}, v44', f'v_dot2_f32_bf16 v45, v{36+j}, v{20+j}, v45']
    for d in ('quad_perm:[1,0,3,2] row_mask:0xf', 'quad_perm:[2,3,0,1] row_mask:0xf', 'row_half_mirror row_mask:0xf', 'row_mirror row_mask:0xf',
              'row_bcast:15 row_mask:0xa', 'row_bcast:31 row_mask:0xc'):
        gate += [f'v_add_f32_dpp v44, v44, v44 {d} bank_mask:0xf', f'v_add_f32_dpp v45, v45, v45 {d} bank_mask:0xf']
    gate += [f'v_mul_f32 v44, {NLOG2E:#x}, v44', f'v_mul_f32 v45, {NLOG2E:#x}, v45', 'v_exp_f32 v44, v44', 'v_exp_f32 v45, v45',
             'v_add_f32 v44, 1.0, v44', 'v_add_f32 v45, 1.0, v45', 'v_rcp_f32 v46, v44', 'v_rcp_f32 v47, v45',
             'v_mov_b32 v20, 0', 'v_mov_b32 v21, 0', 'v_mov_b32 v22, 0', 'v_mov_b32 v23, 0', f's_lshl_b32 s{S_PM}, s58, 11', f's_add_u32 s{S_PM}, s{S_PM}, {WS_PART:#x}']
    a(f's_waitcnt vmcnt({5+PD})\ns_barrier')
    for l in reads(0, 0, 0): a(l)
    a(f's_mov_b32 s{S_CNT}, 6')
    if stamp == 2: a('s_mov_b32 s101, 0\nv_mov_b32 v19, 0')
    if stamp: a('s_memtime s[88:89]')
    def step(st, wait, rd, dm, barrier=True, sc=None, valu=(), first=False):
        a(wait)
        if barrier: a('s_barrier')
        if stamp == 2:
            a('s_mov_b32 m0, s101\ns_nop 0\nv_writelane_b32 v19, s86, m0\ns_add_u32 s101, s101, 1\ns_memtime s[86:87]')
        body = mfmas(st)
        if os.environ.get('NORD'): rd = rd[:int(os.environ['NORD'])]
        if os.environ.get('NODMA') and not first: dm = [[l for l in it if ' lds' not in l] for it in dm]
        if first: body = [m.rsplit(',', 1)[0] + ', 0' for m in body]
        side = {}
        for k, it in enumerate(rd): side[2 * k] = [it]
        units = []
        for it in dm:
            if any('exec' in l for l in it):
                i0 = min(i for i, l in enumerate(it) if 'exec' in l)
                units += [[l] for l in it[:i0]] + [it[i0:]]
            elif any(l.endswith(':') for l in it):
                units += [it[:2]] + [[l] for l in it[2:]]
            else:
                units += [[l] for l in it]
        gaps = [g for g in range(1, 79) if g not in side]
        if valu:
            merged = []
            nv, nu = len(valu), len(units)
            for k in range(nv + nu):
                pass
            order = sorted([(k / nu, 0, k, u) for k, u in enumerate(units)] + [(k / nv, 1, k, [v]) for k, v in enumerate(valu)])
            units = [o[3] for o in order]
        if len(units) > len(gaps): gaps = sorted(gaps + list(range(78, 78 - 2 * (len(units) - len(gaps)), -2)) if first else gaps + gaps[-(len(units) - len(gaps)):])
        for k, u in enumerate(units):
            side.setdefault(gaps[k * len(gaps) // len(units)], []).extend(u)
        for idx, m in enumerate(body):
            a(m)
            for l in side.get(idx, []): a(l)
    P1 = [pfi] if pf else []
    ZF = [[f'buffer_store_dwordx4 v[20:23], v18, s[{S_WS}:{S_WS+3}], s{S_PM} offen offset:{k*1024} sc1'] for k in range(4)]
    step(0, f's_waitcnt vmcnt({PD}) lgkmcnt(0)', reads(0, 1, 1), dma_w(1, 0) + dma_x(1) + dma_w(1, 1) + dma_w(0, 0) + P1, sc=(1, 57, 0, 72), first=True)
    step(1, 's_waitcnt vmcnt(11) lgkmcnt(0)', reads(1, 0, 0), dma_x(0) + gl + P1)
    step(0, f's_waitcnt vmcnt(21) lgkmcnt(0)', reads(1, 1, 1), dma_w(0, 1) + dma_w(1, 0) + P1)
    step(1, f's_waitcnt vmcnt(12) lgkmcnt(0)', reads(0, 0, 0), dma_x(1), valu=gate)
    m0 = a.mark()
    a.label(f'{name}_loop')
    for p in range(2):
        step(0, f's_waitcnt vmcnt({13+NP}) lgkmcnt(0)', reads(p, 1, 1), dma_w(1 - p, 1) + dma_w(p, 0) + P1)
        step(1, f's_waitcnt vmcnt({10+NP}) lgkmcnt(0)', reads(1 - p, 0, 0), dma_x(p))
    a(f's_sub_u32 s{S_CNT}, s{S_CNT}, 1\ns_cmp_lg_u32 s{S_CNT}, 0\ns_cbranch_scc1 {name}_loop')
    m1 = a.mark()
    extra = [[f's_lshl_b32 s59, s58, 2', f's_add_u32 s59, s59, {WS_G:#x}', 'v_mov_b32 v18, 0', 's_mov_b32 exec_lo, 0', 's_mov_b32 exec_hi, 0x80000000',
              f'buffer_store_dwordx2 v[46:47], v18, s[{S_WS}:{S_WS+3}], s59 offen',
              f's_lshl_b32 s59, s58, 4', f's_add_u32 s59, s59, {WS_FLAG:#x}', 's_mov_b64 exec, 0xff', 'v_lshlrev_b32 v19, 2, v0',
              f'buffer_store_dword v18, v19, s[{S_WS}:{S_WS+3}], s59 offen', 's_mov_b64 exec, -1']]
    extra.append(['s_mov_b32 s80, s74', 's_mov_b32 s81, s75', f's_mov_b32 s82, {1024*2048}', 's_lshl_b32 s59, s58, 10', 'v_lshlrev_b32 v18, 5, v0',
                  'buffer_load_dword v6, v18, s[80:83], s59 offen'])
    NE = 3
    if code_from:
        extra.append([f's_getpc_b64 s[{S_PF}:{S_PF+1}]', f'{name}_pc:',
                      f's_mov_b32 s{S_PF+2}, {code_to}-{name}_pc', f's_lshr_b32 s{S_T}, s2, 3', f's_lshl_b32 s{S_T}, s{S_T}, 2', f's_add_u32 s{S_T}, s{S_T}, s{S_W}',
                      f's_lshl_b32 s{S_T}, s{S_T}, 9', f'v_lshlrev_b32 v{V_PF}, 3, v0',
                      f'buffer_load_dword v5, v{V_PF}, s[{S_PF}:{S_PF+3}], s{S_T} offen'])
        NE = 4
    NE += 4
    step(0, f's_waitcnt vmcnt({13+NP}) lgkmcnt(0)', reads(0, 1, 1), dma_w(1, 1) + ZF + extra)
    step(1, f's_waitcnt vmcnt({5+NE}) lgkmcnt(0)', reads(1, 0, 0), [])
    if stamp: a('s_memtime s[94:95]')

    if stamp == 2:
        a(f'''
        s_waitcnt lgkmcnt(0)
        s_mov_b32 m0, s101
        s_nop 0
        v_writelane_b32 v19, s86, m0
        s_lshl_b32 s74, s2, 2
        s_add_u32 s74, s74, s{S_W}
        s_lshl_b32 s74, s74, 8
        s_add_u32 s74, s74, 0x8400000
        v_lshlrev_b32 v18, 2, v0
        buffer_store_dword v19, v18, s[{S_WS}:{S_WS+3}], s74 offen
        s_waitcnt vmcnt(0)
        ''')
    a(f'''
    v_lshlrev_b32 v1, 4, v0
    s_mov_b32 s70, {NLOG2E:#x}
    s_mov_b32 s71, {NLOG2E:#x}
    s_lshl_b32 s{S_T}, s{S_RB}, 3
    s_lshl_b32 s{S_T+1}, s{S_WR}, 2
    s_add_u32 s{S_T}, s{S_T}, s{S_T+1}
    s_mul_i32 s72, s{S_T}, {OH_TB}
    s_lshl_b32 s{S_T+1}, s{S_F0}, 6
    s_add_u32 s72, s72, s{S_T+1}
    s_lshl_b32 s{S_T+1}, s{S_WC}, 10
    s_add_u32 s72, s72, s{S_T+1}
    s_add_u32 s72, s72, {WS_OH + 1024*64}
    s_lshl_b32 s73, s{S_T}, 10
    s_lshl_b32 s{S_T+1}, s{S_WC}, 16
    s_add_u32 s73, s73, s{S_T+1}
    s_lshl_b32 s69, s{S_T}, 11
    s_lshl_b32 s{S_T+1}, s{S_WC}, 8
    s_add_u32 s69, s69, s{S_T+1}
    v_and_b32 v18, 15, v0
    v_lshrrev_b32 v19, 4, v0
    v_lshlrev_b32 v2, 4, v18
    v_lshl_add_u32 v2, v19, 9, v2
    v_lshlrev_b32 v3, 5, v18
    v_lshl_add_u32 v3, v19, 3, v3
    v_add_u32 v3, s{S_LX}, v3
    v_lshrrev_b32 v4, 5, v0
    v_lshlrev_b32 v4, 9, v4
    v_and_b32 v19, 1, v19
    v_lshl_add_u32 v4, v19, 7, v4
    v_lshrrev_b32 v19, 2, v18
    v_lshl_add_u32 v4, v19, 5, v4
    v_and_b32 v19, 3, v18
    v_lshl_add_u32 v4, v19, 3, v4
    v_add_u32 v4, s{S_LX}, v4
    ''')
    ws = f's[{S_WS}:{S_WS+3}]'
    qkv_mod = os.environ.get('QM', store_mod)
    def M(t): return [mf(st, half, t, tb) for st in range(2) for half in range(2) for tb in range(8)]
    def getv(L, r, tmp):
        if r[0] == 'v': return r[1]
        for j in range(4): L.append(f'v_accvgpr_read_b32 v{tmp+j}, a{r[1]+j}')
        return tmp
    def epi_ffn(t):
        L = []
        for tbp in range(4):
            G = [getv(L, acc(0, t, 2*tbp + i), 16 + 4*i) for i in range(2)]
            U = [getv(L, acc(1, t, 2*tbp + i), 48 + 4*i) for i in range(2)]
            E = [24 + 12*(tbp % 2) + 4*i for i in range(2)]
            O = 32 + 12*(tbp % 2)
            for i in range(2):
                for j in (0, 2): L.append(f'v_pk_mul_f32 v[{E[i]+j}:{E[i]+j+1}], v[{G[i]+j}:{G[i]+j+1}], s[70:71]')
            for i in range(2):
                for j in range(4): L += (['@M'] if i == 0 else []) + [f'v_exp_f32 v{E[i]+j}, v{E[i]+j}']
            for i in range(2):
                for j in (0, 2): L.append(f'v_pk_mul_f32 v[{U[i]+j}:{U[i]+j+1}], v[{G[i]+j}:{G[i]+j+1}], v[{U[i]+j}:{U[i]+j+1}]')
            for i in range(2):
                for j in (0, 2): L.append(f'v_pk_add_f32 v[{E[i]+j}:{E[i]+j+1}], v[{E[i]+j}:{E[i]+j+1}], 1.0 op_sel_hi:[1,0]')
            for i in range(2):
                for j in range(4): L += (['@M'] if i == 0 else []) + [f'v_rcp_f32 v{E[i]+j}, v{E[i]+j}']
            L.append(f's_add_u32 s74, s72, {t*2048 + tbp*OH_TB}')
            for i in range(2):
                for j in (0, 2): L.append(f'v_pk_mul_f32 v[{U[i]+j}:{U[i]+j+1}], v[{U[i]+j}:{U[i]+j+1}], v[{E[i]+j}:{E[i]+j+1}]')
            for i in range(2):
                for j in range(2): L.append(f'v_cvt_pk_bf16_f32 v{O+2*i+j}, v{U[i]+2*j}, v{U[i]+2*j+1}')
            L += [f'v_permlane16_swap_b32 v{O}, v{O+2}', f'v_permlane16_swap_b32 v{O+1}, v{O+3}',
                  f'buffer_store_dwordx4 v[{O}:{O+3}], v1, {ws}, s74 offen {store_mod}']
        return L
    def epi_qk(t, scol, packed=True):
        L = [f's_mov_b32 s76, {QSCALE:#x}', 's_mov_b32 s77, s76', f's_lshl_b32 s75, s{scol}, 12', 's_add_u32 s75, s75, s73']
        for half in range(2):
            for tbp in range(4):
                X = [getv(L, acc(half, t, 2*tbp + i), 48 + 4*i + 8*(tbp % 2)) for i in range(2)]
                O = 24 + 4*(tbp % 4)
                for i in range(2):
                    if packed:
                        for j in (0, 2): L.append(f'v_pk_mul_f32 v[{X[i]+j}:{X[i]+j+1}], v[{X[i]+j}:{X[i]+j+1}], s[76:77]')

                L.append(f's_add_u32 s74, s75, {WS_QKV + half*131072 + tbp*1024}')
                for i in range(2):
                    for j in range(2): L.append(f'v_cvt_pk_bf16_f32 v{O+2*i+j}, v{X[i]+2*j}, v{X[i]+2*j+1}')
                L += [f'v_permlane16_swap_b32 v{O}, v{O+2}', f'v_permlane16_swap_b32 v{O+1}, v{O+3}',
                      f'buffer_store_dwordx4 v[{O}:{O+3}], v1, {ws}, s74 offen {qkv_mod}']
        return L
    def epi_v(t, scol):
        L = [f's_lshl_b32 s75, s{scol}, 12', 's_add_u32 s75, s75, s69']
        units = [(half, tbp) for half in range(2) for tbp in range(4)]
        for u, (half, tbp) in enumerate(units):
            X = [getv(L, acc(half, t, 2*tbp + i), 48 + 4*i + 8*(u % 2)) for i in range(2)]
            C = 16 + 4*(u % 2)
            for i in range(2):
                for j in range(2): L.append(f'v_cvt_pk_bf16_f32 v{C+2*i+j}, v{X[i]+2*j}, v{X[i]+2*j+1}')
            for i in range(2): L.append(f'ds_write_b64 v3, v[{C+2*i}:{C+2*i+1}] offset:{u*1024 + i*512}')
        L.append('s_waitcnt lgkmcnt(0)')
        for u in range(8):
            O = 64 + 4*u
            for rr in range(2): L.append(f'ds_read_b64_tr_b16 v[{O+2*rr}:{O+2*rr+1}], v4 offset:{u*1024 + rr*256}')
        for u, (half, tbp) in enumerate(units):
            O = 64 + 4*u
            L += [f's_add_u32 s74, s75, {WS_QKV + half*131072 + tbp*2048}', f's_waitcnt lgkmcnt({14 - 2*u})',
                  f'buffer_store_dwordx4 v[{O}:{O+3}], v2, {ws}, s74 offen {qkv_mod}']
        return L
    def merge(mm, ep):
        if '@M' in ep:
            it = iter(mm)
            for l in ep: a(next(it) if l == '@M' else l)
            assert next(it, None) is None
            return
        n = len(mm); k = 0
        for i, m in enumerate(mm):
            a(m)
            upto = (i + 1) * len(ep) // n
            while k < upto: a(ep[k]); k += 1
    a(f's_waitcnt vmcnt({NE}) lgkmcnt(0)\ns_barrier')
    rd = reads(1, 1, 1); mm = M(0)
    for i in range(16):
        a(mm[i])
        for l in rd[2*i:2*i+2]: a(l)
    a('s_waitcnt lgkmcnt(0)')
    for i in range(16, 32): a(mm[i])
    for t in (1, 2, 3): merge(M(t), epi_ffn(t - 1))
    a(f's_cmp_eq_u32 s{S_ODD}, 1\ns_cbranch_scc1 {name}_o3')
    p0 = a.mark()
    merge(M(4), epi_ffn(3))
    for l in epi_qk(4, S_N4): a(l)
    a(f's_branch {name}_fin')
    p1 = a.mark()
    a.label(f'{name}_o3')
    merge(M(4), epi_qk(3, S_N3, packed=False))
    for l in epi_v(4, S_N4): a(l)
    p7 = a.mark()
    a.label(f'{name}_fin')
    if stamp:
        a(f'''
        s_waitcnt vmcnt(0)
        s_memtime s[96:97]
        s_memrealtime s[98:99]
        s_waitcnt lgkmcnt(0)
        v_mov_b32 v4, s90
        v_mov_b32 v5, s94
        v_mov_b32 v6, s96
        v_mov_b32 v7, s92
        v_mov_b32 v8, s98
        v_mov_b32 v9, s88
        v_mov_b32 v10, 0
        s_lshl_b32 s74, s2, 2
        s_add_u32 s74, s74, s{S_W}
        s_lshl_b32 s74, s74, 6
        v_mov_b32 v12, s78
        v_mov_b32 v13, s84
        v_mov_b32 v14, s86
        v_mov_b32 v15, s86
        s_add_u32 s74, s74, 0x8000000
        s_mov_b32 exec_lo, 1
        s_mov_b32 exec_hi, 0
        buffer_store_dwordx4 v[4:7], v10, {ws}, s74 offen
        buffer_store_dwordx2 v[8:9], v10, {ws}, s74 offen offset:16
        buffer_store_dwordx4 v[12:15], v10, {ws}, s74 offen offset:32
        ''')
    a.label(f'{name}_end')
    a('s_endpgm')
    base = a.ins[:m1] + a.ins[m0:m1] + a.ins[m1:p0]
    errs = []
    for b4 in (a.ins[p0:p1], a.ins[p1:p7]):
        errs += check_seq(base + b4 + a.ins[p7:], name)
    errs = [e for e in dict.fromkeys(errs) if f'buffer_load_dword v{V_PD},' not in e]
    for e in errs[:20]: print('CHECK', e)
    return kernel_text(name, a, 512, 102, 256), LDS_BYTES
```

```python
from asmlib import *
from k1 import WS_QKV, WS_OH, WS_G, WS_FLAG, OH_TB

from k1 import WS_PART
RING = 4
CH = 16384
LDS_BYTES = 81920
NV = 128

def r4(b): return f'v[{b}:{b+3}]'
def r16(b): return f'v[{b}:{b+15}]'

def stamp_out(a, srd, s_w, base, idsub=0):
    a(f'''
    s_waitcnt vmcnt(0)
    s_memtime s[96:97]
    s_memrealtime s[98:99]
    s_waitcnt lgkmcnt(0)
    v_mov_b32 v4, s90
    v_mov_b32 v5, s94
    v_mov_b32 v6, s96
    v_mov_b32 v7, s92
    v_mov_b32 v8, s98
    v_mov_b32 v9, s88
    v_mov_b32 v10, 0
    s_sub_u32 s74, s2, {idsub}
    s_lshl_b32 s74, s74, 3
    s_add_u32 s74, s74, s{s_w}
    s_lshl_b32 s74, s74, 5
    s_add_u32 s74, s74, {base:#x}
    s_mov_b32 exec_lo, 1
    s_mov_b32 exec_hi, 0
    buffer_store_dwordx4 v[4:7], v10, {srd}, s74 offen
    buffer_store_dwordx2 v[8:9], v10, {srd}, s74 offen offset:16
    v_mov_b32 v12, s84
    v_mov_b32 v13, s82
    buffer_store_dwordx2 v[12:13], v10, {srd}, s74 offen offset:24
    ''')

def attention(a, name, stamp, force_slow, prio, exp=''):
    V_L16, V_G, V_IDX = 1, 2, 4
    Q, ONES, L, O, CM = 16, 24, 28, 32, 48
    S = [64, 80]
    P, KF, VF = 96, 104, 112
    S_WS = 4
    S_W, S_HD, S_TB, S_KB, S_VB, S_LD, S_CNT, S_T = 8, 9, 10, 11, 12, 13, 14, 16
    a(f'''
    s_load_dwordx2 s[20:21], s[0:1], 80
    v_lshrrev_b32 v8, 6, v0
    v_and_b32 v0, 63, v0
    v_readfirstlane_b32 s{S_W}, v8
    s_and_b32 s{S_T}, s2, 7
    s_lshr_b32 s{S_T+1}, s2, 3
    s_lshr_b32 s{S_T+2}, s{S_T+1}, 3
    s_lshl_b32 s{S_HD}, s{S_T}, 2
    s_add_u32 s{S_HD}, s{S_HD}, s{S_T+2}
    s_and_b32 s{S_T+1}, s{S_T+1}, 7
    s_lshl_b32 s{S_TB}, s{S_T+1}, 3
    s_add_u32 s{S_TB}, s{S_TB}, s{S_W}
    v_lshlrev_b32 v{V_L16}, 4, v0
    ''')
    if prio: a(f's_setprio {prio}')
    if stamp: a('s_memtime s[90:91]\ns_memrealtime s[92:93]')
    a(f'''
    s_and_b32 s{S_T}, s{S_W}, 1
    s_lshr_b32 s{S_T+1}, s{S_W}, 1
    s_lshl_b32 s{S_KB}, s{S_HD}, 17
    s_lshl_b32 s{S_T+2}, s{S_T}, 16
    s_add_u32 s{S_KB}, s{S_KB}, s{S_T+2}
    s_lshl_b32 s{S_T+2}, s{S_T+1}, 10
    s_add_u32 s{S_KB}, s{S_KB}, s{S_T+2}
    s_add_u32 s{S_KB}, s{S_KB}, {WS_QKV + 32*131072}
    s_lshl_b32 s{S_LD}, s{S_W}, 10
    s_lshl_b32 s{S_VB}, s{S_HD}, 17
    s_add_u32 s{S_VB}, s{S_VB}, s{S_LD}
    s_add_u32 s{S_VB}, s{S_VB}, {WS_QKV + 64*131072}
    s_waitcnt lgkmcnt(0)
    s_mov_b32 s{S_WS}, s20
    s_mov_b32 s{S_WS+1}, s21
    s_mov_b32 s{S_WS+2}, 0x10000000
    s_mov_b32 s{S_WS+3}, 0x20000
    ''')
    srd = f's[{S_WS}:{S_WS+3}]'
    def dma(slot):
        return [[f's_add_u32 m0, s{S_LD}, {slot*CH}', f'buffer_load_dwordx4 v{V_L16}, {srd}, s{S_KB} offen lds', f's_add_u32 s{S_KB}, s{S_KB}, 4096'],
                [f's_add_u32 m0, s{S_LD}, {slot*CH + 8192}', f'buffer_load_dwordx4 v{V_L16}, {srd}, s{S_VB} offen lds', f's_add_u32 s{S_VB}, s{S_VB}, 8192']]
    for l in dma(0)[0]: a(l)
    a(f'''
    s_lshl_b32 s{S_T}, s{S_HD}, 17
    s_lshl_b32 s{S_T+1}, s{S_TB}, 10
    s_add_u32 s{S_T}, s{S_T}, s{S_T+1}
    s_add_u32 s{S_T+1}, s{S_T}, 65536
    buffer_load_dwordx4 {r4(Q)}, v{V_L16}, {srd}, s{S_T} offen
    buffer_load_dwordx4 {r4(Q+4)}, v{V_L16}, {srd}, s{S_T+1} offen
    v_and_b32 v3, 31, v0
    v_lshlrev_b32 v3, 2, v3
    s_lshl_b32 s{S_T+2}, s{S_TB}, 7
    s_add_u32 s{S_T+2}, s{S_T+2}, {WS_G:#x}
    ''')
    for l in dma(0)[1]: a(l)
    a(f'''
    v_bfe_u32 v8, v0, 4, 1
    v_and_b32 v9, 6, v0
    v_mov_b32 v10, 0x3f803f80
    v_cmp_eq_u32 vcc, 0, v9
    v_cndmask_b32 v{ONES}, 0, v10, vcc
    v_cndmask_b32 v{ONES+1}, 0, v10, vcc
    v_cmp_eq_u32 vcc, 4, v9
    v_cndmask_b32 v{ONES+2}, 0, v10, vcc
    v_cndmask_b32 v{ONES+3}, 0, v10, vcc
    v_and_b32 v9, 1, v0
    v_mul_u32_u24 v9, 0xaaaa, v9
    v_add_u32 v{V_IDX}, 0x4444, v9
    v_lshl_or_b32 v{V_IDX}, v{V_IDX}, 16, v{V_IDX}
    ''')
    for r in range(4): a(f'v_mov_b32 v{L+r}, 0')
    for r in range(16): a(f'v_mov_b32 v{O+r}, 0')
    for r in range(8): a(f'v_mov_b32 v{P+r}, 0')
    for r in range(8): a(f'v_mov_b32 v{VF+r}, 0')

    def off(blk): return ((blk >> 2) % RING) * CH + (blk & 3) * 2048
    def kread(blk, kk): return 's_nop 0' if ('L' in exp and blk > 1 and blk % 2) else f'ds_read_b128 {r4(KF + 4*kk)}, v{V_L16} offset:{off(blk) + kk*1024}'
    def vread(blk, m): return 's_nop 0' if ('L' in exp and blk % 2) else f'ds_read_b128 {r4(VF + 4*m)}, v{V_L16} offset:{off(blk) + 8192 + m*1024}'
    def qk(blk, c):
        s = S[blk & 1]
        return [f'v_mfma_f32_32x32x16_bf16 {r16(s)}, {r4(KF)}, {r4(Q)}, {c}',
                f'v_mfma_f32_32x32x16_bf16 {r16(s)}, {r4(KF+4)}, {r4(Q+4)}, {r16(s)}']
    def rowmax(s, dst, tmp):
        a(f'v_max3_f32 v{dst}, v{s}, v{s+1}, v{s+2}')
        a(f'v_max3_f32 v{tmp}, v{s+3}, v{s+4}, v{s+5}')
        for j in range(6, 14, 4):
            a(f'v_max3_f32 v{dst}, v{dst}, v{s+j}, v{s+j+1}')
            a(f'v_max3_f32 v{tmp}, v{tmp}, v{s+j+2}, v{s+j+3}')
        a(f'v_max3_f32 v{dst}, v{dst}, v{s+14}, v{s+15}')
        a(f'v_max_f32 v{dst}, v{dst}, v{tmp}')
        a(f'v_mov_b32 v{tmp}, v{dst}')
        a(f'v_permlane32_swap_b32 v{dst}, v{tmp}')
        a(f'v_max_f32 v{dst}, v{dst}, v{tmp}')

    a('s_waitcnt vmcnt(0)\ns_barrier')
    a(kread(0, 0)); a(kread(0, 1))
    for it in dma(1):
        for l in it: a(l)
    a('s_waitcnt lgkmcnt(0)')
    for l in qk(0, '0'): a(l)
    a(kread(1, 0)); a(kread(1, 1))
    a(f'''
    buffer_load_dword v{V_G}, v3, {srd}, s{S_T+2} offen
    ''')
    for it in dma(2):
        for l in it: a(l)
    rowmax(S[0], 8, 9)
    for r in range(16): a(f'v_sub_f32 v{CM+r}, 0, v8')
    for r in range(16): a(f'v_sub_f32 v{S[0]+r}, v{S[0]+r}, v8')
    a(f's_mov_b32 s{S_CNT}, 4')
    a('s_waitcnt lgkmcnt(0)')
    if stamp: a('s_memtime s[88:89]\ns_waitcnt lgkmcnt(0)')

    summ = f'v_smfmac_f32_16x16x64_bf16 {r4(L)}, {r4(ONES)}, v[{P}:{P+7}], v{V_IDX}'
    def pv(vf, pp): return f'v_mfma_f32_32x32x16_bf16 {r16(O)}, {r4(vf)}, {r4(pp)}, {r16(O)}'
    def body(i, last_iter=False):
        s = S[i & 1]
        final = last_iter and i == 15
        nok = last_iter and i >= 14
        ex = lambda j: f'v_exp_f32 v{s+j}, v{s+j}'
        cv = lambda j: f'v_cvt_pk_bf16_f32 v{P+j}, v{s+2*j}, v{s+2*j+1}'
        q = qk(i + 1, r16(CM)) if not final else [None, None]
        sync = ((i + 2) & 3) == 0 and not nok
        prevk = 0 if (last_iter and i == 15) else 1
        d = [[], []]
        early = 'E' in exp
        if sync:
            c = (i + 2) >> 2
            nxt = not (last_iter and c >= 2)
            a(f's_waitcnt vmcnt({2 if not (last_iter and c == 3) else 0})' + ('' if early else f' lgkmcnt({1 + prevk})'))
            a('s_barrier')
            if nxt: d = dma((c + 2) % RING)
        elif not early:
            a(f's_waitcnt lgkmcnt({1 + prevk})')
        k0 = kread(i + 2, 0) if not nok else None
        k1 = kread(i + 2, 1) if not nok else None
        w2 = f's_waitcnt lgkmcnt({1 + (0 if nok else 1)})'
        E = [ex(j) for j in range(16)]; C = [cv(j) for j in range(8)]
        d00 = d[0][:1]; d01 = d[0][1:]; d10 = d[1][:1]; d11 = d[1][1:]
        if 'E' in exp:
            if 'F' in exp:
                seq = d00 + [q[0], k0] + d01 + E[0:4] + [pv(VF, P), vread(i, 0)] + E[4:8] + [summ, w2] + C[0:4] + d10 + [q[1], k1] + d11 + E[8:12] + [pv(VF + 4, P + 4), vread(i, 1), w2] + E[12:16] + C[4:8]
            else:
                seq = [q[0], k0, E[0], E[1]] + d00 + [E[2]] + d01 + [E[3], pv(VF, P), vread(i, 0)] + E[4:8] + [summ, w2] + C[0:4] + [q[1], k1, E[8], E[9]] + d10 + [E[10]] + d11 + [E[11], pv(VF + 4, P + 4), vread(i, 1), w2] + E[12:16] + C[4:8]
        elif 'A' in exp:
            seq = [q[0], k0, E[0], E[1]] + d00 + [E[2]] + d01 + [E[3], pv(VF, P), vread(i, 0)] + E[4:8] + [summ] + C[0:4] + [w2, q[1], k1, E[8], E[9]] + d10 + [E[10]] + d11 + [E[11], pv(VF + 4, P + 4), vread(i, 1)] + E[12:16] + C[4:8]
        elif 'B' in exp:
            seq = [q[0], E[0], k0, E[1]] + d00 + [E[2]] + d01 + [E[3], pv(VF, P), E[4], vread(i, 0), E[5], summ, E[6], C[0], E[7], C[1], w2, q[1], E[8], k1, C[2], E[9]] + d10 + [C[3], E[10]] + d11 + [E[11], pv(VF + 4, P + 4), E[12], vread(i, 1), C[4], E[13], C[5], E[14], E[15], C[6], C[7]]
        elif 'C' in exp:
            seq = [q[0], E[0], k0, E[1]] + d00 + [E[2]] + d01 + [E[3], summ, E[4], pv(VF, P), E[5], vread(i, 0), E[6], E[7], C[0], C[1], C[2], w2, q[1], C[3], E[8], k1, E[9]] + d10 + [E[10]] + d11 + [E[11], E[12], pv(VF + 4, P + 4), E[13], vread(i, 1), E[14], E[15]] + C[4:8]
        else:
            seq = [q[0], E[0], k0, E[1]] + d00 + [E[2]] + d01 + [E[3], pv(VF, P), E[4], vread(i, 0)] + E[5:8] + [summ] + C[0:4] + [w2, q[1], E[8], k1, E[9]] + d10 + [E[10]] + d11 + [E[11], pv(VF + 4, P + 4), E[12], vread(i, 1)] + E[13:16] + C[4:8]
        for l in seq:
            if l: a(l)
    m0 = a.mark()
    a.label(f'{name}_loop')
    for i in range(16): body(i)
    a(f's_sub_u32 s{S_CNT}, s{S_CNT}, 1\ns_cmp_lg_u32 s{S_CNT}, 1\ns_cbranch_scc1 {name}_loop')
    m1 = a.mark()
    for i in range(16):
        body(i, last_iter=True)
    a('s_waitcnt lgkmcnt(0)')
    a(summ)
    for h in range(2): a(pv(VF + 4*h, P + 4*h))
    a(f'v_add_f32 v{L}, v{L}, v{L+1}')
    if stamp: a('s_memtime s[94:95]')
    a(f'v_mov_b32 v8, 0x207\nv_mov_b32 v9, 0x5f800000\nv_cmp_nlt_f32 s[22:23], v{L}, v9')
    for r in range(16):
        a(f'v_cmp_class_f32 vcc, v{O+r}, v8')
        a('s_or_b64 s[22:23], s[22:23], vcc')
    if force_slow: a(f's_branch {name}_slow')
    a(f's_cmp_lg_u64 s[22:23], 0\ns_cbranch_scc1 {name}_slow')
    a.label(f'{name}_fin')
    a(f'''
    v_rcp_f32 v8, v{L}
    s_mul_i32 s{S_T}, s{S_TB}, {OH_TB}
    s_lshl_b32 s{S_T+1}, s{S_HD}, 11
    s_add_u32 s{S_T}, s{S_T}, s{S_T+1}
    s_add_u32 s{S_T}, s{S_T}, {WS_OH:#x}
    v_mul_f32 v8, v8, v{V_G}
    ''')
    for r in range(16): a(f'v_mul_f32 v{O+r}, v{O+r}, v8')
    for j in range(8): a(f'v_cvt_pk_bf16_f32 v{S[0]+j}, v{O+2*j}, v{O+2*j+1}')
    for pr in range(2):
        b = S[0] + 4*pr
        a(f'v_permlane32_swap_b32 v{b}, v{b+2}\nv_permlane32_swap_b32 v{b+1}, v{b+3}')
        a(f'buffer_store_dwordx4 {r4(b)}, v{V_L16}, {srd}, s{S_T} offen offset:{pr*1024} sc1')
    a(f'''
    s_lshr_b32 s{S_T}, s{S_TB}, 3
    s_lshl_b32 s{S_T}, s{S_T}, 7
    s_add_u32 s{S_T}, s{S_T}, {WS_FLAG:#x}
    v_mov_b32 v8, 0
    v_mov_b32 v9, 1
    s_waitcnt vmcnt(0)
    s_barrier
    s_cmp_lg_u32 s{S_W}, 0
    s_cbranch_scc1 {name}_sig
    s_mov_b64 exec, 1
    buffer_atomic_add v9, v8, {srd}, s{S_T} offen sc1
    s_mov_b64 exec, -1
    ''')
    a.label(f'{name}_sig')
    if stamp: stamp_out(a, srd, S_W, 0x8100000)
    a('s_endpgm')
    m2 = a.mark()
    a.label(f'{name}_slow')
    M, AL, T2 = 8, 9, 10
    a(f'''
    s_lshl_b32 s{S_KB}, s{S_HD}, 17
    s_add_u32 s{S_VB}, s{S_KB}, {WS_QKV + 64*131072}
    s_add_u32 s{S_KB}, s{S_KB}, {WS_QKV + 32*131072}
    v_mov_b32 v{M}, 0xff800000
    s_mov_b32 s{S_CNT}, 64
    ''')
    for r in range(4): a(f'v_mov_b32 v{L+r}, 0')
    for r in range(16): a(f'v_mov_b32 v{O+r}, 0')
    s0 = a.mark()
    a.label(f'{name}_sloop')
    a(f'''
    s_add_u32 s{S_T}, s{S_KB}, 65536
    buffer_load_dwordx4 {r4(KF)}, v{V_L16}, {srd}, s{S_KB} offen
    buffer_load_dwordx4 {r4(KF+4)}, v{V_L16}, {srd}, s{S_T} offen
    buffer_load_dwordx4 {r4(VF)}, v{V_L16}, {srd}, s{S_VB} offen
    buffer_load_dwordx4 {r4(VF+4)}, v{V_L16}, {srd}, s{S_VB} offen offset:1024
    s_add_u32 s{S_KB}, s{S_KB}, 1024
    s_add_u32 s{S_VB}, s{S_VB}, 2048
    s_waitcnt vmcnt(0)
    ''')
    for l in qk(0, '0'): a(l)
    rowmax(S[0], AL, T2)
    a(f'''
    v_max_f32 v{T2}, v{AL}, v{M}
    v_sub_f32 v{AL}, v{M}, v{T2}
    v_exp_f32 v{AL}, v{AL}
    v_mov_b32 v{M}, v{T2}
    ''')
    for r in range(16): a(f'v_sub_f32 v{S[0]+r}, v{S[0]+r}, v{M}')
    for r in range(16): a(f'v_exp_f32 v{S[0]+r}, v{S[0]+r}')
    for r in range(4): a(f'v_mul_f32 v{L+r}, v{L+r}, v{AL}')
    for r in range(16): a(f'v_mul_f32 v{O+r}, v{O+r}, v{AL}')
    for j in range(8): a(f'v_cvt_pk_bf16_f32 v{P+j}, v{S[0]+2*j}, v{S[0]+2*j+1}')
    a(summ)
    for m in range(2): a(pv(VF + 4*m, P + 4*m))
    a(f's_nop 15\ns_sub_u32 s{S_CNT}, s{S_CNT}, 1\ns_cmp_lg_u32 s{S_CNT}, 0\ns_cbranch_scc1 {name}_sloop')
    s1 = a.mark()
    a(f'v_add_f32 v{L}, v{L}, v{L+1}\ns_branch {name}_fin')
    tr = a.ins[:m1] + a.ins[m0:m1] + a.ins[m1:m2]
    return check_seq(tr, name) + check_seq(a.ins[m2:s1] + a.ins[s0:s1], name + '_slow')

def down(a, name, stamp, prio, exp=''):
    R, SB = 5, 16384
    V_L16, V_WOFF, V_AB, V_AB2, V_WB, V_WB2, V_ARD, V_ARD2, V_WRD, V_WRD2, V_FL, V_Z, V_G = 1, 2, 3, 4, 5, 6, 7, 8, 9, 10, 11, 12, 13
    ACC = 20
    FR = [52, 76]
    PT = 100
    S_A, S_WD, S_WS, S_OUT = 4, 8, 12, 48
    S_W, S_WR, S_WQ, S_RB, S_CB, S_KH, S_AK, S_WK, S_LA, S_LW, S_SLOT, S_CNT, S_RS, S_T = 16, 17, 18, 19, 20, 21, 22, 23, 24, 25, 26, 27, 28, 30
    S_TB0, S_FA, S_FP, S_AO = 36, 37, 38, 39
    st = a.mark()
    a(f'''
    s_load_dwordx2 s[40:41], s[0:1], 16
    s_load_dwordx2 s[42:43], s[0:1], 48
    s_load_dwordx2 s[44:45], s[0:1], 64
    s_load_dwordx2 s[46:47], s[0:1], 80
    v_lshrrev_b32 v17, 6, v0
    v_and_b32 v0, 63, v0
    v_readfirstlane_b32 s{S_W}, v17
    s_and_b32 s{S_T}, s2, 7
    s_lshr_b32 s{S_T+1}, s2, 3
    s_and_b32 s{S_T+1}, s{S_T+1}, 31
    s_and_b32 s{S_KH}, s{S_T}, 1
    s_lshr_b32 s{S_T}, s{S_T}, 1
    s_lshl_b32 s{S_RB}, s{S_T}, 2
    s_lshr_b32 s{S_T+2}, s{S_T+1}, 3
    s_add_u32 s{S_RB}, s{S_RB}, s{S_T+2}
    s_and_b32 s{S_CB}, s{S_T+1}, 7
    s_lshr_b32 s{S_WR}, s{S_W}, 2
    s_and_b32 s{S_WQ}, s{S_W}, 3
    v_lshlrev_b32 v{V_L16}, 4, v0
    ''')
    if prio: a(f's_setprio {prio}')
    if stamp: a('s_memtime s[90:91]\ns_memrealtime s[92:93]')
    a(f'''
    s_lshl_b32 s{S_T}, s{S_RB}, 2
    s_lshr_b32 s{S_T+1}, s{S_W}, 1
    s_add_u32 s{S_T}, s{S_T}, s{S_T+1}
    s_mul_i32 s{S_AO}, s{S_T}, {OH_TB}
    s_add_u32 s{S_AO}, s{S_AO}, {WS_OH:#x}
    s_and_b32 s{S_T}, s{S_W}, 1
    s_lshl_b32 s{S_T}, s{S_T}, 10
    s_add_u32 s{S_AO}, s{S_AO}, s{S_T}
    s_mul_i32 s{S_T}, s{S_KH}, {1792*64}
    s_add_u32 s{S_AK}, s{S_AO}, s{S_T}
    s_add_u32 s{S_AK}, s{S_AK}, {1024*64}
    s_mul_i32 s{S_WK}, s{S_KH}, {1792*2048}
    s_lshl_b32 s{S_LA}, s{S_W}, 10
    s_add_u32 s{S_LW}, s{S_LA}, 8192
    v_lshrrev_b32 v17, 2, v0
    s_lshl_b32 s{S_T}, s{S_WR}, 4
    v_add_u32 v17, s{S_T}, v17
    v_lshlrev_b32 v17, 11, v17
    v_lshrrev_b32 v18, 5, v0
    v_lshlrev_b32 v18, 1, v18
    v_and_b32 v19, 3, v0
    v_xor_b32 v18, v18, v19
    v_lshlrev_b32 v18, 4, v18
    s_lshl_b32 s{S_T}, s{S_CB}, 8
    s_lshl_b32 s{S_T+1}, s{S_WQ}, 6
    s_add_u32 s{S_T}, s{S_T}, s{S_T+1}
    v_add3_u32 v{V_WOFF}, v17, v18, s{S_T}
    s_mov_b32 s{S_SLOT}, 0
    s_waitcnt lgkmcnt(0)
    s_mov_b32 s{S_A}, s46
    s_mov_b32 s{S_A+1}, s47
    s_mov_b32 s{S_A+2}, 0x10000000
    s_mov_b32 s{S_A+3}, 0x20000
    s_mov_b32 s{S_WD}, s42
    s_mov_b32 s{S_WD+1}, s43
    s_mov_b32 s{S_WD+2}, {3584*2048}
    s_mov_b32 s{S_WD+3}, 0x20000
    ''')
    sa = f's[{S_A}:{S_A+3}]'; wd = f's[{S_WD}:{S_WD+3}]'; ws = f's[{S_WS}:{S_WS+3}]'
    WOFS = R * 8192
    def dma(slot):
        return [[f's_add_u32 m0, s{S_LA}, {slot*8192}', f'buffer_load_dwordx4 v{V_L16}, {sa}, s{S_AK} offen sc1 lds', f's_add_u32 s{S_AK}, s{S_AK}, 2048'],
                [f's_add_u32 m0, s{S_LA}, {WOFS + slot*8192}', f'buffer_load_dwordx4 v{V_WOFF}, {wd}, s{S_WK} offen lds', f's_add_u32 s{S_WK}, s{S_WK}, {32*2048}']]
    for s_ in range(2):
        for it in dma(s_):
            for l in it: a(l)
    a(f'''
    s_mov_b32 s{S_WS}, s46
    s_mov_b32 s{S_WS+1}, s47
    s_mov_b32 s{S_WS+2}, 0x10000000
    s_mov_b32 s{S_WS+3}, 0x20000
    s_mov_b32 s{S_OUT}, s44
    s_mov_b32 s{S_OUT+1}, s45
    s_mov_b32 s{S_OUT+2}, {2048*2048}
    s_mov_b32 s{S_OUT+3}, 0x20000
    v_and_b32 v17, 15, v0
    v_lshrrev_b32 v18, 4, v0
    v_lshlrev_b32 v19, 9, v18
    v_lshl_add_u32 v19, v17, 4, v19
    s_lshl_b32 s{S_T}, s{S_WR}, 12
    s_lshl_b32 s{S_T+1}, s{S_KH}, 11
    s_add_u32 s{S_T}, s{S_T}, s{S_T+1}
    v_add_u32 v{V_AB}, s{S_T}, v19
    v_xor_b32 v{V_AB2}, 2048, v{V_AB}
    v_lshrrev_b32 v19, 5, v0
    v_lshlrev_b32 v19, 12, v19
    v_and_b32 v18, 1, v18
    v_lshl_add_u32 v19, v18, 9, v19
    v_lshl_add_u32 v19, v18, 5, v19
    v_lshrrev_b32 v18, 2, v17
    v_lshl_add_u32 v19, v18, 6, v19
    v_and_b32 v18, 3, v17
    v_lshl_add_u32 v19, v18, 3, v19
    s_lshl_b32 s{S_T}, s{S_WQ}, 10
    s_add_u32 s{S_T}, s{S_T}, {WOFS}
    v_add_u32 v{V_WB}, s{S_T}, v19
    v_xor_b32 v{V_WB2}, 32, v{V_WB}
    s_mov_b32 s{S_CNT}, 7
    v_mov_b32 v{V_Z}, 0
    s_lshr_b32 s{S_FA}, s{S_RB}, 1
    s_lshl_b32 s{S_FA}, s{S_FA}, 7
    s_add_u32 s{S_FA}, s{S_FA}, {WS_FLAG:#x}
    s_lshl_b32 s{S_FP}, s2, 3
    s_add_u32 s{S_FP}, s{S_FP}, s{S_W}
    s_lshl_b32 s{S_FP}, s{S_FP}, 6
    s_add_u32 s{S_FP}, s{S_FP}, {WS_FLAG:#x}
    s_lshl_b32 s{S_TB0}, s{S_RB}, 2
    s_lshl_b32 s{S_T}, s{S_WR}, 1
    s_add_u32 s{S_TB0}, s{S_TB0}, s{S_T}
    s_add_u32 s{S_TB0}, s{S_TB0}, s{S_KH}
    s_lshl_b32 s{S_T+4}, s{S_TB0}, 7
    s_add_u32 s{S_T+4}, s{S_T+4}, {WS_G:#x}
    s_xor_b32 s{S_T+5}, s{S_T+4}, 128
    v_lshlrev_b32 v17, 2, v17
    ''')
    for r in range(ACC, ACC + 32): a(f'v_mov_b32 v{r}, 0')
    def reads(st_, slot):
        f = FR[st_]
        W = [f'ds_read_b64_tr_b16 v[{f+16+4*p+2*h}:{f+16+4*p+2*h+1}], v{(V_WB, V_WB2)[p]} offset:{slot*8192 + h*256}' for p in range(2) for h in range(2)]
        A = [f'ds_read_b128 {r4(f+4*t)}, v{(V_AB, V_AB2)[t>>1]} offset:{slot*8192 + (t&1)*256}' for t in range(4)]
        return W[:2] + A + W[2:]
    def mfmas(st_):
        f = FR[st_]
        return [f'v_mfma_f32_16x16x32_bf16 {r4(ACC+8*t+4*p)}, {r4(f+16+4*p)}, {r4(f+4*t)}, {r4(ACC+8*t+4*p)}' for p in range(2) for t in range(4)]
    def stage(j, vm, slots, extra=()):
        a(f's_waitcnt vmcnt({vm}) lgkmcnt(0)\ns_barrier')
        rd = reads(1 - (j & 1), (j + 1) % R); mm = mfmas(j & 1)
        dm = []
        for sl in slots: dm += dma(sl)
        dm += [[None, l] for l in extra]
        n = (len(dm) + 1) // 2
        d0, r0 = (0, 2) if 'o' in exp else (4, 0)
        if 'O' in exp:
            for l in rd: a(l)
            d0, r0 = 1, 99
        for i in range(8):
            its = dm[(i-d0)*n:(i-d0+1)*n] if d0 <= i < d0 + 2 else []
            if its and its[0][0]: a(its[0][0])
            a(mm[i])
            for k, it in enumerate(its):
                for l in (it[1:] if k == 0 else [x for x in it if x]): a(l)
            if r0 <= i < r0 + 4: a(rd[2*(i-r0)]); a(rd[2*(i-r0)+1])
    a(f's_waitcnt vmcnt(2)\ns_barrier')
    for l in reads(0, 0): a(l)
    for it in dma(2):
        for l in it: a(l)
    if stamp: a('s_memtime s[88:89]')
    stage(0, 2, [3, 4])
    stage(1, 4, [0, 1], [f'buffer_load_dword v{V_G+t}, v17, {ws}, s{S_T+4+(t>>1)} offen offset:{(t&1)*64}' for t in range(4)])
    m0 = a.mark()
    a.label(f'{name}_loop')
    for k in range(10):
        j = 2 + k
        if k == 9:
            a(f's_cmp_eq_u32 s{S_CNT}, 3\ns_cbranch_scc1 {name}_sw')
            a.label(f'{name}_b1')
        stage(j, 2*(R-2), [j % R])
        if k == 3:
            if 'S' in exp: a(f's_cmp_eq_u32 s{S_CNT}, 3\ns_cbranch_scc1 {name}_fl')
            a(f'''
            s_cmp_eq_u32 s{S_CNT}, 2
            s_cbranch_scc1 {name}_sc
            ''')
            a.label(f'{name}_b2')
    a(f's_sub_u32 s{S_CNT}, s{S_CNT}, 1\ns_cmp_lg_u32 s{S_CNT}, 0\ns_cbranch_scc1 {name}_loop')
    m1 = a.mark()
    if stamp: a('s_memtime s[82:83]')
    a(f'''
    s_sub_u32 s52, s2, 256
    s_lshl_b32 s52, s52, 3
    s_add_u32 s52, s52, s{S_W}
    s_lshl_b32 s52, s52, 11
    s_add_u32 s52, s52, {WS_PART:#x}
    s_xor_b32 s53, s52, {8*2048}
    ''')
    for j in range(8): a(f'v_cvt_pk_bf16_f32 v{PT+j}, v{ACC+16+2*j}, v{ACC+16+2*j+1}')
    for j in range(8): a(f'v_max_u32 v{PT+j}, 1, v{PT+j}')
    for h in range(2): a(f'buffer_store_dwordx4 {r4(PT+4*h)}, v{V_L16}, {ws}, s52 offen offset:{h*1024} sc1')
    a(f'''
    v_and_b32 v18, 15, v0
    v_lshrrev_b32 v19, 4, v0
    v_lshlrev_b32 v18, 11, v18
    v_and_b32 v{V_ARD}, 1, v19
    v_lshl_add_u32 v18, v{V_ARD}, 5, v18
    v_lshrrev_b32 v19, 1, v19
    v_lshl_add_u32 v18, v19, 4, v18
    s_lshl_b32 s55, s{S_TB0}, 16
    s_lshl_b32 s{S_T}, s{S_CB}, 8
    s_add_u32 s55, s55, s{S_T}
    s_lshl_b32 s{S_T}, s{S_WQ}, 6
    s_add_u32 s55, s55, s{S_T}
    s_add_u32 s56, s55, {16*2048}
    s_mov_b32 s57, 0xffff0000
    s_waitcnt lgkmcnt(0)
    ''')
    a.label(f'{name}_poll')
    a(f'''
    buffer_load_dwordx4 {r4(PT+8)}, v{V_L16}, {ws}, s53 offen sc1
    buffer_load_dwordx4 {r4(PT+12)}, v{V_L16}, {ws}, s53 offen offset:1024 sc1
    s_waitcnt vmcnt(0)
    v_min3_u32 v17, v{PT+8}, v{PT+9}, v{PT+10}
    v_min3_u32 v19, v{PT+11}, v{PT+12}, v{PT+13}
    v_min3_u32 v17, v17, v{PT+14}, v{PT+15}
    v_min_u32 v17, v17, v19
    v_cmp_eq_u32 vcc, 0, v17
    s_cmp_lg_u64 vcc, 0
    s_cbranch_scc1 {name}_poll
    ''')
    for t in range(2):
        for j in range(4):
            a(f'v_lshlrev_b32 v{FR[0]+2*j}, 16, v{PT+8+4*t+j}\nv_and_b32 v{FR[0]+2*j+1}, s57, v{PT+8+4*t+j}')
        for r in range(8): a(f'v_add_f32 v{ACC+8*t+r}, v{ACC+8*t+r}, v{FR[0]+r}')
        o = FR[1] + 4*t
        for j in range(4): a(f'v_cvt_pk_bf16_f32 v{o+j}, v{ACC+8*t+2*j}, v{ACC+8*t+2*j+1}')
        a(f'v_permlane16_swap_b32 v{o}, v{o+2}\nv_permlane16_swap_b32 v{o+1}, v{o+3}')
        a(f'buffer_store_dwordx4 {r4(o)}, v18, s[{S_OUT}:{S_OUT+3}], s{55+t} offen')
    if stamp: stamp_out(a, ws, S_W, 0x8300000, 256)
    a('s_endpgm')
    e0 = a.mark()
    if 'S' in exp:
        a.label(f'{name}_fl')
        a(f'buffer_load_dword v{V_FL}, v{V_Z}, {ws}, s{S_FA} offen sc1\ns_branch {name}_b2')
        e1 = a.mark()
        a.label(f'{name}_sw')
        if stamp: a('s_memtime s[94:95]')
        a(f'''
        s_lshl_b32 s{S_T}, s{S_KH}, 15
        s_add_u32 s{S_AK}, s{S_AO}, s{S_T}
        s_and_b32 s{S_T}, s{S_AK}, 0xfffff800
        s_add_u32 s{S_A+2}, s{S_T}, {512*64}
        s_mov_b32 s{S_WD}, s40
        s_mov_b32 s{S_WD+1}, s41
        s_lshl_b32 s{S_WK}, s{S_KH}, 20
        s_add_u32 s{S_WD+2}, s{S_WK}, {512*2048}
        s_cmp_lg_u32 s{S_W}, 0
        s_cbranch_scc1 {name}_b1
        ''')
        a.label(f'{name}_sw2')
        a(f'''
        v_readfirstlane_b32 s{S_T}, v{V_FL}
        s_cmp_ge_u32 s{S_T}, 32
        s_cbranch_scc1 {name}_b1
        s_sleep 3
        buffer_load_dword v{V_FL}, v{V_Z}, {ws}, s{S_FA} offen sc1
        s_waitcnt vmcnt(0)
        s_branch {name}_sw2
        ''')
        e2 = a.mark()
        a.label(f'{name}_sc')
        if stamp: a('s_memtime s[84:85]')
        a('s_nop 4')
        for t in range(4): a(f'v_sub_f32 v{V_G+t}, 1.0, v{V_G+t}')
        for t in range(4):
            for r in range(8): a(f'v_mul_f32 v{ACC+8*t+r}, v{ACC+8*t+r}, v{V_G+t}')
        a(f's_branch {name}_b2')
        e3 = a.mark()
        body = a.ins[m0:m1]
        ib1 = [i for i, x in enumerate(body) if x.text == f'{name}_b1:'][0]
        ib2 = [i for i, x in enumerate(body) if x.text == f'{name}_b2:'][0]
        tr = a.ins[st:m1] + body[:ib2] + a.ins[e0:e1] + body[ib2:ib1] + a.ins[e1:e2-4] + body[ib1:] + body[:ib2] + a.ins[e2:e3] + body[ib2:] + body + a.ins[m1:e0]
        return list(dict.fromkeys(check_seq(tr, name)))
    e1 = a.mark()
    a.label(f'{name}_sw')
    a(f'''
    s_mov_b32 s{S_A+2}, 0
    s_mov_b32 s{S_WD}, s40
    s_mov_b32 s{S_WD+1}, s41
    s_lshl_b32 s{S_WK}, s{S_KH}, 20
    s_add_u32 s{S_WD+2}, s{S_WK}, {512*2048}
    s_branch {name}_b1
    ''')
    e2 = a.mark()
    a.label(f'{name}_sc')
    if stamp: a('s_memtime s[94:95]')
    a(f'buffer_load_dword v{V_FL}, v{V_Z}, {ws}, s{S_FA} offen sc1')
    for t in range(4): a(f'v_sub_f32 v{V_G+t}, 1.0, v{V_G+t}')
    a(f'''
    s_lshl_b32 s{S_T}, s{S_KH}, 15
    s_add_u32 s{S_AK}, s{S_AO}, s{S_T}
    s_and_b32 s{S_T}, s{S_AK}, 0xfffff800
    s_add_u32 s{S_A+2}, s{S_T}, {512*64}
    s_mov_b32 s{S_T+1}, 0x7fff0000
    ''')
    for t in range(4):
        for r in range(8): a(f'v_mul_f32 v{ACC+8*t+r}, v{ACC+8*t+r}, v{V_G+t}')
    a(f's_waitcnt vmcnt(0) lgkmcnt(0)\ns_cmp_lg_u32 s{S_W}, 0\ns_cbranch_scc1 {name}_go')
    a.label(f'{name}_sw2')
    a(f'''
    v_readfirstlane_b32 s{S_T}, v{V_FL}
    s_cmp_ge_u32 s{S_T}, 32
    s_cbranch_scc1 {name}_go
    s_sleep 3
    buffer_load_dword v{V_FL}, v{V_Z}, {ws}, s{S_FA} offen sc1
    s_waitcnt vmcnt(0)
    s_branch {name}_sw2
    ''')
    a.label(f'{name}_go')
    a('s_barrier')
    if stamp: a('s_memtime s[84:85]')
    for j in range(56, 61):
        for l in dma(j % R)[0]: a(l)
        a(f'buffer_load_dword v{V_FL}, v{V_Z}, {sa}, s{S_T+1} offen')
    a('s_waitcnt vmcnt(9)\ns_barrier')
    for l in reads(0, 56 % R)[2:6]: a(l)
    a(f's_branch {name}_b2')
    e3 = a.mark()
    body = a.ins[m0:m1]
    ib1 = [i for i, x in enumerate(body) if x.text == f'{name}_b1:'][0]
    ib2 = [i for i, x in enumerate(body) if x.text == f'{name}_b2:'][0]
    tr = a.ins[st:m1] + body[:ib1] + a.ins[e1:e2] + body[ib1:] + body[:ib2] + a.ins[e2:e3] + body[ib2:] + body + a.ins[m1:e0]
    return [e for e in dict.fromkeys(check_seq(tr, name)) if f'buffer_load_dword v{V_FL}, v{V_Z}, {sa}' not in e]
    return list(dict.fromkeys(check_seq(tr, name)))

def down4(a, name, stamp, prio, exp=''):
    R = 5
    WOFS = R * 8192
    V_L16, V_WOFF, V_AB, V_WB, V_FL, V_Z, V_G = 1, 2, 3, 5, 7, 8, 9
    ACC, AF, WF = 16, [80, 96], 112
    S_A, S_WD, S_WS, S_OUT = 4, 8, 12, 48
    S_W, S_WR, S_WC, S_RB, S_CB, S_KH, S_AK, S_WK, S_LA, S_CNT, S_T = 16, 17, 18, 19, 20, 21, 22, 23, 24, 27, 30
    S_TB0, S_FA, S_AO = 36, 37, 39
    st = a.mark()
    a(f'''
    s_load_dwordx2 s[40:41], s[0:1], 16
    s_load_dwordx2 s[42:43], s[0:1], 48
    s_load_dwordx2 s[44:45], s[0:1], 64
    s_load_dwordx2 s[46:47], s[0:1], 80
    v_lshrrev_b32 v17, 6, v0
    v_and_b32 v0, 63, v0
    v_readfirstlane_b32 s{S_W}, v17
    s_and_b32 s{S_T}, s2, 7
    s_lshr_b32 s{S_T+1}, s2, 3
    s_and_b32 s{S_T+1}, s{S_T+1}, 31
    s_and_b32 s{S_KH}, s{S_T}, 1
    s_lshr_b32 s{S_T}, s{S_T}, 1
    s_lshl_b32 s{S_RB}, s{S_T}, 2
    s_lshr_b32 s{S_T+2}, s{S_T+1}, 3
    s_add_u32 s{S_RB}, s{S_RB}, s{S_T+2}
    s_and_b32 s{S_CB}, s{S_T+1}, 7
    s_bfe_u32 s{S_WR}, s{S_W}, 0x10001
    s_and_b32 s{S_WC}, s{S_W}, 1
    v_lshlrev_b32 v{V_L16}, 4, v0
    v_mov_b32 v{V_Z}, 0
    s_mov_b32 s{S_CNT}, 7
    ''')
    if stamp: a('s_memtime s[90:91]\ns_memrealtime s[92:93]\ns_memtime s[94:95]\ns_memtime s[84:85]\ns_memtime s[82:83]\ns_memtime s[88:89]')
    a(f'''
    s_waitcnt lgkmcnt(0)
    s_mov_b32 s{S_WS}, s46
    s_mov_b32 s{S_WS+1}, s47
    s_mov_b32 s{S_WS+2}, 0x10000000
    s_mov_b32 s{S_WS+3}, 0x20000
    s_cmp_lt_u32 s{S_W}, 4
    s_cbranch_scc1 {name}_cmp
    ''')
    sa = f's[{S_A}:{S_A+3}]'; wd = f's[{S_WD}:{S_WD+3}]'; ws = f's[{S_WS}:{S_WS+3}]'
    l0 = a.mark()
    a(f'''
    s_and_b32 s{S_T+1}, s{S_W}, 3
    s_lshl_b32 s{S_T}, s{S_RB}, 2
    s_add_u32 s{S_T}, s{S_T}, s{S_T+1}
    s_mul_i32 s{S_AO}, s{S_T}, {OH_TB}
    s_add_u32 s{S_AO}, s{S_AO}, {WS_OH:#x}
    s_mul_i32 s{S_T}, s{S_KH}, {1792*64}
    s_add_u32 s{S_AK}, s{S_AO}, s{S_T}
    s_add_u32 s{S_AK}, s{S_AK}, {1024*64}
    s_mul_i32 s{S_WK}, s{S_KH}, {1792*2048}
    s_lshl_b32 s{S_LA}, s{S_T+1}, 11
    v_lshrrev_b32 v17, 2, v0
    s_lshl_b32 s{S_T}, s{S_WR}, 4
    v_add_u32 v17, s{S_T}, v17
    v_lshlrev_b32 v17, 11, v17
    v_lshrrev_b32 v18, 5, v0
    v_lshlrev_b32 v18, 1, v18
    v_and_b32 v19, 3, v0
    v_xor_b32 v18, v18, v19
    v_lshlrev_b32 v18, 4, v18
    s_lshl_b32 s{S_T}, s{S_CB}, 8
    s_lshl_b32 s{S_T+1}, s{S_WC}, 7
    s_add_u32 s{S_T}, s{S_T}, s{S_T+1}
    v_add3_u32 v{V_WOFF}, v17, v18, s{S_T}
    s_mov_b32 s{S_A}, s46
    s_mov_b32 s{S_A+1}, s47
    s_mov_b32 s{S_A+2}, 0x10000000
    s_mov_b32 s{S_A+3}, 0x20000
    s_mov_b32 s{S_WD}, s42
    s_mov_b32 s{S_WD+1}, s43
    s_mov_b32 s{S_WD+2}, {3584*2048}
    s_mov_b32 s{S_WD+3}, 0x20000
    s_lshr_b32 s{S_FA}, s{S_RB}, 1
    s_lshl_b32 s{S_FA}, s{S_FA}, 7
    s_add_u32 s{S_FA}, s{S_FA}, {WS_FLAG:#x}
    ''')
    def dma(slot):
        a(f'''
        s_add_u32 m0, s{S_LA}, {slot*8192}
        s_nop 0
        buffer_load_dwordx4 v{V_L16}, {sa}, s{S_AK} offen sc1 lds
        buffer_load_dwordx4 v{V_L16}, {sa}, s{S_AK} offen offset:1024 sc1 lds
        s_add_u32 m0, s{S_LA}, {WOFS + slot*8192}
        s_add_u32 s{S_AK}, s{S_AK}, 2048
        buffer_load_dwordx4 v{V_WOFF}, {wd}, s{S_WK} offen lds
        s_add_u32 m0, s{S_LA}, {WOFS + slot*8192 + 1024 - 64}
        s_nop 0
        buffer_load_dwordx4 v{V_WOFF}, {wd}, s{S_WK} offen offset:64 lds
        s_add_u32 s{S_WK}, s{S_WK}, {32*2048}
        ''')
    dma(0); dma(1)
    a('s_waitcnt vmcnt(4)\ns_barrier')
    dma(2); dma(3); dma(4)
    for j in range(2):
        a('s_waitcnt vmcnt(12)\ns_barrier'); dma(j)
    lm0 = a.mark()
    a.label(f'{name}_lloop')
    for k in range(10):
        if k == 9:
            a(f's_cmp_eq_u32 s{S_CNT}, 3\ns_cbranch_scc1 {name}_sw')
            a.label(f'{name}_b1')
        a('s_waitcnt vmcnt(12)\ns_barrier'); dma((2 + k) % R)
    a(f's_sub_u32 s{S_CNT}, s{S_CNT}, 1\ns_cmp_lg_u32 s{S_CNT}, 0\ns_cbranch_scc1 {name}_lloop')
    lm1 = a.mark()
    a('s_waitcnt vmcnt(0)')
    if stamp: stamp_out(a, ws, S_W, 0x8300000, 256)
    a('s_endpgm')
    a.label(f'{name}_sw')
    a(f'''
    s_lshl_b32 s{S_T}, s{S_KH}, 15
    s_add_u32 s{S_AK}, s{S_AO}, s{S_T}
    s_add_u32 s{S_A+2}, s{S_AK}, {512*64}
    s_mov_b32 s{S_WD}, s40
    s_mov_b32 s{S_WD+1}, s41
    s_lshl_b32 s{S_WK}, s{S_KH}, 20
    s_add_u32 s{S_WD+2}, s{S_WK}, {512*2048}
    s_cmp_lg_u32 s{S_W}, 4
    s_cbranch_scc1 {name}_b1
    ''')
    a.label(f'{name}_sw2')
    a(f'''
    buffer_load_dword v{V_FL}, v{V_Z}, {ws}, s{S_FA} offen sc1
    s_waitcnt vmcnt(0)
    v_readfirstlane_b32 s{S_T}, v{V_FL}
    s_cmp_ge_u32 s{S_T}, 32
    s_cbranch_scc1 {name}_b1
    s_sleep 3
    s_branch {name}_sw2
    ''')
    l1 = a.mark()
    a.label(f'{name}_cmp')
    a(f'''
    s_mov_b32 s{S_OUT}, s44
    s_mov_b32 s{S_OUT+1}, s45
    s_mov_b32 s{S_OUT+2}, {2048*2048}
    s_mov_b32 s{S_OUT+3}, 0x20000
    v_and_b32 v13, 15, v0
    v_lshrrev_b32 v14, 4, v0
    v_lshlrev_b32 v15, 9, v14
    v_lshl_add_u32 v15, v13, 4, v15
    s_lshl_b32 s{S_T}, s{S_WR}, 12
    s_lshl_b32 s{S_T+1}, s{S_KH}, 11
    s_add_u32 s{S_T}, s{S_T}, s{S_T+1}
    v_add_u32 v{V_AB}, s{S_T}, v15
    v_xor_b32 v{V_AB+1}, 2048, v{V_AB}
    v_lshrrev_b32 v15, 5, v0
    v_lshlrev_b32 v15, 12, v15
    v_and_b32 v14, 1, v14
    v_lshl_add_u32 v15, v14, 9, v15
    v_lshl_add_u32 v15, v14, 5, v15
    v_lshrrev_b32 v14, 2, v13
    v_lshl_add_u32 v15, v14, 6, v15
    v_and_b32 v14, 3, v13
    v_lshl_add_u32 v15, v14, 3, v15
    s_lshl_b32 s{S_T}, s{S_WC}, 11
    s_add_u32 s{S_T}, s{S_T}, {WOFS}
    v_add_u32 v{V_WB}, s{S_T}, v15
    v_xor_b32 v{V_WB+1}, 32, v{V_WB}
    s_lshl_b32 s{S_TB0}, s{S_RB}, 2
    s_lshl_b32 s{S_T}, s{S_WR}, 1
    s_add_u32 s{S_TB0}, s{S_TB0}, s{S_T}
    s_add_u32 s{S_TB0}, s{S_TB0}, s{S_KH}
    s_lshl_b32 s{S_T+4}, s{S_TB0}, 7
    s_add_u32 s{S_T+4}, s{S_T+4}, {WS_G:#x}
    s_xor_b32 s{S_T+5}, s{S_T+4}, 128
    v_lshlrev_b32 v13, 2, v13
    ''')
    for t in range(4): a(f'buffer_load_dword v{V_G+t}, v13, {ws}, s{S_T+4+(t>>1)} offen offset:{(t&1)*64}')
    for r in range(ACC, ACC + 64): a(f'v_mov_b32 v{r}, 0')
    def rdA(slot, st_): return [f'ds_read_b128 {r4(AF[st_]+4*t)}, v{V_AB+(t>>1)} offset:{slot*8192 + (t&1)*256}' for t in range(4)]
    def rdW(slot, q): return [f'ds_read_b64_tr_b16 v[{WF+8*q+4*p+2*h}:{WF+8*q+4*p+2*h+1}], v{V_WB+p} offset:{slot*8192 + q*1024 + h*256}' for p in range(2) for h in range(2)]
    def mm(st_, q):
        return [f'v_mfma_f32_16x16x32_bf16 {r4(ACC+16*t+4*(2*q+p))}, {r4(WF+8*q+4*p)}, {r4(AF[st_]+4*t)}, {r4(ACC+16*t+4*(2*q+p))}' for p in range(2) for t in range(4)]
    def stage(j):
        slot, st_ = j % R, j & 1
        a('s_waitcnt lgkmcnt(0)')
        M = mm(st_, 0); rd = rdW(slot, 1)
        for i in range(8):
            a(M[i])
            if i < 4: a(rd[i])
        a('s_waitcnt lgkmcnt(0)\ns_barrier')
        M = mm(st_, 1); w = rdW((slot + 1) % R, 0); rd = w[:2] + rdA((slot + 1) % R, 1 - st_) + w[2:]
        if 'u' in exp:
            for i in range(8): a(M[i]); a(rd[i])
        else:
            for i in range(8):
                a(M[i])
                if i < 4: a(rd[2*i]); a(rd[2*i+1])
    a('s_barrier')
    for l in rdW(0, 0) + rdA(0, 0): a(l)
    if stamp: a('s_memtime s[88:89]')
    stage(0); stage(1)
    m0 = a.mark()
    a.label(f'{name}_loop')
    for k in range(10):
        if k == 9 and stamp:
            a(f's_cmp_lg_u32 s{S_CNT}, 3\ns_cbranch_scc1 {name}_ns\ns_memtime s[94:95]')
            a.label(f'{name}_ns')
        stage(2 + k)
        if k == 3:
            a(f's_cmp_eq_u32 s{S_CNT}, 2\ns_cbranch_scc1 {name}_sc')
            a.label(f'{name}_b2')
    a(f's_sub_u32 s{S_CNT}, s{S_CNT}, 1\ns_cmp_lg_u32 s{S_CNT}, 0\ns_cbranch_scc1 {name}_loop')
    m1 = a.mark()
    if stamp: a('s_memtime s[82:83]')
    PT = AF[0]; RX = ACC + 32
    a(f'''
    s_sub_u32 s52, s2, 256
    s_lshl_b32 s52, s52, 2
    s_add_u32 s52, s52, s{S_W}
    s_lshl_b32 s52, s52, 12
    s_add_u32 s52, s52, {WS_PART:#x}
    s_xor_b32 s53, s52, {4*4096}
    s_waitcnt lgkmcnt(0)
    ''')
    for h in range(4):
        for j in range(4*h, 4*h + 4): a(f'v_cvt_pk_bf16_f32 v{PT+j}, v{ACC+32+2*j}, v{ACC+32+2*j+1}')
        for j in range(4*h, 4*h + 4): a(f'v_max_u32 v{PT+j}, 1, v{PT+j}')
        a(f'buffer_store_dwordx4 {r4(PT+4*h)}, v{V_L16}, {ws}, s52 offen offset:{h*1024} sc1')
    a(f'''
    v_and_b32 v3, 15, v0
    v_lshrrev_b32 v4, 4, v0
    v_lshlrev_b32 v3, 11, v3
    v_and_b32 v5, 1, v4
    v_lshl_add_u32 v3, v5, 5, v3
    v_lshrrev_b32 v4, 1, v4
    v_lshl_add_u32 v3, v4, 4, v3
    s_lshl_b32 s55, s{S_TB0}, 16
    s_lshl_b32 s{S_T}, s{S_CB}, 8
    s_add_u32 s55, s55, s{S_T}
    s_lshl_b32 s{S_T}, s{S_WC}, 7
    s_add_u32 s55, s55, s{S_T}
    s_add_u32 s56, s55, {16*2048}
    s_mov_b32 s57, 0xffff0000
    ''')
    a.label(f'{name}_poll')
    for h in range(4): a(f'buffer_load_dwordx4 {r4(RX+4*h)}, v{V_L16}, {ws}, s53 offen offset:{h*1024} sc1')
    a(f's_waitcnt vmcnt(0)\nv_min3_u32 v4, v{RX}, v{RX+1}, v{RX+2}\nv_min3_u32 v5, v{RX+3}, v{RX+4}, v{RX+5}')
    for j in range(6, 14, 4):
        a(f'v_min3_u32 v4, v4, v{RX+j}, v{RX+j+1}\nv_min3_u32 v5, v5, v{RX+j+2}, v{RX+j+3}')
    a(f'''
    v_min3_u32 v4, v4, v{RX+14}, v{RX+15}
    v_min_u32 v4, v4, v5
    v_cmp_eq_u32 vcc, 0, v4
    s_cmp_lg_u64 vcc, 0
    s_cbranch_scc1 {name}_poll
    ''')
    T = ACC + 48
    for t in range(2):
        for q in range(2):
            b = ACC + 16*t + 8*q
            for j in range(4):
                a(f'v_lshlrev_b32 v{T+2*j}, 16, v{RX+8*t+4*q+j}\nv_and_b32 v{T+2*j+1}, s57, v{RX+8*t+4*q+j}')
            for r in range(8): a(f'v_add_f32 v{b+r}, v{b+r}, v{T+r}')
            o = WF + 8*t + 4*q
            for j in range(4): a(f'v_cvt_pk_bf16_f32 v{o+j}, v{b+2*j}, v{b+2*j+1}')
            a(f'v_permlane16_swap_b32 v{o}, v{o+2}\nv_permlane16_swap_b32 v{o+1}, v{o+3}')
            a(f'buffer_store_dwordx4 {r4(o)}, v3, s[{S_OUT}:{S_OUT+3}], s{55+t} offen offset:{q*64}')
    if stamp: stamp_out(a, ws, S_W, 0x8300000, 256)
    a('s_endpgm')
    e2 = a.mark()
    a.label(f'{name}_sc')
    if stamp: a('s_memtime s[84:85]')
    a('s_waitcnt vmcnt(0)\ns_nop 4')
    for t in range(4): a(f'v_sub_f32 v{V_G+t}, 1.0, v{V_G+t}')
    for t in range(4):
        for r in range(16): a(f'v_mul_f32 v{ACC+16*t+r}, v{ACC+16*t+r}, v{V_G+t}')
    a(f's_branch {name}_b2')
    e3 = a.mark()
    body = a.ins[m0:m1]
    ib2 = [i for i, x in enumerate(body) if x.text == f'{name}_b2:'][0]
    tr = a.ins[st:l0] + a.ins[l1:m1] + body[:ib2] + a.ins[e2:e3] + body[ib2:] + a.ins[m1:e2]
    return list(dict.fromkeys(check_seq(tr, name) + check_seq(a.ins[st:lm1] + a.ins[lm0:l1], name + '_ld')))

def down5(a, name, stamp, prio, exp=''):
    R = 5
    WOFS = R * 8192
    V_L16, V_WOFF, V_AB, V_WB, V_FL, V_Z, V_G = 1, 2, 3, 5, 7, 8, 9
    ACC, AF, WF = 16, [80, 96], 112
    S_A, S_WD, S_WS, S_OUT = 4, 8, 12, 48
    S_W, S_WR, S_WC, S_RB, S_CB, S_KH, S_AK, S_WK, S_LA, S_CNT, S_T = 16, 17, 18, 19, 20, 21, 22, 23, 24, 27, 30
    S_TB0, S_FA, S_AO = 36, 37, 39
    st = a.mark()
    a(f'''
    s_load_dwordx2 s[40:41], s[0:1], 16
    s_load_dwordx2 s[42:43], s[0:1], 48
    s_load_dwordx2 s[44:45], s[0:1], 64
    s_load_dwordx2 s[46:47], s[0:1], 80
    v_lshrrev_b32 v17, 6, v0
    v_and_b32 v0, 63, v0
    v_readfirstlane_b32 s{S_W}, v17
    s_and_b32 s{S_T}, s2, 7
    s_lshr_b32 s{S_T+1}, s2, 3
    s_and_b32 s{S_T+1}, s{S_T+1}, 31
    s_and_b32 s{S_KH}, s{S_T}, 1
    s_lshr_b32 s{S_T}, s{S_T}, 1
    s_lshl_b32 s{S_RB}, s{S_T}, 2
    s_lshr_b32 s{S_T+2}, s{S_T+1}, 3
    s_add_u32 s{S_RB}, s{S_RB}, s{S_T+2}
    s_and_b32 s{S_CB}, s{S_T+1}, 7
    s_bfe_u32 s{S_WR}, s{S_W}, 0x10001
    s_and_b32 s{S_WC}, s{S_W}, 1
    v_lshlrev_b32 v{V_L16}, 4, v0
    v_mov_b32 v{V_Z}, 0
    s_mov_b32 s{S_CNT}, 6
    ''')
    if prio: a(f's_setprio {prio}')
    if stamp: a('s_memtime s[90:91]\ns_memrealtime s[92:93]\ns_memtime s[94:95]\ns_memtime s[84:85]\ns_memtime s[82:83]\ns_memtime s[88:89]')
    a(f'''
    s_waitcnt lgkmcnt(0)
    s_mov_b32 s{S_WS}, s46
    s_mov_b32 s{S_WS+1}, s47
    s_mov_b32 s{S_WS+2}, 0x10000000
    s_mov_b32 s{S_WS+3}, 0x20000
    s_cmp_lt_u32 s{S_W}, 4
    s_cbranch_scc1 {name}_cmp
    ''')
    sa = f's[{S_A}:{S_A+3}]'; wd = f's[{S_WD}:{S_WD+3}]'; ws = f's[{S_WS}:{S_WS+3}]'
    l0 = a.mark()
    a(f'''
    s_and_b32 s{S_T+1}, s{S_W}, 3
    s_lshl_b32 s{S_T}, s{S_RB}, 2
    s_add_u32 s{S_T}, s{S_T}, s{S_T+1}
    s_mul_i32 s{S_AO}, s{S_T}, {OH_TB}
    s_add_u32 s{S_AO}, s{S_AO}, {WS_OH:#x}
    s_mul_i32 s{S_T}, s{S_KH}, {1792*64}
    s_add_u32 s{S_AK}, s{S_AO}, s{S_T}
    s_add_u32 s{S_AK}, s{S_AK}, {1024*64}
    s_mul_i32 s{S_WK}, s{S_KH}, {1792*2048}
    s_lshl_b32 s{S_LA}, s{S_T+1}, 11
    v_lshrrev_b32 v17, 2, v0
    s_lshl_b32 s{S_T}, s{S_WR}, 4
    v_add_u32 v17, s{S_T}, v17
    v_lshlrev_b32 v17, 11, v17
    v_lshrrev_b32 v18, 5, v0
    v_lshlrev_b32 v18, 1, v18
    v_and_b32 v19, 3, v0
    v_xor_b32 v18, v18, v19
    v_lshlrev_b32 v18, 4, v18
    s_lshl_b32 s{S_T}, s{S_CB}, 8
    s_lshl_b32 s{S_T+1}, s{S_WC}, 7
    s_add_u32 s{S_T}, s{S_T}, s{S_T+1}
    v_add3_u32 v{V_WOFF}, v17, v18, s{S_T}
    s_mov_b32 s{S_A}, s46
    s_mov_b32 s{S_A+1}, s47
    s_add_u32 s{S_A+2}, s{S_AK}, {1792*64}
    s_mov_b32 s{S_A+3}, 0x20000
    s_mov_b32 s{S_WD}, s42
    s_mov_b32 s{S_WD+1}, s43
    s_add_u32 s{S_WD+2}, s{S_WK}, {1792*2048}
    s_mov_b32 s{S_WD+3}, 0x20000
    s_lshr_b32 s{S_FA}, s{S_RB}, 1
    s_lshl_b32 s{S_FA}, s{S_FA}, 7
    s_add_u32 s{S_FA}, s{S_FA}, {WS_FLAG:#x}
    ''')
    def dma(slot):
        a(f'''
        s_add_u32 m0, s{S_LA}, {slot*8192}
        s_nop 0
        buffer_load_dwordx4 v{V_L16}, {sa}, s{S_AK} offen lds
        buffer_load_dwordx4 v{V_L16}, {sa}, s{S_AK} offen offset:1024 lds
        s_add_u32 m0, s{S_LA}, {WOFS + slot*8192}
        s_add_u32 s{S_AK}, s{S_AK}, 2048
        buffer_load_dwordx4 v{V_WOFF}, {wd}, s{S_WK} offen lds
        s_add_u32 m0, s{S_LA}, {WOFS + slot*8192 + 1024 - 64}
        s_nop 0
        buffer_load_dwordx4 v{V_WOFF}, {wd}, s{S_WK} offen offset:64 lds
        s_add_u32 s{S_WK}, s{S_WK}, {32*2048}
        ''')
    dma(0); dma(1)
    a('s_waitcnt vmcnt(4)\ns_barrier')
    dma(2); dma(3); dma(4)
    for j in range(2):
        a('s_waitcnt vmcnt(12)\ns_barrier'); dma(j)
    lm0 = a.mark()
    a.label(f'{name}_lloop')
    for k in range(10):
        a('s_waitcnt vmcnt(12)\ns_barrier'); dma((2 + k) % R)
        if k == 3:
            a(f's_sub_u32 s{S_CNT}, s{S_CNT}, 1\ns_cmp_eq_u32 s{S_CNT}, 0\ns_cbranch_scc1 {name}_lx')
    a(f'''
    s_cmp_lg_u32 s{S_CNT}, {2 if 'K' in exp else 1}
    s_cbranch_scc1 {name}_lloop
    s_mov_b32 s60, s40
    s_mov_b32 s61, s41
    s_mov_b32 s62, {1024*2048}
    s_mov_b32 s63, 0x20000
    s_lshr_b32 s{S_T}, s2, 3
    s_and_b32 s{S_T}, s{S_T}, 31
    s_lshl_b32 s{S_T}, s{S_T}, 16
    s_lshl_b32 s{S_T+1}, s{S_LA}, 3
    s_add_u32 s{S_T}, s{S_T}, s{S_T+1}
    s_add_u32 s{S_T+1}, s{S_T}, 8192
    v_lshlrev_b32 v20, 7, v0
    buffer_load_dword v21, v20, s[60:63], s{S_T} offen
    buffer_load_dword v22, v20, s[60:63], s{S_T+1} offen
    ''')
    a(f's_branch {name}_lloop')
    lm1 = a.mark()
    a.label(f'{name}_lx')
    a(f's_waitcnt vmcnt(0)\ns_barrier\ns_branch {name}_join')
    l1 = a.mark()
    a.label(f'{name}_cmp')
    a(f'''
    s_mov_b32 s{S_OUT}, s44
    s_mov_b32 s{S_OUT+1}, s45
    s_mov_b32 s{S_OUT+2}, {2048*2048}
    s_mov_b32 s{S_OUT+3}, 0x20000
    v_and_b32 v13, 15, v0
    v_lshrrev_b32 v14, 4, v0
    v_lshlrev_b32 v15, 9, v14
    v_lshl_add_u32 v15, v13, 4, v15
    s_lshl_b32 s{S_T}, s{S_WR}, 12
    s_lshl_b32 s{S_T+1}, s{S_KH}, 11
    s_add_u32 s{S_T}, s{S_T}, s{S_T+1}
    v_add_u32 v{V_AB}, s{S_T}, v15
    v_xor_b32 v{V_AB+1}, 2048, v{V_AB}
    v_lshrrev_b32 v15, 5, v0
    v_lshlrev_b32 v15, 12, v15
    v_and_b32 v14, 1, v14
    v_lshl_add_u32 v15, v14, 9, v15
    v_lshl_add_u32 v15, v14, 5, v15
    v_lshrrev_b32 v14, 2, v13
    v_lshl_add_u32 v15, v14, 6, v15
    v_and_b32 v14, 3, v13
    v_lshl_add_u32 v15, v14, 3, v15
    s_lshl_b32 s{S_T}, s{S_WC}, 11
    s_add_u32 s{S_T}, s{S_T}, {WOFS}
    v_add_u32 v{V_WB}, s{S_T}, v15
    v_xor_b32 v{V_WB+1}, 32, v{V_WB}
    s_lshl_b32 s{S_TB0}, s{S_RB}, 2
    s_lshl_b32 s{S_T}, s{S_WR}, 1
    s_add_u32 s{S_TB0}, s{S_TB0}, s{S_T}
    s_add_u32 s{S_TB0}, s{S_TB0}, s{S_KH}
    s_lshl_b32 s{S_T+4}, s{S_TB0}, 7
    s_add_u32 s{S_T+4}, s{S_T+4}, {WS_G:#x}
    s_xor_b32 s{S_T+5}, s{S_T+4}, 128
    v_lshlrev_b32 v13, 2, v13
    ''')
    for t in range(4): a(f'buffer_load_dword v{V_G+t}, v13, {ws}, s{S_T+4+(t>>1)} offen offset:{(t&1)*64}')
    for r in range(ACC, ACC + 64): a(f'v_mov_b32 v{r}, 0')
    def rdA(slot, st_): return [f'ds_read_b128 {r4(AF[st_]+4*t)}, v{V_AB+(t>>1)} offset:{slot*8192 + (t&1)*256}' for t in range(4)]
    def rdW(slot, q): return [f'ds_read_b64_tr_b16 v[{WF+8*q+4*p+2*h}:{WF+8*q+4*p+2*h+1}], v{V_WB+p} offset:{slot*8192 + q*1024 + h*256}' for p in range(2) for h in range(2)]
    def mm(st_, q):
        return [f'v_mfma_f32_16x16x32_bf16 {r4(ACC+16*t+4*(2*q+p))}, {r4(WF+8*q+4*p)}, {r4(AF[st_]+4*t)}, {r4(ACC+16*t+4*(2*q+p))}' for p in range(2) for t in range(4)]
    def stage(j):
        slot, st_ = j % R, j & 1
        a('s_waitcnt lgkmcnt(0)')
        M = mm(st_, 0); rd = rdW(slot, 1)
        for i in range(8):
            a(M[i])
            if i < 4: a(rd[i])
        a('s_waitcnt lgkmcnt(0)\ns_barrier')
        M = mm(st_, 1); w = rdW((slot + 1) % R, 0); rd = w[:2] + rdA((slot + 1) % R, 1 - st_) + w[2:]
        if 'u' in exp:
            for i in range(8): a(M[i]); a(rd[i])
        else:
            for i in range(8):
                a(M[i])
                if i < 4: a(rd[2*i]); a(rd[2*i+1])
    a('s_barrier')
    for l in rdW(0, 0) + rdA(0, 0): a(l)
    if stamp: a('s_memtime s[88:89]')
    stage(0); stage(1)
    m0 = a.mark()
    a.label(f'{name}_loop')
    for k in range(10):
        stage(2 + k)
        if k == 3:
            a(f's_sub_u32 s{S_CNT}, s{S_CNT}, 1\ns_cmp_eq_u32 s{S_CNT}, 0\ns_cbranch_scc1 {name}_cx')
            mx = a.mark()
    a(f's_branch {name}_loop')
    m1 = a.mark()
    a.label(f'{name}_cx')
    if stamp: a('s_memtime s[94:95]')
    PT = AF[0]; RX = ACC + 32
    a(f'''
    s_sub_u32 s52, s2, 256
    s_lshl_b32 s52, s52, 2
    s_add_u32 s52, s52, s{S_W}
    s_lshl_b32 s52, s52, 12
    s_add_u32 s52, s52, {WS_PART:#x}
    s_xor_b32 s53, s52, {4*4096}
    s_mov_b32 s57, 0xffff0000
    s_waitcnt vmcnt(0) lgkmcnt(0)
    s_barrier
    ''')
    for t in range(4): a(f'v_sub_f32 v{V_G+t}, 1.0, v{V_G+t}')
    for t in (2, 3, 0, 1):
        for r in range(16): a(f'v_mul_f32 v{ACC+16*t+r}, v{ACC+16*t+r}, v{V_G+t}')
        if t == 3:
            for h in range(4):
                for j in range(4*h, 4*h + 4): a(f'v_cvt_pk_bf16_f32 v{PT+j}, v{ACC+32+2*j}, v{ACC+32+2*j+1}')
                for j in range(4*h, 4*h + 4): a(f'v_max_u32 v{PT+j}, 1, v{PT+j}')
                a(f'buffer_store_dwordx4 {r4(PT+4*h)}, v{V_L16}, {ws}, s52 offen offset:{h*1024} sc1')
    a(f'''
    s_lshl_b32 s{S_T}, s{S_WR}, 14
    s_lshl_b32 s{S_T+1}, s{S_WC}, 12
    s_add_u32 s{S_T}, s{S_T}, s{S_T+1}
    v_add_u32 v3, s{S_T}, v{V_L16}
    ''')
    for t in range(2):
        for c in range(4): a(f'ds_write_b128 v3, {r4(ACC+16*t+4*c)} offset:{t*8192 + c*1024}')
    a('s_waitcnt lgkmcnt(0)')
    jn = a.mark()
    a.label(f'{name}_join')
    if 'J' in exp: a('s_setprio 2')
    V_A2, V_W2, V_O2 = 3, 4, 5
    AC2, A2, WR, WL = 12, [28, 44], 60, 124
    WA = 32768
    a(f'''
    s_barrier
    s_lshl_b32 s{S_LA}, s{S_W}, 10
    v_add_u32 v6, s{S_LA}, v{V_L16}
    ''')
    for t in range(4): a(f'ds_read_b128 {r4(AC2+4*t)}, v6 offset:{t*8192}')
    a(f'''
    s_mov_b32 s{S_WD}, s40
    s_mov_b32 s{S_WD+1}, s41
    s_mov_b32 s{S_WD+2}, {1024*2048}
    s_mov_b32 s{S_WD+3}, 0x20000
    s_mov_b32 s{S_WK}, 0
    v_lshrrev_b32 v9, 2, v0
    s_lshr_b32 s{S_T}, s{S_W}, 2
    s_lshl_b32 s{S_T}, s{S_T}, 4
    v_add_u32 v9, s{S_T}, v9
    v_lshlrev_b32 v9, 11, v9
    v_lshrrev_b32 v10, 5, v0
    v_lshlrev_b32 v10, 1, v10
    v_and_b32 v11, 3, v0
    v_xor_b32 v10, v10, v11
    v_lshlrev_b32 v10, 4, v10
    s_lshl_b32 s{S_T}, s{S_CB}, 8
    s_and_b32 s{S_T+1}, s{S_W}, 3
    s_lshl_b32 s{S_T+1}, s{S_T+1}, 6
    s_add_u32 s{S_T}, s{S_T}, s{S_T+1}
    v_add3_u32 v{V_WOFF}, v9, v10, s{S_T}
    ''')
    def dW(slot): return [f's_add_u32 m0, s{S_LA}, {WA + slot*8192}', f'buffer_load_dwordx4 v{V_WOFF}, {wd}, s{S_WK} offen lds', f's_add_u32 s{S_WK}, s{S_WK}, {32*2048}']
    for sl in range(4):
        for l in dW(sl): a(l)
    a(f'''
    v_and_b32 v9, 15, v0
    v_lshrrev_b32 v10, 4, v0
    v_lshlrev_b32 v{V_A2}, 9, v10
    v_lshl_add_u32 v{V_A2}, v9, 4, v{V_A2}
    v_lshrrev_b32 v11, 5, v0
    v_lshlrev_b32 v11, 12, v11
    v_and_b32 v6, 1, v10
    v_lshl_add_u32 v11, v6, 9, v11
    s_and_b32 s{S_T}, s{S_W}, 1
    v_xor_b32 v6, s{S_T}, v6
    v_lshl_add_u32 v11, v6, 5, v11
    v_lshrrev_b32 v6, 2, v9
    v_lshl_add_u32 v11, v6, 6, v11
    v_and_b32 v6, 3, v9
    v_lshl_add_u32 v11, v6, 3, v11
    s_lshr_b32 s{S_T}, s{S_W}, 1
    s_lshl_b32 s{S_T}, s{S_T}, 10
    s_add_u32 s{S_T}, s{S_T}, {WA}
    v_add_u32 v{V_W2}, s{S_T}, v11
    v_and_b32 v6, 1, v10
    v_lshl_add_u32 v9, v6, 4, v9
    v_lshlrev_b32 v{V_O2}, 11, v9
    v_lshrrev_b32 v6, 1, v10
    v_lshl_add_u32 v{V_O2}, v6, 4, v{V_O2}
    s_mov_b32 s{S_OUT}, s44
    s_mov_b32 s{S_OUT+1}, s45
    s_mov_b32 s{S_OUT+2}, {2048*2048}
    s_mov_b32 s{S_OUT+3}, 0x20000
    s_lshl_b32 s{S_T}, s{S_RB}, 2
    s_add_u32 s{S_T}, s{S_T}, s{S_KH}
    s_lshl_b32 s55, s{S_T}, 16
    s_lshl_b32 s{S_T+1}, s{S_CB}, 8
    s_add_u32 s55, s55, s{S_T+1}
    s_lshl_b32 s{S_T+1}, s{S_W}, 5
    s_add_u32 s55, s55, s{S_T+1}
    s_add_u32 s56, s55, {64*2048}
    s_and_b32 s{S_T+1}, s{S_W}, 2
    s_add_u32 s{S_T}, s{S_T}, s{S_T+1}
    s_mul_i32 s{S_AK}, s{S_T}, {OH_TB}
    s_add_u32 s{S_AK}, s{S_AK}, {WS_OH:#x}
    s_and_b32 s{S_T+1}, s{S_W}, 1
    s_lshl_b32 s{S_T+1}, s{S_T+1}, 10
    s_add_u32 s{S_AK}, s{S_AK}, s{S_T+1}
    s_lshr_b32 s{S_T+1}, s{S_W}, 2
    s_lshl_b32 s{S_T+1}, s{S_T+1}, 15
    s_add_u32 s{S_AK}, s{S_AK}, s{S_T+1}
    s_lshr_b32 s{S_FA}, s{S_RB}, 1
    s_lshl_b32 s{S_FA}, s{S_FA}, 7
    s_add_u32 s{S_FA}, s{S_FA}, {WS_FLAG:#x}
    ''')
    def rW(dst, slot): return [f'ds_read_b64_tr_b16 v[{dst+2*h}:{dst+2*h+1}], v{V_W2} offset:{slot*8192 + h*256}' for h in range(2)]
    a(f'''
    s_sub_u32 s53, s2, 256
    s_xor_b32 s53, s53, 1
    s_lshl_b32 s53, s53, 2
    s_lshr_b32 s{S_T+1}, s{S_W}, 2
    s_add_u32 s53, s53, s{S_T+1}
    s_lshl_b32 s53, s53, 12
    s_bfe_u32 s{S_T+1}, s{S_W}, 0x10001
    s_lshl_b32 s{S_T+1}, s{S_T+1}, 10
    s_add_u32 s53, s53, s{S_T+1}
    s_and_b32 s{S_T+1}, s{S_W}, 1
    s_lshl_b32 s{S_T+1}, s{S_T+1}, 3
    s_add_u32 s53, s53, s{S_T+1}
    s_add_u32 s53, s53, {WS_PART:#x}
    s_add_u32 s54, s53, {2*4096}
    s_mov_b32 s57, 0xffff0000
    ''')
    for i in range(9):
        a('s_waitcnt vmcnt(2) lgkmcnt(0)\ns_barrier')
        if i < 8:
            for u in range(2):
                for l in rW(WR + 4*(2*i + u), 2*(i % 3) + u): a(l)
        for u in range(2):
            for l in dW(2*((i + 2) % 3) + u): a(l)
    a(f's_waitcnt vmcnt(0)\ns_cmp_lg_u32 s{S_W}, 0\ns_cbranch_scc1 {name}_go')
    a.label(f'{name}_sw2')
    a(f'''
    buffer_load_dword v{V_FL}, v{V_Z}, {ws}, s{S_FA} offen sc1
    s_waitcnt vmcnt(0)
    v_readfirstlane_b32 s{S_T}, v{V_FL}
    s_cmp_ge_u32 s{S_T}, 32
    s_cbranch_scc1 {name}_go
    s_sleep 3
    s_branch {name}_sw2
    ''')
    a.label(f'{name}_go')
    a('s_barrier')
    if stamp: a('s_memtime s[84:85]')
    def dA(g): return [f's_add_u32 m0, s{S_LA}, {(g % 4)*8192}', f'buffer_load_dwordx4 v{V_L16}, {ws}, s{S_AK} offen sc1 lds', f's_add_u32 s{S_AK}, s{S_AK}, 2048']
    def rA(g, stp): return [f'ds_read_b128 {r4(A2[stp]+4*t)}, v{V_A2} offset:{(g % 4)*8192 + stp*4096 + (t>>1)*2048 + (t&1)*256}' for t in range(4)]
    def m2(w, stp): return [f'v_mfma_f32_16x16x32_bf16 {r4(AC2+4*t)}, {r4(w)}, {r4(A2[stp]+4*t)}, {r4(AC2+4*t)}' for t in range(4)]
    for g in range(4):
        for l in dA(g): a(l)
    a('s_waitcnt vmcnt(3)\ns_barrier')
    for l in rA(0, 0): a(l)
    issued = ['A0', 'A1', 'A2', 'A3']
    pl = [f'buffer_load_dwordx2 v[{WR+2*t}:{WR+2*t+1}], v{V_L16}, {ws}, s{53+(t>>1)} offen offset:{(t&1)*2048} sc1' for t in range(4)]
    for g in range(16):
        rd = rA(g, 1) + rW(WL, (g + 4) % 6)
        for l in rd: a(l)
        a(f's_waitcnt lgkmcnt({0 if (stamp and g == 0) else len(rd)})')
        for l in m2(WR + 4*g, 0): a(l)
        if g == 15:
            a('s_waitcnt lgkmcnt(0)')
            for l in m2(WL, 1): a(l)
            break
        need = [x for x in (f'A{g+1}', f'W{g+1}') if x in issued]
        vm = len(issued) - 1 - max(issued.index(x) for x in need)
        a(f's_waitcnt vmcnt({vm}) lgkmcnt(0)\ns_barrier')
        for l in rA(g + 1, 0): a(l)
        M = m2(WL, 1); dm = []
        if g + 4 < 16: dm.append(dA(g + 4)); issued.append(f'A{g+4}')
        if g + 6 < 16: dm.append(dW((g + 4) % 6)); issued.append(f'W{g+6}')
        for i in range(4):
            if i < len(dm): a(dm[i][0])
            a(M[i])
            if i < len(dm):
                for l in dm[i][1:]: a(l)
        if g == 11:
            for l in pl: a(l); issued.append('P')
    if stamp: a('s_memtime s[82:83]')
    a.label(f'{name}_chk')
    a(f'''
    s_waitcnt vmcnt(0)
    v_min3_u32 v6, v{WR}, v{WR+1}, v{WR+2}
    v_min3_u32 v9, v{WR+3}, v{WR+4}, v{WR+5}
    v_min3_u32 v6, v6, v{WR+6}, v{WR+7}
    v_min_u32 v6, v6, v9
    v_cmp_eq_u32 vcc, 0, v6
    s_cmp_lg_u64 vcc, 0
    s_cbranch_scc1 {name}_again
    ''')
    for j in range(8):
        a(f'v_lshlrev_b32 v{WR+8+2*j}, 16, v{WR+j}\nv_and_b32 v{WR+8+2*j+1}, s57, v{WR+j}')
    for r in range(16): a(f'v_add_f32 v{AC2+r}, v{AC2+r}, v{WR+8+r}')
    for tb in range(2):
        o = A2[0] + 4*tb
        for j in range(4): a(f'v_cvt_pk_bf16_f32 v{o+j}, v{AC2+8*tb+2*j}, v{AC2+8*tb+2*j+1}')
        a(f'v_permlane16_swap_b32 v{o}, v{o+2}\nv_permlane16_swap_b32 v{o+1}, v{o+3}')
        a(f'buffer_store_dwordx4 {r4(o)}, v{V_O2}, s[{S_OUT}:{S_OUT+3}], s{55+tb} offen')
    if stamp: stamp_out(a, ws, S_W, 0x8300000, 256)
    a('s_endpgm')
    ee = a.mark()
    a.label(f'{name}_again')
    a('s_sleep 4')
    for l in pl: a(l)
    a(f's_branch {name}_chk')
    tr = a.ins[st:l0] + a.ins[l1:m1] + a.ins[m0:mx] + a.ins[m1:ee]
    return list(dict.fromkeys(check_seq(tr, name) + check_seq(a.ins[st:lm1] + a.ins[lm0:l1] + a.ins[jn:ee], name + '_ld')))

def gen(name='k2_kernel', stamp=False, force_slow=False, prio_a=0, prio_g=0, only=None, exp=''):
    a = Asm()
    a(f'''
    s_cmp_ge_u32 s2, 512
    s_cbranch_scc1 {name}_end
    s_cmp_ge_u32 s2, 256
    s_cbranch_scc1 {name + ('_end' if only == 'a' else '_down')}
    ''')
    if only == 'g': a(f's_branch {name}_end')
    errs = attention(a, name, stamp, force_slow, prio_a, exp)
    a.label(f'{name}_down')
    errs += (down5 if '5' in exp else down4 if '4' in exp else down)(a, name + '_d', stamp, prio_g, exp)
    a.label(f'{name}_end')
    a('s_endpgm')
    for e in errs[:20]: print('CHECK', e)
    return kernel_text(name, a, NV, 102, NV), LDS_BYTES
```

```python
from asmlib import *
import os
from k1 import WS_QKV, WS_OH, WS_G, WS_FLAG, OH_TB

from k1 import WS_PART
RING = 4
CH = 16384
LDS_BYTES = 81920
NV = 128

def r4(b): return f'v[{b}:{b+3}]'
def r16(b): return f'v[{b}:{b+15}]'

def stamp_out(a, srd, s_w, base, idsub=0):
    a(f'''
    s_waitcnt vmcnt(0)
    s_memtime s[96:97]
    s_memrealtime s[98:99]
    s_waitcnt lgkmcnt(0)
    v_mov_b32 v4, s90
    v_mov_b32 v5, s94
    v_mov_b32 v6, s96
    v_mov_b32 v7, s92
    v_mov_b32 v8, s98
    v_mov_b32 v9, s88
    v_mov_b32 v10, 0
    s_sub_u32 s74, s2, {idsub}
    s_lshl_b32 s74, s74, 3
    s_add_u32 s74, s74, s{s_w}
    s_lshl_b32 s74, s74, 5
    s_add_u32 s74, s74, {base:#x}
    s_mov_b32 exec_lo, 1
    s_mov_b32 exec_hi, 0
    buffer_store_dwordx4 v[4:7], v10, {srd}, s74 offen
    buffer_store_dwordx2 v[8:9], v10, {srd}, s74 offen offset:16
    v_mov_b32 v12, s84
    v_mov_b32 v13, s82
    buffer_store_dwordx2 v[12:13], v10, {srd}, s74 offen offset:24
    ''')

def attention(a, name, stamp, force_slow, prio, exp=''):
    V_L16, V_G, V_IDX = 1, 2, 4
    Q, ONES, L, O, CM = 16, 24, 28, 32, 48
    S = [64, 80]
    P, KF, VF = 96, 104, 112
    S_WS = 4
    S_W, S_HD, S_TB, S_KB, S_VB, S_LD, S_CNT, S_T = 8, 9, 10, 11, 12, 13, 14, 16
    a(f'''
    s_load_dwordx2 s[20:21], s[0:1], 80
    v_lshrrev_b32 v8, 6, v0
    v_and_b32 v0, 63, v0
    v_readfirstlane_b32 s{S_W}, v8
    s_and_b32 s{S_T}, s2, 7
    s_lshr_b32 s{S_T+1}, s2, 3
    s_lshr_b32 s{S_T+2}, s{S_T+1}, 3
    s_lshl_b32 s{S_HD}, s{S_T}, 2
    s_add_u32 s{S_HD}, s{S_HD}, s{S_T+2}
    s_and_b32 s{S_T+1}, s{S_T+1}, 7
    s_lshl_b32 s{S_TB}, s{S_T+1}, 3
    s_add_u32 s{S_TB}, s{S_TB}, s{S_W}
    v_lshlrev_b32 v{V_L16}, 4, v0
    ''')
    if prio: a(f's_setprio {prio}')
    if stamp: a('s_memtime s[90:91]\ns_memrealtime s[92:93]')
    a(f'''
    s_and_b32 s{S_T}, s{S_W}, 1
    s_lshr_b32 s{S_T+1}, s{S_W}, 1
    s_lshl_b32 s{S_KB}, s{S_HD}, 17
    s_lshl_b32 s{S_T+2}, s{S_T}, 16
    s_add_u32 s{S_KB}, s{S_KB}, s{S_T+2}
    s_lshl_b32 s{S_T+2}, s{S_T+1}, 10
    s_add_u32 s{S_KB}, s{S_KB}, s{S_T+2}
    s_add_u32 s{S_KB}, s{S_KB}, {WS_QKV + 32*131072}
    s_lshl_b32 s{S_LD}, s{S_W}, 10
    s_lshl_b32 s{S_VB}, s{S_HD}, 17
    s_add_u32 s{S_VB}, s{S_VB}, s{S_LD}
    s_add_u32 s{S_VB}, s{S_VB}, {WS_QKV + 64*131072}
    s_waitcnt lgkmcnt(0)
    s_mov_b32 s{S_WS}, s20
    s_mov_b32 s{S_WS+1}, s21
    s_mov_b32 s{S_WS+2}, 0x10000000
    s_mov_b32 s{S_WS+3}, 0x20000
    ''')
    srd = f's[{S_WS}:{S_WS+3}]'
    def dma(slot):
        return [[f's_add_u32 m0, s{S_LD}, {slot*CH}', f'buffer_load_dwordx4 v{V_L16}, {srd}, s{S_KB} offen lds', f's_add_u32 s{S_KB}, s{S_KB}, 4096'],
                [f's_add_u32 m0, s{S_LD}, {slot*CH + 8192}', f'buffer_load_dwordx4 v{V_L16}, {srd}, s{S_VB} offen lds', f's_add_u32 s{S_VB}, s{S_VB}, 8192']]
    for l in dma(0)[0]: a(l)
    a(f'''
    s_lshl_b32 s{S_T}, s{S_HD}, 17
    s_lshl_b32 s{S_T+1}, s{S_TB}, 10
    s_add_u32 s{S_T}, s{S_T}, s{S_T+1}
    s_add_u32 s{S_T+1}, s{S_T}, 65536
    buffer_load_dwordx4 {r4(Q)}, v{V_L16}, {srd}, s{S_T} offen
    buffer_load_dwordx4 {r4(Q+4)}, v{V_L16}, {srd}, s{S_T+1} offen
    v_and_b32 v3, 31, v0
    v_lshlrev_b32 v3, 2, v3
    s_lshl_b32 s{S_T+2}, s{S_TB}, 7
    s_add_u32 s{S_T+2}, s{S_T+2}, {WS_G:#x}
    ''')
    for l in dma(0)[1]: a(l)
    a(f'''
    v_bfe_u32 v8, v0, 4, 1
    v_and_b32 v9, 6, v0
    v_mov_b32 v10, 0x3f803f80
    v_cmp_eq_u32 vcc, 0, v9
    v_cndmask_b32 v{ONES}, 0, v10, vcc
    v_cndmask_b32 v{ONES+1}, 0, v10, vcc
    v_cmp_eq_u32 vcc, 4, v9
    v_cndmask_b32 v{ONES+2}, 0, v10, vcc
    v_cndmask_b32 v{ONES+3}, 0, v10, vcc
    v_and_b32 v9, 1, v0
    v_mul_u32_u24 v9, 0xaaaa, v9
    v_add_u32 v{V_IDX}, 0x4444, v9
    v_lshl_or_b32 v{V_IDX}, v{V_IDX}, 16, v{V_IDX}
    ''')
    for r in range(4): a(f'v_mov_b32 v{L+r}, 0')
    for r in range(16): a(f'v_mov_b32 v{O+r}, 0')
    for r in range(8): a(f'v_mov_b32 v{P+r}, 0')
    for r in range(8): a(f'v_mov_b32 v{VF+r}, 0')

    def off(blk): return ((blk >> 2) % RING) * CH + (blk & 3) * 2048
    def kread(blk, kk): return 's_nop 0' if ('L' in exp and blk > 1 and blk % 2) else f'ds_read_b128 {r4(KF + 4*kk)}, v{V_L16} offset:{off(blk) + kk*1024}'
    def vread(blk, m): return 's_nop 0' if ('L' in exp and blk % 2) else f'ds_read_b128 {r4(VF + 4*m)}, v{V_L16} offset:{off(blk) + 8192 + m*1024}'
    def qk(blk, c):
        s = S[blk & 1]
        return [f'v_mfma_f32_32x32x16_bf16 {r16(s)}, {r4(KF)}, {r4(Q)}, {c}',
                f'v_mfma_f32_32x32x16_bf16 {r16(s)}, {r4(KF+4)}, {r4(Q+4)}, {r16(s)}']
    def rowmax(s, dst, tmp):
        a(f'v_max3_f32 v{dst}, v{s}, v{s+1}, v{s+2}')
        a(f'v_max3_f32 v{tmp}, v{s+3}, v{s+4}, v{s+5}')
        for j in range(6, 14, 4):
            a(f'v_max3_f32 v{dst}, v{dst}, v{s+j}, v{s+j+1}')
            a(f'v_max3_f32 v{tmp}, v{tmp}, v{s+j+2}, v{s+j+3}')
        a(f'v_max3_f32 v{dst}, v{dst}, v{s+14}, v{s+15}')
        a(f'v_max_f32 v{dst}, v{dst}, v{tmp}')
        a(f'v_mov_b32 v{tmp}, v{dst}')
        a(f'v_permlane32_swap_b32 v{dst}, v{tmp}')
        a(f'v_max_f32 v{dst}, v{dst}, v{tmp}')

    a('s_waitcnt vmcnt(0)\ns_barrier')
    a(kread(0, 0)); a(kread(0, 1))
    for it in dma(1):
        for l in it: a(l)
    a('s_waitcnt lgkmcnt(0)')
    for l in qk(0, '0'): a(l)
    a(kread(1, 0)); a(kread(1, 1))
    a(f'''
    buffer_load_dword v{V_G}, v3, {srd}, s{S_T+2} offen
    ''')
    for it in dma(2):
        for l in it: a(l)
    rowmax(S[0], 8, 9)
    for r in range(16): a(f'v_sub_f32 v{CM+r}, 0, v8')
    for r in range(16): a(f'v_sub_f32 v{S[0]+r}, v{S[0]+r}, v8')
    a(f's_mov_b32 s{S_CNT}, 4')
    a('s_waitcnt lgkmcnt(0)')
    if stamp: a('s_memtime s[88:89]\ns_waitcnt lgkmcnt(0)')

    summ = f'v_smfmac_f32_16x16x64_bf16 {r4(L)}, {r4(ONES)}, v[{P}:{P+7}], v{V_IDX}'
    def pv(vf, pp): return f'v_mfma_f32_32x32x16_bf16 {r16(O)}, {r4(vf)}, {r4(pp)}, {r16(O)}'
    def body(i, last_iter=False):
        s = S[i & 1]
        final = last_iter and i == 15
        nok = last_iter and i >= 14
        ex = lambda j: f'v_exp_f32 v{s+j}, v{s+j}'
        cv = lambda j: f'v_cvt_pk_bf16_f32 v{P+j}, v{s+2*j}, v{s+2*j+1}'
        q = qk(i + 1, r16(CM)) if not final else [None, None]
        sync = ((i + 2) & 3) == 0 and not nok
        prevk = 0 if (last_iter and i == 15) else 1
        d = [[], []]
        early = 'E' in exp
        if sync:
            c = (i + 2) >> 2
            nxt = not (last_iter and c >= 2)
            a(f's_waitcnt vmcnt({2 if not (last_iter and c == 3) else 0})' + ('' if early else f' lgkmcnt({1 + prevk})'))
            a('s_barrier')
            if nxt: d = dma((c + 2) % RING)
        elif not early:
            a(f's_waitcnt lgkmcnt({1 + prevk})')
        k0 = kread(i + 2, 0) if not nok else None
        k1 = kread(i + 2, 1) if not nok else None
        w2 = f's_waitcnt lgkmcnt({1 + (0 if nok else 1)})'
        E = [ex(j) for j in range(16)]; C = [cv(j) for j in range(8)]
        d00 = d[0][:1]; d01 = d[0][1:]; d10 = d[1][:1]; d11 = d[1][1:]
        if 'E' in exp:
            if 'F' in exp:
                seq = d00 + [q[0], k0] + d01 + E[0:4] + [pv(VF, P), vread(i, 0)] + E[4:8] + [summ, w2] + C[0:4] + d10 + [q[1], k1] + d11 + E[8:12] + [pv(VF + 4, P + 4), vread(i, 1), w2] + E[12:16] + C[4:8]
            else:
                seq = [q[0], k0, E[0], E[1]] + d00 + [E[2]] + d01 + [E[3], pv(VF, P), vread(i, 0)] + E[4:8] + [summ, w2] + C[0:4] + [q[1], k1, E[8], E[9]] + d10 + [E[10]] + d11 + [E[11], pv(VF + 4, P + 4), vread(i, 1), w2] + E[12:16] + C[4:8]
        elif 'A' in exp:
            seq = [q[0], k0, E[0], E[1]] + d00 + [E[2]] + d01 + [E[3], pv(VF, P), vread(i, 0)] + E[4:8] + [summ] + C[0:4] + [w2, q[1], k1, E[8], E[9]] + d10 + [E[10]] + d11 + [E[11], pv(VF + 4, P + 4), vread(i, 1)] + E[12:16] + C[4:8]
        elif 'B' in exp:
            seq = [q[0], E[0], k0, E[1]] + d00 + [E[2]] + d01 + [E[3], pv(VF, P), E[4], vread(i, 0), E[5], summ, E[6], C[0], E[7], C[1], w2, q[1], E[8], k1, C[2], E[9]] + d10 + [C[3], E[10]] + d11 + [E[11], pv(VF + 4, P + 4), E[12], vread(i, 1), C[4], E[13], C[5], E[14], E[15], C[6], C[7]]
        elif 'C' in exp:
            seq = [q[0], E[0], k0, E[1]] + d00 + [E[2]] + d01 + [E[3], summ, E[4], pv(VF, P), E[5], vread(i, 0), E[6], E[7], C[0], C[1], C[2], w2, q[1], C[3], E[8], k1, E[9]] + d10 + [E[10]] + d11 + [E[11], E[12], pv(VF + 4, P + 4), E[13], vread(i, 1), E[14], E[15]] + C[4:8]
        else:
            seq = [q[0], E[0], k0, E[1]] + d00 + [E[2]] + d01 + [E[3], pv(VF, P), E[4], vread(i, 0)] + E[5:8] + [summ] + C[0:4] + [w2, q[1], E[8], k1, E[9]] + d10 + [E[10]] + d11 + [E[11], pv(VF + 4, P + 4), E[12], vread(i, 1)] + E[13:16] + C[4:8]
        for l in seq:
            if not l: continue
            if 'X' in exp and l.startswith('v_mfma_f32_32x32x16'):
                import re as _re
                m_ = _re.match(r'v_mfma_f32_32x32x16_bf16 v\[(\d+):\d+\], (v\[\d+:\d+\]), (v\[\d+:\d+\]), v\[(\d+):', l)
                dd, aa, bb, cc = int(m_.group(1)), m_.group(2), m_.group(3), int(m_.group(4))
                hi = 8 if (aa in (r4(KF+4), r4(VF+4))) else 0
                if dd != O: cc = CM
                for u in range(2):
                    a(f'v_mfma_f32_16x16x32_bf16 {r4(dd+hi+4*u)}, {aa}, {bb}, {r4(cc+(hi+4*u))}')
            elif 'Y' in exp and l.startswith('v_exp'): a('v_mov_b32' + l[9:])
            elif 'Z' in exp and l.startswith('v_mfma_f32_32x32x16'): a('s_nop 0')
            else: a(l)
    m0 = a.mark()
    a.label(f'{name}_loop')
    for i in range(16): body(i)
    a(f's_sub_u32 s{S_CNT}, s{S_CNT}, 1\ns_cmp_lg_u32 s{S_CNT}, {0 if "N" in exp else 1}\ns_cbranch_scc1 {name}_loop')
    m1 = a.mark()
    for i in range(16):
        if 'N' not in exp: body(i, last_iter=True)
    a('s_waitcnt lgkmcnt(0)')
    a(summ)
    for h in range(2): a(pv(VF + 4*h, P + 4*h))
    a(f'v_add_f32 v{L}, v{L}, v{L+1}')
    if stamp: a('s_memtime s[94:95]')
    a(f'v_mov_b32 v8, 0x207\nv_mov_b32 v9, 0x5f800000\nv_cmp_nlt_f32 s[22:23], v{L}, v9')
    for r in range(16):
        a(f'v_cmp_class_f32 vcc, v{O+r}, v8')
        a('s_or_b64 s[22:23], s[22:23], vcc')
    if force_slow: a(f's_branch {name}_slow')
    a(f's_cmp_lg_u64 s[22:23], 0\ns_cbranch_scc1 {name}_slow')
    a.label(f'{name}_fin')
    a(f'''
    v_rcp_f32 v8, v{L}
    s_mul_i32 s{S_T}, s{S_TB}, {OH_TB}
    s_lshl_b32 s{S_T+1}, s{S_HD}, 11
    s_add_u32 s{S_T}, s{S_T}, s{S_T+1}
    s_add_u32 s{S_T}, s{S_T}, {WS_OH:#x}
    v_mul_f32 v8, v8, v{V_G}
    ''')
    for r in range(16): a(f'v_mul_f32 v{O+r}, v{O+r}, v8')
    for j in range(8): a(f'v_cvt_pk_bf16_f32 v{S[0]+j}, v{O+2*j}, v{O+2*j+1}')
    for pr in range(2):
        b = S[0] + 4*pr
        a(f'v_permlane32_swap_b32 v{b}, v{b+2}\nv_permlane32_swap_b32 v{b+1}, v{b+3}')
        a(f'buffer_store_dwordx4 {r4(b)}, v{V_L16}, {srd}, s{S_T} offen offset:{pr*1024} sc1')
    a(f'''
    s_lshr_b32 s{S_T}, s{S_TB}, 3
    s_lshl_b32 s{S_T}, s{S_T}, 12
    s_lshr_b32 s{S_T+1}, s{S_HD}, 4
    s_lshl_b32 s{S_T+1}, s{S_T+1}, 7
    s_add_u32 s{S_T}, s{S_T}, s{S_T+1}
    s_and_b32 s{S_T+1}, s{S_HD}, 15
    s_lshl_b32 s{S_T+1}, s{S_T+1}, 2
    s_add_u32 s{S_T}, s{S_T}, s{S_T+1}
    s_add_u32 s{S_T}, s{S_T}, {WS_FLAG:#x}
    v_lshlrev_b32 v8, 8, v0
    v_mov_b32 v9, 1
    s_waitcnt vmcnt(0)
    s_barrier
    s_cmp_lg_u32 s{S_W}, 0
    s_cbranch_scc1 {name}_sig
    s_mov_b64 exec, 0xffff
    buffer_store_dword v9, v8, {srd}, s{S_T} offen sc1
    s_mov_b64 exec, -1
    ''')
    a.label(f'{name}_sig')
    if stamp: stamp_out(a, srd, S_W, 0x8100000)
    a('s_endpgm')
    m2 = a.mark()
    a.label(f'{name}_slow')
    M, AL, T2 = 8, 9, 10
    a(f'''
    s_lshl_b32 s{S_KB}, s{S_HD}, 17
    s_add_u32 s{S_VB}, s{S_KB}, {WS_QKV + 64*131072}
    s_add_u32 s{S_KB}, s{S_KB}, {WS_QKV + 32*131072}
    v_mov_b32 v{M}, 0xff800000
    s_mov_b32 s{S_CNT}, 64
    ''')
    for r in range(4): a(f'v_mov_b32 v{L+r}, 0')
    for r in range(16): a(f'v_mov_b32 v{O+r}, 0')
    s0 = a.mark()
    a.label(f'{name}_sloop')
    a(f'''
    s_add_u32 s{S_T}, s{S_KB}, 65536
    buffer_load_dwordx4 {r4(KF)}, v{V_L16}, {srd}, s{S_KB} offen
    buffer_load_dwordx4 {r4(KF+4)}, v{V_L16}, {srd}, s{S_T} offen
    buffer_load_dwordx4 {r4(VF)}, v{V_L16}, {srd}, s{S_VB} offen
    buffer_load_dwordx4 {r4(VF+4)}, v{V_L16}, {srd}, s{S_VB} offen offset:1024
    s_add_u32 s{S_KB}, s{S_KB}, 1024
    s_add_u32 s{S_VB}, s{S_VB}, 2048
    s_waitcnt vmcnt(0)
    ''')
    for l in qk(0, '0'): a(l)
    rowmax(S[0], AL, T2)
    a(f'''
    v_max_f32 v{T2}, v{AL}, v{M}
    v_sub_f32 v{AL}, v{M}, v{T2}
    v_exp_f32 v{AL}, v{AL}
    v_mov_b32 v{M}, v{T2}
    ''')
    for r in range(16): a(f'v_sub_f32 v{S[0]+r}, v{S[0]+r}, v{M}')
    for r in range(16): a(f'v_exp_f32 v{S[0]+r}, v{S[0]+r}')
    for r in range(4): a(f'v_mul_f32 v{L+r}, v{L+r}, v{AL}')
    for r in range(16): a(f'v_mul_f32 v{O+r}, v{O+r}, v{AL}')
    for j in range(8): a(f'v_cvt_pk_bf16_f32 v{P+j}, v{S[0]+2*j}, v{S[0]+2*j+1}')
    a(summ)
    for m in range(2): a(pv(VF + 4*m, P + 4*m))
    a(f's_nop 15\ns_sub_u32 s{S_CNT}, s{S_CNT}, 1\ns_cmp_lg_u32 s{S_CNT}, 0\ns_cbranch_scc1 {name}_sloop')
    s1 = a.mark()
    a(f'v_add_f32 v{L}, v{L}, v{L+1}\ns_branch {name}_fin')
    tr = a.ins[:m1] + a.ins[m0:m1] + a.ins[m1:m2]
    return check_seq(tr, name) + check_seq(a.ins[m2:s1] + a.ins[s0:s1], name + '_slow')

def down(a, name, stamp, prio, exp=''):
    R, SB = 5, 16384
    V_L16, V_WOFF, V_AB, V_AB2, V_WB, V_WB2, V_ARD, V_ARD2, V_WRD, V_WRD2, V_FL, V_Z, V_G = 1, 2, 3, 4, 5, 6, 7, 8, 9, 10, 11, 12, 13
    ACC = 20
    FR = [52, 76]
    PT = 100
    S_A, S_WD, S_WS, S_OUT = 4, 8, 12, 48
    S_W, S_WR, S_WQ, S_RB, S_CB, S_KH, S_AK, S_WK, S_LA, S_LW, S_SLOT, S_CNT, S_RS, S_T = 16, 17, 18, 19, 20, 21, 22, 23, 24, 25, 26, 27, 28, 30
    S_TB0, S_FA, S_FP, S_AO = 36, 37, 38, 39
    st = a.mark()
    a(f'''
    s_load_dwordx2 s[40:41], s[0:1], 16
    s_load_dwordx2 s[42:43], s[0:1], 48
    s_load_dwordx2 s[44:45], s[0:1], 64
    s_load_dwordx2 s[46:47], s[0:1], 80
    v_lshrrev_b32 v17, 6, v0
    v_and_b32 v0, 63, v0
    v_readfirstlane_b32 s{S_W}, v17
    s_and_b32 s{S_T}, s2, 7
    s_lshr_b32 s{S_T+1}, s2, 3
    s_and_b32 s{S_T+1}, s{S_T+1}, 31
    s_and_b32 s{S_KH}, s{S_T}, 1
    s_lshr_b32 s{S_T}, s{S_T}, 1
    s_lshl_b32 s{S_RB}, s{S_T}, 2
    s_lshr_b32 s{S_T+2}, s{S_T+1}, 3
    s_add_u32 s{S_RB}, s{S_RB}, s{S_T+2}
    s_and_b32 s{S_CB}, s{S_T+1}, 7
    s_lshr_b32 s{S_WR}, s{S_W}, 2
    s_and_b32 s{S_WQ}, s{S_W}, 3
    v_lshlrev_b32 v{V_L16}, 4, v0
    ''')
    if prio: a(f's_setprio {prio}')
    if stamp: a('s_memtime s[90:91]\ns_memrealtime s[92:93]')
    a(f'''
    s_lshl_b32 s{S_T}, s{S_RB}, 2
    s_lshr_b32 s{S_T+1}, s{S_W}, 1
    s_add_u32 s{S_T}, s{S_T}, s{S_T+1}
    s_mul_i32 s{S_AO}, s{S_T}, {OH_TB}
    s_add_u32 s{S_AO}, s{S_AO}, {WS_OH:#x}
    s_and_b32 s{S_T}, s{S_W}, 1
    s_lshl_b32 s{S_T}, s{S_T}, 10
    s_add_u32 s{S_AO}, s{S_AO}, s{S_T}
    s_mul_i32 s{S_T}, s{S_KH}, {1792*64}
    s_add_u32 s{S_AK}, s{S_AO}, s{S_T}
    s_add_u32 s{S_AK}, s{S_AK}, {1024*64}
    s_mul_i32 s{S_WK}, s{S_KH}, {1792*2048}
    s_lshl_b32 s{S_LA}, s{S_W}, 10
    s_add_u32 s{S_LW}, s{S_LA}, 8192
    v_lshrrev_b32 v17, 2, v0
    s_lshl_b32 s{S_T}, s{S_WR}, 4
    v_add_u32 v17, s{S_T}, v17
    v_lshlrev_b32 v17, 11, v17
    v_lshrrev_b32 v18, 5, v0
    v_lshlrev_b32 v18, 1, v18
    v_and_b32 v19, 3, v0
    v_xor_b32 v18, v18, v19
    v_lshlrev_b32 v18, 4, v18
    s_lshl_b32 s{S_T}, s{S_CB}, 8
    s_lshl_b32 s{S_T+1}, s{S_WQ}, 6
    s_add_u32 s{S_T}, s{S_T}, s{S_T+1}
    v_add3_u32 v{V_WOFF}, v17, v18, s{S_T}
    s_mov_b32 s{S_SLOT}, 0
    s_waitcnt lgkmcnt(0)
    s_mov_b32 s{S_A}, s46
    s_mov_b32 s{S_A+1}, s47
    s_mov_b32 s{S_A+2}, 0x10000000
    s_mov_b32 s{S_A+3}, 0x20000
    s_mov_b32 s{S_WD}, s42
    s_mov_b32 s{S_WD+1}, s43
    s_mov_b32 s{S_WD+2}, {3584*2048}
    s_mov_b32 s{S_WD+3}, 0x20000
    ''')
    sa = f's[{S_A}:{S_A+3}]'; wd = f's[{S_WD}:{S_WD+3}]'; ws = f's[{S_WS}:{S_WS+3}]'
    WOFS = R * 8192
    def dma(slot):
        return [[f's_add_u32 m0, s{S_LA}, {slot*8192}', f'buffer_load_dwordx4 v{V_L16}, {sa}, s{S_AK} offen sc1 lds', f's_add_u32 s{S_AK}, s{S_AK}, 2048'],
                [f's_add_u32 m0, s{S_LA}, {WOFS + slot*8192}', f'buffer_load_dwordx4 v{V_WOFF}, {wd}, s{S_WK} offen lds', f's_add_u32 s{S_WK}, s{S_WK}, {32*2048}']]
    for s_ in range(2):
        for it in dma(s_):
            for l in it: a(l)
    a(f'''
    s_mov_b32 s{S_WS}, s46
    s_mov_b32 s{S_WS+1}, s47
    s_mov_b32 s{S_WS+2}, 0x10000000
    s_mov_b32 s{S_WS+3}, 0x20000
    s_mov_b32 s{S_OUT}, s44
    s_mov_b32 s{S_OUT+1}, s45
    s_mov_b32 s{S_OUT+2}, {2048*2048}
    s_mov_b32 s{S_OUT+3}, 0x20000
    v_and_b32 v17, 15, v0
    v_lshrrev_b32 v18, 4, v0
    v_lshlrev_b32 v19, 9, v18
    v_lshl_add_u32 v19, v17, 4, v19
    s_lshl_b32 s{S_T}, s{S_WR}, 12
    s_lshl_b32 s{S_T+1}, s{S_KH}, 11
    s_add_u32 s{S_T}, s{S_T}, s{S_T+1}
    v_add_u32 v{V_AB}, s{S_T}, v19
    v_xor_b32 v{V_AB2}, 2048, v{V_AB}
    v_lshrrev_b32 v19, 5, v0
    v_lshlrev_b32 v19, 12, v19
    v_and_b32 v18, 1, v18
    v_lshl_add_u32 v19, v18, 9, v19
    v_lshl_add_u32 v19, v18, 5, v19
    v_lshrrev_b32 v18, 2, v17
    v_lshl_add_u32 v19, v18, 6, v19
    v_and_b32 v18, 3, v17
    v_lshl_add_u32 v19, v18, 3, v19
    s_lshl_b32 s{S_T}, s{S_WQ}, 10
    s_add_u32 s{S_T}, s{S_T}, {WOFS}
    v_add_u32 v{V_WB}, s{S_T}, v19
    v_xor_b32 v{V_WB2}, 32, v{V_WB}
    s_mov_b32 s{S_CNT}, 7
    v_lshlrev_b32 v{V_Z}, 2, v17
    s_lshl_b32 s{S_FA}, s{S_RB}, 3
    s_add_u32 s{S_FA}, s{S_FA}, s{S_CB}
    s_lshl_b32 s{S_FA}, s{S_FA}, 1
    s_add_u32 s{S_FA}, s{S_FA}, s{S_KH}
    s_lshl_b32 s{S_FA}, s{S_FA}, 7
    s_add_u32 s{S_FA}, s{S_FA}, {WS_FLAG:#x}
    s_lshl_b32 s{S_FP}, s2, 3
    s_add_u32 s{S_FP}, s{S_FP}, s{S_W}
    s_lshl_b32 s{S_FP}, s{S_FP}, 6
    s_add_u32 s{S_FP}, s{S_FP}, {WS_FLAG:#x}
    s_lshl_b32 s{S_TB0}, s{S_RB}, 2
    s_lshl_b32 s{S_T}, s{S_WR}, 1
    s_add_u32 s{S_TB0}, s{S_TB0}, s{S_T}
    s_add_u32 s{S_TB0}, s{S_TB0}, s{S_KH}
    s_lshl_b32 s{S_T+4}, s{S_TB0}, 7
    s_add_u32 s{S_T+4}, s{S_T+4}, {WS_G:#x}
    s_xor_b32 s{S_T+5}, s{S_T+4}, 128
    v_lshlrev_b32 v17, 2, v17
    ''')
    for r in range(ACC, ACC + 32): a(f'v_mov_b32 v{r}, 0')
    def reads(st_, slot):
        f = FR[st_]
        W = [f'ds_read_b64_tr_b16 v[{f+16+4*p+2*h}:{f+16+4*p+2*h+1}], v{(V_WB, V_WB2)[p]} offset:{slot*8192 + h*256}' for p in range(2) for h in range(2)]
        A = [f'ds_read_b128 {r4(f+4*t)}, v{(V_AB, V_AB2)[t>>1]} offset:{slot*8192 + (t&1)*256}' for t in range(4)]
        return W[:2] + A + W[2:]
    def mfmas(st_):
        f = FR[st_]
        return [f'v_mfma_f32_16x16x32_bf16 {r4(ACC+8*t+4*p)}, {r4(f+16+4*p)}, {r4(f+4*t)}, {r4(ACC+8*t+4*p)}' for p in range(2) for t in range(4)]
    def stage(j, vm, slots, extra=()):
        a(f's_waitcnt vmcnt({vm}) lgkmcnt(0)\ns_barrier')
        rd = reads(1 - (j & 1), (j + 1) % R); mm = mfmas(j & 1)
        dm = []
        for sl in slots: dm += dma(sl)
        dm += [[None, l] for l in extra]
        n = (len(dm) + 1) // 2
        d0, r0 = (0, 2) if 'o' in exp else (4, 0)
        if 'O' in exp:
            for l in rd: a(l)
            d0, r0 = 1, 99
        for i in range(8):
            its = dm[(i-d0)*n:(i-d0+1)*n] if d0 <= i < d0 + 2 else []
            if its and its[0][0]: a(its[0][0])
            a(mm[i])
            for k, it in enumerate(its):
                for l in (it[1:] if k == 0 else [x for x in it if x]): a(l)
            if r0 <= i < r0 + 4: a(rd[2*(i-r0)]); a(rd[2*(i-r0)+1])
    a(f's_waitcnt vmcnt(2)\ns_barrier')
    for l in reads(0, 0): a(l)
    for it in dma(2):
        for l in it: a(l)
    if stamp: a('s_memtime s[88:89]')
    stage(0, 2, [3, 4])
    stage(1, 4, [0, 1], [f'buffer_load_dword v{V_G+t}, v17, {ws}, s{S_T+4+(t>>1)} offen offset:{(t&1)*64}' for t in range(4)])
    m0 = a.mark()
    a.label(f'{name}_loop')
    for k in range(10):
        j = 2 + k
        if k == 9:
            a(f's_cmp_eq_u32 s{S_CNT}, 3\ns_cbranch_scc1 {name}_sw')
            a.label(f'{name}_b1')
        stage(j, 2*(R-2), [j % R])
        if k == 3:
            if 'S' in exp: a(f's_cmp_eq_u32 s{S_CNT}, 3\ns_cbranch_scc1 {name}_fl')
            a(f'''
            s_cmp_eq_u32 s{S_CNT}, 2
            s_cbranch_scc1 {name}_sc
            ''')
            a.label(f'{name}_b2')
    a(f's_sub_u32 s{S_CNT}, s{S_CNT}, 1\ns_cmp_lg_u32 s{S_CNT}, 0\ns_cbranch_scc1 {name}_loop')
    m1 = a.mark()
    if stamp: a('s_memtime s[82:83]')
    a(f'''
    s_sub_u32 s52, s2, 256
    s_lshl_b32 s52, s52, 3
    s_add_u32 s52, s52, s{S_W}
    s_lshl_b32 s52, s52, 11
    s_add_u32 s52, s52, {WS_PART:#x}
    s_xor_b32 s53, s52, {8*2048}
    ''')
    for j in range(8): a(f'v_cvt_pk_bf16_f32 v{PT+j}, v{ACC+16+2*j}, v{ACC+16+2*j+1}')
    for j in range(8): a(f'v_max_u32 v{PT+j}, 1, v{PT+j}')
    for h in range(2): a(f'buffer_store_dwordx4 {r4(PT+4*h)}, v{V_L16}, {ws}, s52 offen offset:{h*1024} sc1')
    a(f'''
    v_and_b32 v18, 15, v0
    v_lshrrev_b32 v19, 4, v0
    v_lshlrev_b32 v18, 11, v18
    v_and_b32 v{V_ARD}, 1, v19
    v_lshl_add_u32 v18, v{V_ARD}, 5, v18
    v_lshrrev_b32 v19, 1, v19
    v_lshl_add_u32 v18, v19, 4, v18
    s_lshl_b32 s55, s{S_TB0}, 16
    s_lshl_b32 s{S_T}, s{S_CB}, 8
    s_add_u32 s55, s55, s{S_T}
    s_lshl_b32 s{S_T}, s{S_WQ}, 6
    s_add_u32 s55, s55, s{S_T}
    s_add_u32 s56, s55, {16*2048}
    s_mov_b32 s57, 0xffff0000
    s_waitcnt lgkmcnt(0)
    ''')
    a.label(f'{name}_poll')
    a(f'''
    buffer_load_dwordx4 {r4(PT+8)}, v{V_L16}, {ws}, s53 offen sc1
    buffer_load_dwordx4 {r4(PT+12)}, v{V_L16}, {ws}, s53 offen offset:1024 sc1
    s_waitcnt vmcnt(0)
    v_min3_u32 v17, v{PT+8}, v{PT+9}, v{PT+10}
    v_min3_u32 v19, v{PT+11}, v{PT+12}, v{PT+13}
    v_min3_u32 v17, v17, v{PT+14}, v{PT+15}
    v_min_u32 v17, v17, v19
    v_cmp_eq_u32 vcc, 0, v17
    s_cmp_lg_u64 vcc, 0
    s_cbranch_scc1 {name}_poll
    ''')
    for t in range(2):
        for j in range(4):
            a(f'v_lshlrev_b32 v{FR[0]+2*j}, 16, v{PT+8+4*t+j}\nv_and_b32 v{FR[0]+2*j+1}, s57, v{PT+8+4*t+j}')
        for r in range(8): a(f'v_add_f32 v{ACC+8*t+r}, v{ACC+8*t+r}, v{FR[0]+r}')
        o = FR[1] + 4*t
        for j in range(4): a(f'v_cvt_pk_bf16_f32 v{o+j}, v{ACC+8*t+2*j}, v{ACC+8*t+2*j+1}')
        a(f'v_permlane16_swap_b32 v{o}, v{o+2}\nv_permlane16_swap_b32 v{o+1}, v{o+3}')
        a(f'buffer_store_dwordx4 {r4(o)}, v18, s[{S_OUT}:{S_OUT+3}], s{55+t} offen')
    if stamp: stamp_out(a, ws, S_W, 0x8300000, 256)
    a('s_endpgm')
    e0 = a.mark()
    if 'S' in exp:
        a.label(f'{name}_fl')
        a(f'buffer_load_dword v{V_FL}, v{V_Z}, {ws}, s{S_FA} offen sc1\ns_branch {name}_b2')
        e1 = a.mark()
        a.label(f'{name}_sw')
        if stamp: a('s_memtime s[94:95]')
        a(f'''
        s_lshl_b32 s{S_T}, s{S_KH}, 15
        s_add_u32 s{S_AK}, s{S_AO}, s{S_T}
        s_and_b32 s{S_T}, s{S_AK}, 0xfffff800
        s_add_u32 s{S_A+2}, s{S_T}, {512*64}
        s_mov_b32 s{S_WD}, s40
        s_mov_b32 s{S_WD+1}, s41
        s_lshl_b32 s{S_WK}, s{S_KH}, 20
        s_add_u32 s{S_WD+2}, s{S_WK}, {512*2048}
        s_cmp_lg_u32 s{S_W}, 0
        s_cbranch_scc1 {name}_b1
        ''')
        a.label(f'{name}_sw2')
        a(f'''
        v_cmp_eq_u32 vcc, 0, v{V_FL}
        s_cmp_eq_u64 vcc, 0
        s_cbranch_scc1 {name}_b1
        s_sleep {os.environ.get("SL", "2")}
        buffer_load_dword v{V_FL}, v{V_Z}, {ws}, s{S_FA} offen sc1
        s_waitcnt vmcnt(0)
        s_branch {name}_sw2
        ''')
        e2 = a.mark()
        a.label(f'{name}_sc')
        if stamp: a('s_memtime s[84:85]')
        a('s_nop 4')
        for t in range(4): a(f'v_sub_f32 v{V_G+t}, 1.0, v{V_G+t}')
        for t in range(4):
            for r in range(8): a(f'v_mul_f32 v{ACC+8*t+r}, v{ACC+8*t+r}, v{V_G+t}')
        a(f's_branch {name}_b2')
        e3 = a.mark()
        body = a.ins[m0:m1]
        ib1 = [i for i, x in enumerate(body) if x.text == f'{name}_b1:'][0]
        ib2 = [i for i, x in enumerate(body) if x.text == f'{name}_b2:'][0]
        tr = a.ins[st:m1] + body[:ib2] + a.ins[e0:e1] + body[ib2:ib1] + a.ins[e1:e2-4] + body[ib1:] + body[:ib2] + a.ins[e2:e3] + body[ib2:] + body + a.ins[m1:e0]
        return list(dict.fromkeys(check_seq(tr, name)))
    e1 = a.mark()
    a.label(f'{name}_sw')
    a(f'''
    s_mov_b32 s{S_A+2}, 0
    s_mov_b32 s{S_WD}, s40
    s_mov_b32 s{S_WD+1}, s41
    s_lshl_b32 s{S_WK}, s{S_KH}, 20
    s_add_u32 s{S_WD+2}, s{S_WK}, {512*2048}
    s_branch {name}_b1
    ''')
    e2 = a.mark()
    a.label(f'{name}_sc')
    if stamp: a('s_memtime s[94:95]')
    a(f'buffer_load_dword v{V_FL}, v{V_Z}, {ws}, s{S_FA} offen sc1')
    for t in range(4): a(f'v_sub_f32 v{V_G+t}, 1.0, v{V_G+t}')
    a(f'''
    s_lshl_b32 s{S_T}, s{S_KH}, 15
    s_add_u32 s{S_AK}, s{S_AO}, s{S_T}
    s_and_b32 s{S_T}, s{S_AK}, 0xfffff800
    s_add_u32 s{S_A+2}, s{S_T}, {512*64}
    s_mov_b32 s{S_T+1}, 0x7fff0000
    ''')
    for t in range(4):
        for r in range(8): a(f'v_mul_f32 v{ACC+8*t+r}, v{ACC+8*t+r}, v{V_G+t}')
    a(f's_waitcnt vmcnt(0) lgkmcnt(0)\ns_cmp_lg_u32 s{S_W}, 0\ns_cbranch_scc1 {name}_go')
    a.label(f'{name}_sw2')
    a(f'''
    v_readfirstlane_b32 s{S_T}, v{V_FL}
    s_cmp_ge_u32 s{S_T}, 32
    s_cbranch_scc1 {name}_go
    s_sleep 3
    buffer_load_dword v{V_FL}, v{V_Z}, {ws}, s{S_FA} offen sc1
    s_waitcnt vmcnt(0)
    s_branch {name}_sw2
    ''')
    a.label(f'{name}_go')
    a('s_barrier')
    if stamp: a('s_memtime s[84:85]')
    for j in range(56, 61):
        for l in dma(j % R)[0]: a(l)
        a(f'buffer_load_dword v{V_FL}, v{V_Z}, {sa}, s{S_T+1} offen')
    a('s_waitcnt vmcnt(9)\ns_barrier')
    for l in reads(0, 56 % R)[2:6]: a(l)
    a(f's_branch {name}_b2')
    e3 = a.mark()
    body = a.ins[m0:m1]
    ib1 = [i for i, x in enumerate(body) if x.text == f'{name}_b1:'][0]
    ib2 = [i for i, x in enumerate(body) if x.text == f'{name}_b2:'][0]
    tr = a.ins[st:m1] + body[:ib1] + a.ins[e1:e2] + body[ib1:] + body[:ib2] + a.ins[e2:e3] + body[ib2:] + body + a.ins[m1:e0]
    return [e for e in dict.fromkeys(check_seq(tr, name)) if f'buffer_load_dword v{V_FL}, v{V_Z}, {sa}' not in e]
    return list(dict.fromkeys(check_seq(tr, name)))

def down4(a, name, stamp, prio, exp=''):
    R = 5
    WOFS = R * 8192
    V_L16, V_WOFF, V_AB, V_WB, V_FL, V_Z, V_G = 1, 2, 3, 5, 7, 8, 9
    ACC, AF, WF = 16, [80, 96], 112
    S_A, S_WD, S_WS, S_OUT = 4, 8, 12, 48
    S_W, S_WR, S_WC, S_RB, S_CB, S_KH, S_AK, S_WK, S_LA, S_CNT, S_T = 16, 17, 18, 19, 20, 21, 22, 23, 24, 27, 30
    S_TB0, S_FA, S_AO = 36, 37, 39
    st = a.mark()
    a(f'''
    s_load_dwordx2 s[40:41], s[0:1], 16
    s_load_dwordx2 s[42:43], s[0:1], 48
    s_load_dwordx2 s[44:45], s[0:1], 64
    s_load_dwordx2 s[46:47], s[0:1], 80
    v_lshrrev_b32 v17, 6, v0
    v_and_b32 v0, 63, v0
    v_readfirstlane_b32 s{S_W}, v17
    s_and_b32 s{S_T}, s2, 7
    s_lshr_b32 s{S_T+1}, s2, 3
    s_and_b32 s{S_T+1}, s{S_T+1}, 31
    s_and_b32 s{S_KH}, s{S_T}, 1
    s_lshr_b32 s{S_T}, s{S_T}, 1
    s_lshl_b32 s{S_RB}, s{S_T}, 2
    s_lshr_b32 s{S_T+2}, s{S_T+1}, 3
    s_add_u32 s{S_RB}, s{S_RB}, s{S_T+2}
    s_and_b32 s{S_CB}, s{S_T+1}, 7
    s_bfe_u32 s{S_WR}, s{S_W}, 0x10001
    s_and_b32 s{S_WC}, s{S_W}, 1
    v_lshlrev_b32 v{V_L16}, 4, v0
    v_mov_b32 v{V_Z}, 0
    s_mov_b32 s{S_CNT}, 7
    ''')
    if stamp: a('s_memtime s[90:91]\ns_memrealtime s[92:93]\ns_memtime s[94:95]\ns_memtime s[84:85]\ns_memtime s[82:83]\ns_memtime s[88:89]')
    a(f'''
    s_waitcnt lgkmcnt(0)
    s_mov_b32 s{S_WS}, s46
    s_mov_b32 s{S_WS+1}, s47
    s_mov_b32 s{S_WS+2}, 0x10000000
    s_mov_b32 s{S_WS+3}, 0x20000
    s_cmp_lt_u32 s{S_W}, 4
    s_cbranch_scc1 {name}_cmp
    ''')
    sa = f's[{S_A}:{S_A+3}]'; wd = f's[{S_WD}:{S_WD+3}]'; ws = f's[{S_WS}:{S_WS+3}]'
    l0 = a.mark()
    a(f'''
    s_and_b32 s{S_T+1}, s{S_W}, 3
    s_lshl_b32 s{S_T}, s{S_RB}, 2
    s_add_u32 s{S_T}, s{S_T}, s{S_T+1}
    s_mul_i32 s{S_AO}, s{S_T}, {OH_TB}
    s_add_u32 s{S_AO}, s{S_AO}, {WS_OH:#x}
    s_mul_i32 s{S_T}, s{S_KH}, {1792*64}
    s_add_u32 s{S_AK}, s{S_AO}, s{S_T}
    s_add_u32 s{S_AK}, s{S_AK}, {1024*64}
    s_mul_i32 s{S_WK}, s{S_KH}, {1792*2048}
    s_lshl_b32 s{S_LA}, s{S_T+1}, 11
    v_lshrrev_b32 v17, 2, v0
    s_lshl_b32 s{S_T}, s{S_WR}, 4
    v_add_u32 v17, s{S_T}, v17
    v_lshlrev_b32 v17, 11, v17
    v_lshrrev_b32 v18, 5, v0
    v_lshlrev_b32 v18, 1, v18
    v_and_b32 v19, 3, v0
    v_xor_b32 v18, v18, v19
    v_lshlrev_b32 v18, 4, v18
    s_lshl_b32 s{S_T}, s{S_CB}, 8
    s_lshl_b32 s{S_T+1}, s{S_WC}, 7
    s_add_u32 s{S_T}, s{S_T}, s{S_T+1}
    v_add3_u32 v{V_WOFF}, v17, v18, s{S_T}
    s_mov_b32 s{S_A}, s46
    s_mov_b32 s{S_A+1}, s47
    s_mov_b32 s{S_A+2}, 0x10000000
    s_mov_b32 s{S_A+3}, 0x20000
    s_mov_b32 s{S_WD}, s42
    s_mov_b32 s{S_WD+1}, s43
    s_mov_b32 s{S_WD+2}, {3584*2048}
    s_mov_b32 s{S_WD+3}, 0x20000
    s_lshr_b32 s{S_FA}, s{S_RB}, 1
    s_lshl_b32 s{S_FA}, s{S_FA}, 7
    s_add_u32 s{S_FA}, s{S_FA}, {WS_FLAG:#x}
    ''')
    def dma(slot):
        a(f'''
        s_add_u32 m0, s{S_LA}, {slot*8192}
        s_nop 0
        buffer_load_dwordx4 v{V_L16}, {sa}, s{S_AK} offen sc1 lds
        buffer_load_dwordx4 v{V_L16}, {sa}, s{S_AK} offen offset:1024 sc1 lds
        s_add_u32 m0, s{S_LA}, {WOFS + slot*8192}
        s_add_u32 s{S_AK}, s{S_AK}, 2048
        buffer_load_dwordx4 v{V_WOFF}, {wd}, s{S_WK} offen lds
        s_add_u32 m0, s{S_LA}, {WOFS + slot*8192 + 1024 - 64}
        s_nop 0
        buffer_load_dwordx4 v{V_WOFF}, {wd}, s{S_WK} offen offset:64 lds
        s_add_u32 s{S_WK}, s{S_WK}, {32*2048}
        ''')
    dma(0); dma(1)
    a('s_waitcnt vmcnt(4)\ns_barrier')
    dma(2); dma(3); dma(4)
    for j in range(2):
        a('s_waitcnt vmcnt(12)\ns_barrier'); dma(j)
    lm0 = a.mark()
    a.label(f'{name}_lloop')
    for k in range(10):
        if k == 9:
            a(f's_cmp_eq_u32 s{S_CNT}, 3\ns_cbranch_scc1 {name}_sw')
            a.label(f'{name}_b1')
        a('s_waitcnt vmcnt(12)\ns_barrier'); dma((2 + k) % R)
    a(f's_sub_u32 s{S_CNT}, s{S_CNT}, 1\ns_cmp_lg_u32 s{S_CNT}, 0\ns_cbranch_scc1 {name}_lloop')
    lm1 = a.mark()
    a('s_waitcnt vmcnt(0)')
    if stamp: stamp_out(a, ws, S_W, 0x8300000, 256)
    a('s_endpgm')
    a.label(f'{name}_sw')
    a(f'''
    s_lshl_b32 s{S_T}, s{S_KH}, 15
    s_add_u32 s{S_AK}, s{S_AO}, s{S_T}
    s_add_u32 s{S_A+2}, s{S_AK}, {512*64}
    s_mov_b32 s{S_WD}, s40
    s_mov_b32 s{S_WD+1}, s41
    s_lshl_b32 s{S_WK}, s{S_KH}, 20
    s_add_u32 s{S_WD+2}, s{S_WK}, {512*2048}
    s_cmp_lg_u32 s{S_W}, 4
    s_cbranch_scc1 {name}_b1
    ''')
    a.label(f'{name}_sw2')
    a(f'''
    buffer_load_dword v{V_FL}, v{V_Z}, {ws}, s{S_FA} offen sc1
    s_waitcnt vmcnt(0)
    v_readfirstlane_b32 s{S_T}, v{V_FL}
    s_cmp_ge_u32 s{S_T}, 32
    s_cbranch_scc1 {name}_b1
    s_sleep 3
    s_branch {name}_sw2
    ''')
    l1 = a.mark()
    a.label(f'{name}_cmp')
    a(f'''
    s_mov_b32 s{S_OUT}, s44
    s_mov_b32 s{S_OUT+1}, s45
    s_mov_b32 s{S_OUT+2}, {2048*2048}
    s_mov_b32 s{S_OUT+3}, 0x20000
    v_and_b32 v13, 15, v0
    v_lshrrev_b32 v14, 4, v0
    v_lshlrev_b32 v15, 9, v14
    v_lshl_add_u32 v15, v13, 4, v15
    s_lshl_b32 s{S_T}, s{S_WR}, 12
    s_lshl_b32 s{S_T+1}, s{S_KH}, 11
    s_add_u32 s{S_T}, s{S_T}, s{S_T+1}
    v_add_u32 v{V_AB}, s{S_T}, v15
    v_xor_b32 v{V_AB+1}, 2048, v{V_AB}
    v_lshrrev_b32 v15, 5, v0
    v_lshlrev_b32 v15, 12, v15
    v_and_b32 v14, 1, v14
    v_lshl_add_u32 v15, v14, 9, v15
    v_lshl_add_u32 v15, v14, 5, v15
    v_lshrrev_b32 v14, 2, v13
    v_lshl_add_u32 v15, v14, 6, v15
    v_and_b32 v14, 3, v13
    v_lshl_add_u32 v15, v14, 3, v15
    s_lshl_b32 s{S_T}, s{S_WC}, 11
    s_add_u32 s{S_T}, s{S_T}, {WOFS}
    v_add_u32 v{V_WB}, s{S_T}, v15
    v_xor_b32 v{V_WB+1}, 32, v{V_WB}
    s_lshl_b32 s{S_TB0}, s{S_RB}, 2
    s_lshl_b32 s{S_T}, s{S_WR}, 1
    s_add_u32 s{S_TB0}, s{S_TB0}, s{S_T}
    s_add_u32 s{S_TB0}, s{S_TB0}, s{S_KH}
    s_lshl_b32 s{S_T+4}, s{S_TB0}, 7
    s_add_u32 s{S_T+4}, s{S_T+4}, {WS_G:#x}
    s_xor_b32 s{S_T+5}, s{S_T+4}, 128
    v_lshlrev_b32 v13, 2, v13
    ''')
    for t in range(4): a(f'buffer_load_dword v{V_G+t}, v13, {ws}, s{S_T+4+(t>>1)} offen offset:{(t&1)*64}')
    for r in range(ACC, ACC + 64): a(f'v_mov_b32 v{r}, 0')
    def rdA(slot, st_): return [f'ds_read_b128 {r4(AF[st_]+4*t)}, v{V_AB+(t>>1)} offset:{slot*8192 + (t&1)*256}' for t in range(4)]
    def rdW(slot, q): return [f'ds_read_b64_tr_b16 v[{WF+8*q+4*p+2*h}:{WF+8*q+4*p+2*h+1}], v{V_WB+p} offset:{slot*8192 + q*1024 + h*256}' for p in range(2) for h in range(2)]
    def mm(st_, q):
        return [f'v_mfma_f32_16x16x32_bf16 {r4(ACC+16*t+4*(2*q+p))}, {r4(WF+8*q+4*p)}, {r4(AF[st_]+4*t)}, {r4(ACC+16*t+4*(2*q+p))}' for p in range(2) for t in range(4)]
    def stage(j):
        slot, st_ = j % R, j & 1
        a('s_waitcnt lgkmcnt(0)')
        M = mm(st_, 0); rd = rdW(slot, 1)
        for i in range(8):
            a(M[i])
            if i < 4: a(rd[i])
        a('s_waitcnt lgkmcnt(0)\ns_barrier')
        M = mm(st_, 1); w = rdW((slot + 1) % R, 0); rd = w[:2] + rdA((slot + 1) % R, 1 - st_) + w[2:]
        if 'u' in exp:
            for i in range(8): a(M[i]); a(rd[i])
        else:
            for i in range(8):
                a(M[i])
                if i < 4: a(rd[2*i]); a(rd[2*i+1])
    a('s_barrier')
    for l in rdW(0, 0) + rdA(0, 0): a(l)
    if stamp: a('s_memtime s[88:89]')
    stage(0); stage(1)
    m0 = a.mark()
    a.label(f'{name}_loop')
    for k in range(10):
        if k == 9 and stamp:
            a(f's_cmp_lg_u32 s{S_CNT}, 3\ns_cbranch_scc1 {name}_ns\ns_memtime s[94:95]')
            a.label(f'{name}_ns')
        stage(2 + k)
        if k == 3:
            a(f's_cmp_eq_u32 s{S_CNT}, 2\ns_cbranch_scc1 {name}_sc')
            a.label(f'{name}_b2')
    a(f's_sub_u32 s{S_CNT}, s{S_CNT}, 1\ns_cmp_lg_u32 s{S_CNT}, 0\ns_cbranch_scc1 {name}_loop')
    m1 = a.mark()
    if stamp: a('s_memtime s[82:83]')
    PT = AF[0]; RX = ACC + 32
    a(f'''
    s_sub_u32 s52, s2, 256
    s_lshl_b32 s52, s52, 2
    s_add_u32 s52, s52, s{S_W}
    s_lshl_b32 s52, s52, 12
    s_add_u32 s52, s52, {WS_PART:#x}
    s_xor_b32 s53, s52, {4*4096}
    s_waitcnt lgkmcnt(0)
    ''')
    for h in range(4):
        for j in range(4*h, 4*h + 4): a(f'v_cvt_pk_bf16_f32 v{PT+j}, v{ACC+32+2*j}, v{ACC+32+2*j+1}')
        for j in range(4*h, 4*h + 4): a(f'v_max_u32 v{PT+j}, 1, v{PT+j}')
        a(f'buffer_store_dwordx4 {r4(PT+4*h)}, v{V_L16}, {ws}, s52 offen offset:{h*1024} sc1')
    a(f'''
    v_and_b32 v3, 15, v0
    v_lshrrev_b32 v4, 4, v0
    v_lshlrev_b32 v3, 11, v3
    v_and_b32 v5, 1, v4
    v_lshl_add_u32 v3, v5, 5, v3
    v_lshrrev_b32 v4, 1, v4
    v_lshl_add_u32 v3, v4, 4, v3
    s_lshl_b32 s55, s{S_TB0}, 16
    s_lshl_b32 s{S_T}, s{S_CB}, 8
    s_add_u32 s55, s55, s{S_T}
    s_lshl_b32 s{S_T}, s{S_WC}, 7
    s_add_u32 s55, s55, s{S_T}
    s_add_u32 s56, s55, {16*2048}
    s_mov_b32 s57, 0xffff0000
    ''')
    a.label(f'{name}_poll')
    for h in range(4): a(f'buffer_load_dwordx4 {r4(RX+4*h)}, v{V_L16}, {ws}, s53 offen offset:{h*1024} sc1')
    a(f's_waitcnt vmcnt(0)\nv_min3_u32 v4, v{RX}, v{RX+1}, v{RX+2}\nv_min3_u32 v5, v{RX+3}, v{RX+4}, v{RX+5}')
    for j in range(6, 14, 4):
        a(f'v_min3_u32 v4, v4, v{RX+j}, v{RX+j+1}\nv_min3_u32 v5, v5, v{RX+j+2}, v{RX+j+3}')
    a(f'''
    v_min3_u32 v4, v4, v{RX+14}, v{RX+15}
    v_min_u32 v4, v4, v5
    v_cmp_eq_u32 vcc, 0, v4
    s_cmp_lg_u64 vcc, 0
    s_cbranch_scc1 {name}_poll
    ''')
    T = ACC + 48
    for t in range(2):
        for q in range(2):
            b = ACC + 16*t + 8*q
            for j in range(4):
                a(f'v_lshlrev_b32 v{T+2*j}, 16, v{RX+8*t+4*q+j}\nv_and_b32 v{T+2*j+1}, s57, v{RX+8*t+4*q+j}')
            for r in range(8): a(f'v_add_f32 v{b+r}, v{b+r}, v{T+r}')
            o = WF + 8*t + 4*q
            for j in range(4): a(f'v_cvt_pk_bf16_f32 v{o+j}, v{b+2*j}, v{b+2*j+1}')
            a(f'v_permlane16_swap_b32 v{o}, v{o+2}\nv_permlane16_swap_b32 v{o+1}, v{o+3}')
            a(f'buffer_store_dwordx4 {r4(o)}, v3, s[{S_OUT}:{S_OUT+3}], s{55+t} offen offset:{q*64}')
    if stamp: stamp_out(a, ws, S_W, 0x8300000, 256)
    a('s_endpgm')
    e2 = a.mark()
    a.label(f'{name}_sc')
    if stamp: a('s_memtime s[84:85]')
    a('s_waitcnt vmcnt(0)\ns_nop 4')
    for t in range(4): a(f'v_sub_f32 v{V_G+t}, 1.0, v{V_G+t}')
    for t in range(4):
        for r in range(16): a(f'v_mul_f32 v{ACC+16*t+r}, v{ACC+16*t+r}, v{V_G+t}')
    a(f's_branch {name}_b2')
    e3 = a.mark()
    body = a.ins[m0:m1]
    ib2 = [i for i, x in enumerate(body) if x.text == f'{name}_b2:'][0]
    tr = a.ins[st:l0] + a.ins[l1:m1] + body[:ib2] + a.ins[e2:e3] + body[ib2:] + a.ins[m1:e2]
    return list(dict.fromkeys(check_seq(tr, name) + check_seq(a.ins[st:lm1] + a.ins[lm0:l1], name + '_ld')))

def down5(a, name, stamp, prio, exp=''):
    R = 5
    WOFS = R * 8192
    V_L16, V_WOFF, V_AB, V_WB, V_FL, V_Z, V_G = 1, 2, 3, 5, 7, 8, 9
    ACC, AF, WF = 16, [80, 96], 112
    S_A, S_WD, S_WS, S_OUT = 4, 8, 12, 48
    S_W, S_WR, S_WC, S_RB, S_CB, S_KH, S_AK, S_WK, S_LA, S_CNT, S_T = 16, 17, 18, 19, 20, 21, 22, 23, 24, 27, 30
    S_TB0, S_FA, S_AO = 36, 37, 39
    st = a.mark()
    a(f'''
    s_load_dwordx2 s[40:41], s[0:1], 16
    s_load_dwordx2 s[42:43], s[0:1], 48
    s_load_dwordx2 s[44:45], s[0:1], 64
    s_load_dwordx2 s[46:47], s[0:1], 80
    v_lshrrev_b32 v17, 6, v0
    v_and_b32 v0, 63, v0
    v_readfirstlane_b32 s{S_W}, v17
    s_and_b32 s{S_T}, s2, 7
    s_lshr_b32 s{S_T+1}, s2, 3
    s_and_b32 s{S_T+1}, s{S_T+1}, 31
    s_and_b32 s{S_KH}, s{S_T}, 1
    s_lshr_b32 s{S_T}, s{S_T}, 1
    s_lshl_b32 s{S_RB}, s{S_T}, 2
    s_lshr_b32 s{S_T+2}, s{S_T+1}, 3
    s_add_u32 s{S_RB}, s{S_RB}, s{S_T+2}
    s_and_b32 s{S_CB}, s{S_T+1}, 7
    s_bfe_u32 s{S_WR}, s{S_W}, 0x10001
    s_and_b32 s{S_WC}, s{S_W}, 1
    v_lshlrev_b32 v{V_L16}, 4, v0
    v_mov_b32 v{V_Z}, 0
    s_mov_b32 s{S_CNT}, 6
    ''')
    if prio: a(f's_setprio {prio}')
    if stamp: a('s_memtime s[90:91]\ns_memrealtime s[92:93]\ns_memtime s[94:95]\ns_memtime s[84:85]\ns_memtime s[82:83]\ns_memtime s[88:89]')
    a(f'''
    s_waitcnt lgkmcnt(0)
    s_mov_b32 s{S_WS}, s46
    s_mov_b32 s{S_WS+1}, s47
    s_mov_b32 s{S_WS+2}, 0x10000000
    s_mov_b32 s{S_WS+3}, 0x20000
    s_cmp_lt_u32 s{S_W}, 4
    s_cbranch_scc1 {name}_cmp
    ''')
    sa = f's[{S_A}:{S_A+3}]'; wd = f's[{S_WD}:{S_WD+3}]'; ws = f's[{S_WS}:{S_WS+3}]'
    l0 = a.mark()
    a(f'''
    s_and_b32 s{S_T+1}, s{S_W}, 3
    s_lshl_b32 s{S_T}, s{S_RB}, 2
    s_add_u32 s{S_T}, s{S_T}, s{S_T+1}
    s_mul_i32 s{S_AO}, s{S_T}, {OH_TB}
    s_add_u32 s{S_AO}, s{S_AO}, {WS_OH:#x}
    s_mul_i32 s{S_T}, s{S_KH}, {1792*64}
    s_add_u32 s{S_AK}, s{S_AO}, s{S_T}
    s_add_u32 s{S_AK}, s{S_AK}, {1024*64}
    s_mul_i32 s{S_WK}, s{S_KH}, {1792*2048}
    s_lshl_b32 s{S_LA}, s{S_T+1}, 11
    v_lshrrev_b32 v17, 2, v0
    s_lshl_b32 s{S_T}, s{S_WR}, 4
    v_add_u32 v17, s{S_T}, v17
    v_lshlrev_b32 v17, 11, v17
    v_lshrrev_b32 v18, 5, v0
    v_lshlrev_b32 v18, 1, v18
    v_and_b32 v19, 3, v0
    v_xor_b32 v18, v18, v19
    v_lshlrev_b32 v18, 4, v18
    s_lshl_b32 s{S_T}, s{S_CB}, 8
    s_lshl_b32 s{S_T+1}, s{S_WC}, 7
    s_add_u32 s{S_T}, s{S_T}, s{S_T+1}
    v_add3_u32 v{V_WOFF}, v17, v18, s{S_T}
    s_mov_b32 s{S_A}, s46
    s_mov_b32 s{S_A+1}, s47
    s_add_u32 s{S_A+2}, s{S_AK}, {1792*64}
    s_mov_b32 s{S_A+3}, 0x20000
    s_mov_b32 s{S_WD}, s42
    s_mov_b32 s{S_WD+1}, s43
    s_add_u32 s{S_WD+2}, s{S_WK}, {1792*2048}
    s_mov_b32 s{S_WD+3}, 0x20000
    s_lshr_b32 s{S_FA}, s{S_RB}, 1
    s_lshl_b32 s{S_FA}, s{S_FA}, 7
    s_add_u32 s{S_FA}, s{S_FA}, {WS_FLAG:#x}
    ''')
    def dma(slot):
        a(f'''
        s_add_u32 m0, s{S_LA}, {slot*8192}
        s_nop 0
        buffer_load_dwordx4 v{V_L16}, {sa}, s{S_AK} offen lds
        buffer_load_dwordx4 v{V_L16}, {sa}, s{S_AK} offen offset:1024 lds
        s_add_u32 m0, s{S_LA}, {WOFS + slot*8192}
        s_add_u32 s{S_AK}, s{S_AK}, 2048
        buffer_load_dwordx4 v{V_WOFF}, {wd}, s{S_WK} offen lds
        s_add_u32 m0, s{S_LA}, {WOFS + slot*8192 + 1024 - 64}
        s_nop 0
        buffer_load_dwordx4 v{V_WOFF}, {wd}, s{S_WK} offen offset:64 lds
        s_add_u32 s{S_WK}, s{S_WK}, {32*2048}
        ''')
    dma(0); dma(1)
    a('s_waitcnt vmcnt(4)\ns_barrier')
    dma(2); dma(3); dma(4)
    for j in range(2):
        a('s_waitcnt vmcnt(12)\ns_barrier'); dma(j)
    lm0 = a.mark()
    a.label(f'{name}_lloop')
    for k in range(10):
        a('s_waitcnt vmcnt(12)\ns_barrier'); dma((2 + k) % R)
        if k == 3:
            a(f's_sub_u32 s{S_CNT}, s{S_CNT}, 1\ns_cmp_eq_u32 s{S_CNT}, 0\ns_cbranch_scc1 {name}_lx')
    a(f'''
    s_cmp_lg_u32 s{S_CNT}, {2 if 'K' in exp else 1}
    s_cbranch_scc1 {name}_lloop
    s_mov_b32 s60, s40
    s_mov_b32 s61, s41
    s_mov_b32 s62, {1024*2048}
    s_mov_b32 s63, 0x20000
    s_lshr_b32 s{S_T}, s2, 3
    s_and_b32 s{S_T}, s{S_T}, 31
    s_lshl_b32 s{S_T}, s{S_T}, 16
    s_lshl_b32 s{S_T+1}, s{S_LA}, 3
    s_add_u32 s{S_T}, s{S_T}, s{S_T+1}
    s_add_u32 s{S_T+1}, s{S_T}, 8192
    v_lshlrev_b32 v20, 7, v0
    buffer_load_dword v21, v20, s[60:63], s{S_T} offen
    buffer_load_dword v22, v20, s[60:63], s{S_T+1} offen
    ''')
    a(f's_branch {name}_lloop')
    lm1 = a.mark()
    a.label(f'{name}_lx')
    a(f's_waitcnt vmcnt(0)\ns_barrier\ns_branch {name}_join')
    l1 = a.mark()
    a.label(f'{name}_cmp')
    a(f'''
    s_mov_b32 s{S_OUT}, s44
    s_mov_b32 s{S_OUT+1}, s45
    s_mov_b32 s{S_OUT+2}, {2048*2048}
    s_mov_b32 s{S_OUT+3}, 0x20000
    v_and_b32 v13, 15, v0
    v_lshrrev_b32 v14, 4, v0
    v_lshlrev_b32 v15, 9, v14
    v_lshl_add_u32 v15, v13, 4, v15
    s_lshl_b32 s{S_T}, s{S_WR}, 12
    s_lshl_b32 s{S_T+1}, s{S_KH}, 11
    s_add_u32 s{S_T}, s{S_T}, s{S_T+1}
    v_add_u32 v{V_AB}, s{S_T}, v15
    v_xor_b32 v{V_AB+1}, 2048, v{V_AB}
    v_lshrrev_b32 v15, 5, v0
    v_lshlrev_b32 v15, 12, v15
    v_and_b32 v14, 1, v14
    v_lshl_add_u32 v15, v14, 9, v15
    v_lshl_add_u32 v15, v14, 5, v15
    v_lshrrev_b32 v14, 2, v13
    v_lshl_add_u32 v15, v14, 6, v15
    v_and_b32 v14, 3, v13
    v_lshl_add_u32 v15, v14, 3, v15
    s_lshl_b32 s{S_T}, s{S_WC}, 11
    s_add_u32 s{S_T}, s{S_T}, {WOFS}
    v_add_u32 v{V_WB}, s{S_T}, v15
    v_xor_b32 v{V_WB+1}, 32, v{V_WB}
    s_lshl_b32 s{S_TB0}, s{S_RB}, 2
    s_lshl_b32 s{S_T}, s{S_WR}, 1
    s_add_u32 s{S_TB0}, s{S_TB0}, s{S_T}
    s_add_u32 s{S_TB0}, s{S_TB0}, s{S_KH}
    s_lshl_b32 s{S_T+4}, s{S_TB0}, 7
    s_add_u32 s{S_T+4}, s{S_T+4}, {WS_G:#x}
    s_xor_b32 s{S_T+5}, s{S_T+4}, 128
    v_lshlrev_b32 v13, 2, v13
    ''')
    for t in range(4): a(f'buffer_load_dword v{V_G+t}, v13, {ws}, s{S_T+4+(t>>1)} offen offset:{(t&1)*64}')
    for r in range(ACC, ACC + 64): a(f'v_mov_b32 v{r}, 0')
    def rdA(slot, st_): return [f'ds_read_b128 {r4(AF[st_]+4*t)}, v{V_AB+(t>>1)} offset:{slot*8192 + (t&1)*256}' for t in range(4)]
    def rdW(slot, q): return [f'ds_read_b64_tr_b16 v[{WF+8*q+4*p+2*h}:{WF+8*q+4*p+2*h+1}], v{V_WB+p} offset:{slot*8192 + q*1024 + h*256}' for p in range(2) for h in range(2)]
    def mm(st_, q):
        return [f'v_mfma_f32_16x16x32_bf16 {r4(ACC+16*t+4*(2*q+p))}, {r4(WF+8*q+4*p)}, {r4(AF[st_]+4*t)}, {r4(ACC+16*t+4*(2*q+p))}' for p in range(2) for t in range(4)]
    def stage(j):
        slot, st_ = j % R, j & 1
        a('s_waitcnt lgkmcnt(0)')
        M = mm(st_, 0); rd = rdW(slot, 1)
        for i in range(8):
            a(M[i])
            if i < 4: a(rd[i])
        a('s_waitcnt lgkmcnt(0)\ns_barrier')
        M = mm(st_, 1); w = rdW((slot + 1) % R, 0); rd = w[:2] + rdA((slot + 1) % R, 1 - st_) + w[2:]
        if 'u' in exp:
            for i in range(8): a(M[i]); a(rd[i])
        else:
            for i in range(8):
                a(M[i])
                if i < 4: a(rd[2*i]); a(rd[2*i+1])
    a('s_barrier')
    for l in rdW(0, 0) + rdA(0, 0): a(l)
    if stamp: a('s_memtime s[88:89]')
    stage(0); stage(1)
    m0 = a.mark()
    a.label(f'{name}_loop')
    for k in range(10):
        stage(2 + k)
        if k == 3:
            a(f's_sub_u32 s{S_CNT}, s{S_CNT}, 1\ns_cmp_eq_u32 s{S_CNT}, 0\ns_cbranch_scc1 {name}_cx')
            mx = a.mark()
    a(f's_branch {name}_loop')
    m1 = a.mark()
    a.label(f'{name}_cx')
    if stamp: a('s_memtime s[94:95]')
    PT = AF[0]; RX = ACC + 32
    a(f'''
    s_sub_u32 s52, s2, 256
    s_lshl_b32 s52, s52, 2
    s_add_u32 s52, s52, s{S_W}
    s_lshl_b32 s52, s52, 12
    s_add_u32 s52, s52, {WS_PART:#x}
    s_xor_b32 s53, s52, {4*4096}
    s_mov_b32 s57, 0xffff0000
    s_waitcnt vmcnt(0) lgkmcnt(0)
    s_barrier
    ''')
    for t in range(4): a(f'v_sub_f32 v{V_G+t}, 1.0, v{V_G+t}')
    for t in (2, 3, 0, 1):
        for r in range(16): a(f'v_mul_f32 v{ACC+16*t+r}, v{ACC+16*t+r}, v{V_G+t}')
        if t == 3:
            for h in range(4):
                for j in range(4*h, 4*h + 4): a(f'v_cvt_pk_bf16_f32 v{PT+j}, v{ACC+32+2*j}, v{ACC+32+2*j+1}')
                for j in range(4*h, 4*h + 4): a(f'v_max_u32 v{PT+j}, 1, v{PT+j}')
                a(f'buffer_store_dwordx4 {r4(PT+4*h)}, v{V_L16}, {ws}, s52 offen offset:{h*1024} sc1')
    a(f'''
    s_lshl_b32 s{S_T}, s{S_WR}, 14
    s_lshl_b32 s{S_T+1}, s{S_WC}, 12
    s_add_u32 s{S_T}, s{S_T}, s{S_T+1}
    v_add_u32 v3, s{S_T}, v{V_L16}
    ''')
    for t in range(2):
        for c in range(4): a(f'ds_write_b128 v3, {r4(ACC+16*t+4*c)} offset:{t*8192 + c*1024}')
    a('s_waitcnt lgkmcnt(0)')
    jn = a.mark()
    a.label(f'{name}_join')
    if 'J' in exp: a('s_setprio 2')
    V_A2, V_W2, V_O2 = 3, 4, 5
    AC2, A2, WR, WL = 12, [28, 44], 60, 124
    WA = 32768
    a(f'''
    s_barrier
    s_lshl_b32 s{S_LA}, s{S_W}, 10
    v_add_u32 v6, s{S_LA}, v{V_L16}
    ''')
    for t in range(4): a(f'ds_read_b128 {r4(AC2+4*t)}, v6 offset:{t*8192}')
    a(f'''
    s_mov_b32 s{S_WD}, s40
    s_mov_b32 s{S_WD+1}, s41
    s_mov_b32 s{S_WD+2}, {1024*2048}
    s_mov_b32 s{S_WD+3}, 0x20000
    s_mov_b32 s{S_WK}, 0
    v_lshrrev_b32 v9, 2, v0
    s_lshr_b32 s{S_T}, s{S_W}, 2
    s_lshl_b32 s{S_T}, s{S_T}, 4
    v_add_u32 v9, s{S_T}, v9
    v_lshlrev_b32 v9, 11, v9
    v_lshrrev_b32 v10, 5, v0
    v_lshlrev_b32 v10, 1, v10
    v_and_b32 v11, 3, v0
    v_xor_b32 v10, v10, v11
    v_lshlrev_b32 v10, 4, v10
    s_lshl_b32 s{S_T}, s{S_CB}, 8
    s_and_b32 s{S_T+1}, s{S_W}, 3
    s_lshl_b32 s{S_T+1}, s{S_T+1}, 6
    s_add_u32 s{S_T}, s{S_T}, s{S_T+1}
    v_add3_u32 v{V_WOFF}, v9, v10, s{S_T}
    ''')
    def dW(slot): return [f's_add_u32 m0, s{S_LA}, {WA + slot*8192}', f'buffer_load_dwordx4 v{V_WOFF}, {wd}, s{S_WK} offen lds', f's_add_u32 s{S_WK}, s{S_WK}, {32*2048}']
    for sl in range(4):
        for l in dW(sl): a(l)
    a(f'''
    v_and_b32 v9, 15, v0
    v_lshrrev_b32 v10, 4, v0
    v_lshlrev_b32 v{V_A2}, 9, v10
    v_lshl_add_u32 v{V_A2}, v9, 4, v{V_A2}
    v_lshrrev_b32 v11, 5, v0
    v_lshlrev_b32 v11, 12, v11
    v_and_b32 v6, 1, v10
    v_lshl_add_u32 v11, v6, 9, v11
    s_and_b32 s{S_T}, s{S_W}, 1
    v_xor_b32 v6, s{S_T}, v6
    v_lshl_add_u32 v11, v6, 5, v11
    v_lshrrev_b32 v6, 2, v9
    v_lshl_add_u32 v11, v6, 6, v11
    v_and_b32 v6, 3, v9
    v_lshl_add_u32 v11, v6, 3, v11
    s_lshr_b32 s{S_T}, s{S_W}, 1
    s_lshl_b32 s{S_T}, s{S_T}, 10
    s_add_u32 s{S_T}, s{S_T}, {WA}
    v_add_u32 v{V_W2}, s{S_T}, v11
    v_and_b32 v6, 1, v10
    v_lshl_add_u32 v9, v6, 4, v9
    v_lshlrev_b32 v{V_O2}, 11, v9
    v_lshrrev_b32 v6, 1, v10
    v_lshl_add_u32 v{V_O2}, v6, 4, v{V_O2}
    s_mov_b32 s{S_OUT}, s44
    s_mov_b32 s{S_OUT+1}, s45
    s_mov_b32 s{S_OUT+2}, {2048*2048}
    s_mov_b32 s{S_OUT+3}, 0x20000
    s_lshl_b32 s{S_T}, s{S_RB}, 2
    s_add_u32 s{S_T}, s{S_T}, s{S_KH}
    s_lshl_b32 s55, s{S_T}, 16
    s_lshl_b32 s{S_T+1}, s{S_CB}, 8
    s_add_u32 s55, s55, s{S_T+1}
    s_lshl_b32 s{S_T+1}, s{S_W}, 5
    s_add_u32 s55, s55, s{S_T+1}
    s_add_u32 s56, s55, {64*2048}
    s_and_b32 s{S_T+1}, s{S_W}, 2
    s_add_u32 s{S_T}, s{S_T}, s{S_T+1}
    s_mul_i32 s{S_AK}, s{S_T}, {OH_TB}
    s_add_u32 s{S_AK}, s{S_AK}, {WS_OH:#x}
    s_and_b32 s{S_T+1}, s{S_W}, 1
    s_lshl_b32 s{S_T+1}, s{S_T+1}, 10
    s_add_u32 s{S_AK}, s{S_AK}, s{S_T+1}
    s_lshr_b32 s{S_T+1}, s{S_W}, 2
    s_lshl_b32 s{S_T+1}, s{S_T+1}, 15
    s_add_u32 s{S_AK}, s{S_AK}, s{S_T+1}
    s_lshr_b32 s{S_FA}, s{S_RB}, 1
    s_lshl_b32 s{S_FA}, s{S_FA}, 7
    s_add_u32 s{S_FA}, s{S_FA}, {WS_FLAG:#x}
    ''')
    def rW(dst, slot): return [f'ds_read_b64_tr_b16 v[{dst+2*h}:{dst+2*h+1}], v{V_W2} offset:{slot*8192 + h*256}' for h in range(2)]
    a(f'''
    s_sub_u32 s53, s2, 256
    s_xor_b32 s53, s53, 1
    s_lshl_b32 s53, s53, 2
    s_lshr_b32 s{S_T+1}, s{S_W}, 2
    s_add_u32 s53, s53, s{S_T+1}
    s_lshl_b32 s53, s53, 12
    s_bfe_u32 s{S_T+1}, s{S_W}, 0x10001
    s_lshl_b32 s{S_T+1}, s{S_T+1}, 10
    s_add_u32 s53, s53, s{S_T+1}
    s_and_b32 s{S_T+1}, s{S_W}, 1
    s_lshl_b32 s{S_T+1}, s{S_T+1}, 3
    s_add_u32 s53, s53, s{S_T+1}
    s_add_u32 s53, s53, {WS_PART:#x}
    s_add_u32 s54, s53, {2*4096}
    s_mov_b32 s57, 0xffff0000
    ''')
    for i in range(9):
        a('s_waitcnt vmcnt(2) lgkmcnt(0)\ns_barrier')
        if i < 8:
            for u in range(2):
                for l in rW(WR + 4*(2*i + u), 2*(i % 3) + u): a(l)
        for u in range(2):
            for l in dW(2*((i + 2) % 3) + u): a(l)
    a(f's_waitcnt vmcnt(0)\ns_cmp_lg_u32 s{S_W}, 0\ns_cbranch_scc1 {name}_go')
    a.label(f'{name}_sw2')
    a(f'''
    buffer_load_dword v{V_FL}, v{V_Z}, {ws}, s{S_FA} offen sc1
    s_waitcnt vmcnt(0)
    v_readfirstlane_b32 s{S_T}, v{V_FL}
    s_cmp_ge_u32 s{S_T}, 32
    s_cbranch_scc1 {name}_go
    s_sleep 3
    s_branch {name}_sw2
    ''')
    a.label(f'{name}_go')
    a('s_barrier')
    if stamp: a('s_memtime s[84:85]')
    def dA(g): return [f's_add_u32 m0, s{S_LA}, {(g % 4)*8192}', f'buffer_load_dwordx4 v{V_L16}, {ws}, s{S_AK} offen sc1 lds', f's_add_u32 s{S_AK}, s{S_AK}, 2048']
    def rA(g, stp): return [f'ds_read_b128 {r4(A2[stp]+4*t)}, v{V_A2} offset:{(g % 4)*8192 + stp*4096 + (t>>1)*2048 + (t&1)*256}' for t in range(4)]
    def m2(w, stp): return [f'v_mfma_f32_16x16x32_bf16 {r4(AC2+4*t)}, {r4(w)}, {r4(A2[stp]+4*t)}, {r4(AC2+4*t)}' for t in range(4)]
    for g in range(4):
        for l in dA(g): a(l)
    a('s_waitcnt vmcnt(3)\ns_barrier')
    for l in rA(0, 0): a(l)
    issued = ['A0', 'A1', 'A2', 'A3']
    pl = [f'buffer_load_dwordx2 v[{WR+2*t}:{WR+2*t+1}], v{V_L16}, {ws}, s{53+(t>>1)} offen offset:{(t&1)*2048} sc1' for t in range(4)]
    for g in range(16):
        rd = rA(g, 1) + rW(WL, (g + 4) % 6)
        for l in rd: a(l)
        a(f's_waitcnt lgkmcnt({0 if (stamp and g == 0) else len(rd)})')
        for l in m2(WR + 4*g, 0): a(l)
        if g == 15:
            a('s_waitcnt lgkmcnt(0)')
            for l in m2(WL, 1): a(l)
            break
        need = [x for x in (f'A{g+1}', f'W{g+1}') if x in issued]
        vm = len(issued) - 1 - max(issued.index(x) for x in need)
        a(f's_waitcnt vmcnt({vm}) lgkmcnt(0)\ns_barrier')
        for l in rA(g + 1, 0): a(l)
        M = m2(WL, 1); dm = []
        if g + 4 < 16: dm.append(dA(g + 4)); issued.append(f'A{g+4}')
        if g + 6 < 16: dm.append(dW((g + 4) % 6)); issued.append(f'W{g+6}')
        for i in range(4):
            if i < len(dm): a(dm[i][0])
            a(M[i])
            if i < len(dm):
                for l in dm[i][1:]: a(l)
        if g == 11:
            for l in pl: a(l); issued.append('P')
    if stamp: a('s_memtime s[82:83]')
    a.label(f'{name}_chk')
    a(f'''
    s_waitcnt vmcnt(0)
    v_min3_u32 v6, v{WR}, v{WR+1}, v{WR+2}
    v_min3_u32 v9, v{WR+3}, v{WR+4}, v{WR+5}
    v_min3_u32 v6, v6, v{WR+6}, v{WR+7}
    v_min_u32 v6, v6, v9
    v_cmp_eq_u32 vcc, 0, v6
    s_cmp_lg_u64 vcc, 0
    s_cbranch_scc1 {name}_again
    ''')
    for j in range(8):
        a(f'v_lshlrev_b32 v{WR+8+2*j}, 16, v{WR+j}\nv_and_b32 v{WR+8+2*j+1}, s57, v{WR+j}')
    for r in range(16): a(f'v_add_f32 v{AC2+r}, v{AC2+r}, v{WR+8+r}')
    for tb in range(2):
        o = A2[0] + 4*tb
        for j in range(4): a(f'v_cvt_pk_bf16_f32 v{o+j}, v{AC2+8*tb+2*j}, v{AC2+8*tb+2*j+1}')
        a(f'v_permlane16_swap_b32 v{o}, v{o+2}\nv_permlane16_swap_b32 v{o+1}, v{o+3}')
        a(f'buffer_store_dwordx4 {r4(o)}, v{V_O2}, s[{S_OUT}:{S_OUT+3}], s{55+tb} offen')
    if stamp: stamp_out(a, ws, S_W, 0x8300000, 256)
    a('s_endpgm')
    ee = a.mark()
    a.label(f'{name}_again')
    a('s_sleep 4')
    for l in pl: a(l)
    a(f's_branch {name}_chk')
    tr = a.ins[st:l0] + a.ins[l1:m1] + a.ins[m0:mx] + a.ins[m1:ee]
    return list(dict.fromkeys(check_seq(tr, name) + check_seq(a.ins[st:lm1] + a.ins[lm0:l1] + a.ins[jn:ee], name + '_ld')))

def down6(a, name, stamp, prio, exp=''):
    R = 5
    WOFS = R * 8192
    V_L16, V_WOFF, V_AB, V_WB, V_FL, V_Z, V_G = 1, 2, 3, 5, 7, 8, 9
    ACC, AF, WF = 16, [80, 96], 112
    S_A, S_WD, S_WS, S_OUT = 4, 8, 12, 48
    S_W, S_WR, S_WC, S_RB, S_CB, S_KH, S_AK, S_WK, S_LA, S_CNT, S_T = 16, 17, 18, 19, 20, 21, 22, 23, 24, 27, 30
    S_TB0, S_FA, S_AO = 36, 37, 39
    st = a.mark()
    a(f'''
    s_load_dwordx2 s[40:41], s[0:1], 16
    s_load_dwordx2 s[42:43], s[0:1], 48
    s_load_dwordx2 s[44:45], s[0:1], 64
    s_load_dwordx2 s[46:47], s[0:1], 80
    v_lshrrev_b32 v17, 6, v0
    v_and_b32 v0, 63, v0
    v_readfirstlane_b32 s{S_W}, v17
    s_and_b32 s{S_T}, s2, 7
    s_lshr_b32 s{S_T+1}, s2, 3
    s_and_b32 s{S_T+1}, s{S_T+1}, 31
    s_and_b32 s{S_KH}, s{S_T}, 1
    s_lshr_b32 s{S_T}, s{S_T}, 1
    s_lshl_b32 s{S_RB}, s{S_T}, 2
    s_lshr_b32 s{S_T+2}, s{S_T+1}, 3
    s_add_u32 s{S_RB}, s{S_RB}, s{S_T+2}
    s_and_b32 s{S_CB}, s{S_T+1}, 7
    s_bfe_u32 s{S_WR}, s{S_W}, 0x10001
    s_and_b32 s{S_WC}, s{S_W}, 1
    v_lshlrev_b32 v{V_L16}, 4, v0
    v_mov_b32 v{V_Z}, 0
    s_mov_b32 s{S_CNT}, 7
    ''')
    if stamp: a('s_memtime s[90:91]\ns_memrealtime s[92:93]\ns_memtime s[94:95]\ns_memtime s[84:85]\ns_memtime s[82:83]\ns_memtime s[88:89]')
    a(f'''
    s_waitcnt lgkmcnt(0)
    s_mov_b32 s{S_WS}, s46
    s_mov_b32 s{S_WS+1}, s47
    s_mov_b32 s{S_WS+2}, 0x10000000
    s_mov_b32 s{S_WS+3}, 0x20000
    s_cmp_lt_u32 s{S_W}, 4
    s_cbranch_scc1 {name}_cmp
    ''')
    sa = f's[{S_A}:{S_A+3}]'; wd = f's[{S_WD}:{S_WD+3}]'; ws = f's[{S_WS}:{S_WS+3}]'
    l0 = a.mark()
    S_L, S_SL, S_UN, S_A1, S_W1, S_AI, S_WI = 25, 26, 28, 29, 38, 52, 53
    a(f'''
    s_and_b32 s{S_L}, s{S_W}, 3
    s_mul_i32 s{S_AO}, s{S_RB}, {4*OH_TB}
    s_add_u32 s{S_AO}, s{S_AO}, {WS_OH:#x}
    s_mul_i32 s{S_T}, s{S_KH}, 56
    s_add_u32 s{S_T}, s{S_T}, s{S_L}
    s_lshl_b32 s{S_AK}, s{S_T}, 11
    s_add_u32 s{S_AK}, s{S_AK}, s{S_AO}
    s_add_u32 s{S_AK}, s{S_AK}, {1024*64}
    s_lshl_b32 s{S_WK}, s{S_T}, 16
    s_lshl_b32 s{S_SL}, s{S_L}, 13
    v_lshrrev_b32 v17, 2, v0
    v_lshlrev_b32 v17, 11, v17
    v_lshrrev_b32 v18, 5, v0
    v_lshlrev_b32 v18, 1, v18
    v_and_b32 v19, 3, v0
    v_xor_b32 v18, v18, v19
    v_lshlrev_b32 v18, 4, v18
    s_lshl_b32 s{S_T}, s{S_CB}, 8
    v_add3_u32 v{V_WOFF}, v17, v18, s{S_T}
    s_mov_b32 s{S_WD}, s42
    s_mov_b32 s{S_WD+1}, s43
    s_mov_b32 s{S_WD+2}, {3584*2048}
    s_mov_b32 s{S_WD+3}, 0x20000
    s_lshl_b32 s{S_FA}, s{S_RB}, 3
    s_add_u32 s{S_FA}, s{S_FA}, s{S_CB}
    s_lshl_b32 s{S_FA}, s{S_FA}, 1
    s_add_u32 s{S_FA}, s{S_FA}, s{S_KH}
    s_lshl_b32 s{S_FA}, s{S_FA}, 7
    s_lshl_b32 s{S_T}, s{S_L}, 2
    s_add_u32 s{S_FA}, s{S_FA}, s{S_T}
    s_add_u32 s{S_FA}, s{S_FA}, {WS_FLAG:#x}
    v_lshlrev_b32 v{V_Z}, 4, v19
    s_mov_b32 s{S_UN}, 15
    s_mov_b32 s{S_CNT}, 17
    ''')
    def ldA(tb):
        a(f'''
        s_add_u32 m0, s{S_SL}, {tb*2048}
        s_add_u32 s{S_A1}, s{S_AK}, {tb*OH_TB}
        buffer_load_dwordx4 v{V_L16}, {ws}, s{S_A1} offen sc1 lds
        buffer_load_dwordx4 v{V_L16}, {ws}, s{S_A1} offen offset:1024 sc1 lds
        ''')
    def ldW(op, q):
        a(f's_add_u32 m0, s{S_SL}, {WOFS + op*4096 + q*1024 - q*64}')
        if q == 0: a(f's_add_u32 s{S_W1}, s{S_WK}, {op*16*2048}')
        a(f'buffer_load_dwordx4 v{V_WOFF}, {wd}, s{S_W1} offen offset:{q*64} lds')
    def part(p):
        if p == 0: ldA(0); ldA(1); ldA(2)
        if p == 1:
            ldA(3)
            for q in range(4): ldW(0, q)
        if p == 2:
            for q in range(4): ldW(1, q)
            a(f'''
            s_add_u32 s{S_AK}, s{S_AK}, {4*2048}
            s_add_u32 s{S_WK}, s{S_WK}, {4*32*2048}
            s_sub_u32 s{S_SL}, s{S_SL}, 8192
            s_cselect_b32 s{S_SL}, {4*8192}, s{S_SL}
            ''')
    a(f's_cmp_lt_u32 s{S_L}, 2\ns_cbranch_scc1 {name}_l0\ns_barrier')
    a.label(f'{name}_l0')
    part(0); part(1); part(2)
    a(f's_cmp_eq_u32 s{S_L}, 0\ns_cbranch_scc1 {name}_lloop\ns_barrier\ns_cmp_lt_u32 s{S_L}, 3\ns_cbranch_scc1 {name}_lloop\ns_barrier')
    lm0 = a.mark()
    a.label(f'{name}_lloop')
    a(f's_waitcnt vmcnt(0)\ns_barrier\ns_cmp_le_u32 s{S_CNT}, 4\ns_cbranch_scc1 {name}_sw')
    a.label(f'{name}_b1')
    part(0); a('s_barrier'); part(1); a('s_barrier'); part(2); a('s_barrier')
    a(f'buffer_load_dword v{V_FL}, v{V_Z}, {ws}, s{S_FA} offen sc1')
    a(f's_sub_u32 s{S_CNT}, s{S_CNT}, 1\ns_cmp_lg_u32 s{S_CNT}, 0\ns_cbranch_scc1 {name}_lloop')
    lm1 = a.mark()
    a('s_waitcnt vmcnt(0)\ns_barrier')
    if stamp: stamp_out(a, ws, S_W, 0x8300000, 256)
    a('s_endpgm')
    a.label(f'{name}_sl')
    a(f's_sleep {os.environ.get("SL", "4")}\nbuffer_load_dword v{V_FL}, v{V_Z}, {ws}, s{S_FA} offen sc1')
    a.label(f'{name}_sw')
    a(f'''
    s_mov_b32 s{S_WD}, s40
    s_mov_b32 s{S_WD+1}, s41
    s_mov_b32 s{S_WD+2}, {1024*2048}
    s_waitcnt vmcnt(0)
    v_cmp_ne_u32 vcc, 0, v{V_FL}
    s_and_b32 s{S_T}, vcc_lo, s{S_UN}
    s_cbranch_scc0 {name}_sl
    s_ff1_i32_b32 s{S_T}, s{S_T}
    s_bitset0_b32 s{S_UN}, s{S_T}
    s_lshl_b32 s{S_T}, s{S_T}, 2
    s_add_u32 s{S_T}, s{S_T}, s{S_L}
    s_lshl_b32 s{S_T+1}, s{S_KH}, 4
    s_add_u32 s{S_T}, s{S_T}, s{S_T+1}
    s_lshl_b32 s{S_AK}, s{S_T}, 11
    s_add_u32 s{S_AK}, s{S_AK}, s{S_AO}
    s_lshl_b32 s{S_WK}, s{S_T}, 16
    s_branch {name}_b1
    ''')
    l1 = a.mark()
    a.label(f'{name}_cmp')
    a(f'''
    s_mov_b32 s{S_OUT}, s44
    s_mov_b32 s{S_OUT+1}, s45
    s_mov_b32 s{S_OUT+2}, {2048*2048}
    s_mov_b32 s{S_OUT+3}, 0x20000
    v_and_b32 v13, 15, v0
    v_lshrrev_b32 v14, 4, v0
    v_lshlrev_b32 v15, 9, v14
    v_lshl_add_u32 v15, v13, 4, v15
    s_lshl_b32 s{S_T}, s{S_WR}, 12
    s_lshl_b32 s{S_T+1}, s{S_KH}, 11
    s_add_u32 s{S_T}, s{S_T}, s{S_T+1}
    v_add_u32 v{V_AB}, s{S_T}, v15
    v_xor_b32 v{V_AB+1}, 2048, v{V_AB}
    v_lshrrev_b32 v15, 5, v0
    v_lshlrev_b32 v15, 12, v15
    v_and_b32 v14, 1, v14
    v_lshl_add_u32 v15, v14, 9, v15
    v_lshl_add_u32 v15, v14, 5, v15
    v_lshrrev_b32 v14, 2, v13
    v_lshl_add_u32 v15, v14, 6, v15
    v_and_b32 v14, 3, v13
    v_lshl_add_u32 v15, v14, 3, v15
    s_lshl_b32 s{S_T}, s{S_WC}, 11
    s_add_u32 s{S_T}, s{S_T}, {WOFS}
    v_add_u32 v{V_WB}, s{S_T}, v15
    v_xor_b32 v{V_WB+1}, 32, v{V_WB}
    s_lshl_b32 s{S_TB0}, s{S_RB}, 2
    s_lshl_b32 s{S_T}, s{S_WR}, 1
    s_add_u32 s{S_TB0}, s{S_TB0}, s{S_T}
    s_add_u32 s{S_TB0}, s{S_TB0}, s{S_KH}
    s_lshl_b32 s{S_T+4}, s{S_TB0}, 7
    s_add_u32 s{S_T+4}, s{S_T+4}, {WS_G:#x}
    s_xor_b32 s{S_T+5}, s{S_T+4}, 128
    v_lshlrev_b32 v13, 2, v13
    ''')
    for t in range(4): a(f'buffer_load_dword v{V_G+t}, v13, {ws}, s{S_T+4+(t>>1)} offen offset:{(t&1)*64}')
    for r in range(ACC, ACC + 64): a(f'v_mov_b32 v{r}, 0')
    def rdA(slot, st_): return [f'ds_read_b128 {r4(AF[st_]+4*t)}, v{V_AB+(t>>1)} offset:{slot*8192 + (t&1)*256}' for t in range(4)]
    def rdW(slot, q): return [f'ds_read_b64_tr_b16 v[{WF+8*q+4*p+2*h}:{WF+8*q+4*p+2*h+1}], v{V_WB+p} offset:{slot*8192 + q*1024 + h*256}' for p in range(2) for h in range(2)]
    def mm(st_, q):
        return [f'v_mfma_f32_16x16x32_bf16 {r4(ACC+16*t+4*(2*q+p))}, {r4(WF+8*q+4*p)}, {r4(AF[st_]+4*t)}, {r4(ACC+16*t+4*(2*q+p))}' for p in range(2) for t in range(4)]
    def stage(j):
        slot, st_ = j % R, j & 1
        a('s_waitcnt lgkmcnt(0)')
        M = mm(st_, 0); rd = rdW(slot, 1)
        for i in range(8):
            a(M[i])
            if i < 4: a(rd[i])
        a('s_waitcnt lgkmcnt(0)\ns_barrier')
        M = mm(st_, 1); w = rdW((slot + 1) % R, 0); rd = w[:2] + rdA((slot + 1) % R, 1 - st_) + w[2:]
        if 'u' in exp:
            for i in range(8): a(M[i]); a(rd[i])
        else:
            for i in range(8):
                a(M[i])
                if i < 4: a(rd[2*i]); a(rd[2*i+1])
    a('s_barrier')
    for l in rdW(0, 0) + rdA(0, 0): a(l)
    if stamp: a('s_memtime s[88:89]')
    stage(0); stage(1)
    m0 = a.mark()
    a.label(f'{name}_loop')
    for k in range(10):
        if k == 9 and stamp:
            a(f's_cmp_lg_u32 s{S_CNT}, 3\ns_cbranch_scc1 {name}_ns\ns_memtime s[94:95]')
            a.label(f'{name}_ns')
        stage(2 + k)
        if k == 3:
            a(f's_cmp_eq_u32 s{S_CNT}, 2\ns_cbranch_scc1 {name}_sc')
            a.label(f'{name}_b2')
    a(f's_sub_u32 s{S_CNT}, s{S_CNT}, 1\ns_cmp_lg_u32 s{S_CNT}, 0\ns_cbranch_scc1 {name}_loop')
    m1 = a.mark()
    if stamp: a('s_memtime s[82:83]')
    PT = AF[0]; RX = ACC + 32
    a(f'''
    s_sub_u32 s52, s2, 256
    s_lshl_b32 s52, s52, 2
    s_add_u32 s52, s52, s{S_W}
    s_lshl_b32 s52, s52, 12
    s_add_u32 s52, s52, {WS_PART:#x}
    s_xor_b32 s53, s52, {4*4096}
    s_waitcnt lgkmcnt(0)
    ''')
    for h in range(4):
        for j in range(4*h, 4*h + 4): a(f'v_cvt_pk_bf16_f32 v{PT+j}, v{ACC+32+2*j}, v{ACC+32+2*j+1}')
        for j in range(4*h, 4*h + 4): a(f'v_max_u32 v{PT+j}, 1, v{PT+j}')
        a(f'buffer_store_dwordx4 {r4(PT+4*h)}, v{V_L16}, {ws}, s52 offen offset:{h*1024} sc1')
    a(f'''
    v_and_b32 v3, 15, v0
    v_lshrrev_b32 v4, 4, v0
    v_lshlrev_b32 v3, 11, v3
    v_and_b32 v5, 1, v4
    v_lshl_add_u32 v3, v5, 5, v3
    v_lshrrev_b32 v4, 1, v4
    v_lshl_add_u32 v3, v4, 4, v3
    s_lshl_b32 s55, s{S_TB0}, 16
    s_lshl_b32 s{S_T}, s{S_CB}, 8
    s_add_u32 s55, s55, s{S_T}
    s_lshl_b32 s{S_T}, s{S_WC}, 7
    s_add_u32 s55, s55, s{S_T}
    s_add_u32 s56, s55, {16*2048}
    s_mov_b32 s57, 0xffff0000
    ''')
    a.label(f'{name}_poll')
    for h in range(4): a(f'buffer_load_dwordx4 {r4(RX+4*h)}, v{V_L16}, {ws}, s53 offen offset:{h*1024} sc1')
    a(f's_waitcnt vmcnt(0)\nv_min3_u32 v4, v{RX}, v{RX+1}, v{RX+2}\nv_min3_u32 v5, v{RX+3}, v{RX+4}, v{RX+5}')
    for j in range(6, 14, 4):
        a(f'v_min3_u32 v4, v4, v{RX+j}, v{RX+j+1}\nv_min3_u32 v5, v5, v{RX+j+2}, v{RX+j+3}')
    a(f'''
    v_min3_u32 v4, v4, v{RX+14}, v{RX+15}
    v_min_u32 v4, v4, v5
    v_cmp_eq_u32 vcc, 0, v4
    s_cmp_lg_u64 vcc, 0
    s_cbranch_scc1 {name}_poll
    ''')
    T = ACC + 48
    for t in range(2):
        for q in range(2):
            b = ACC + 16*t + 8*q
            for j in range(4):
                a(f'v_lshlrev_b32 v{T+2*j}, 16, v{RX+8*t+4*q+j}\nv_and_b32 v{T+2*j+1}, s57, v{RX+8*t+4*q+j}')
            for r in range(8): a(f'v_add_f32 v{b+r}, v{b+r}, v{T+r}')
            o = WF + 8*t + 4*q
            for j in range(4): a(f'v_cvt_pk_bf16_f32 v{o+j}, v{b+2*j}, v{b+2*j+1}')
            a(f'v_permlane16_swap_b32 v{o}, v{o+2}\nv_permlane16_swap_b32 v{o+1}, v{o+3}')
            a(f'buffer_store_dwordx4 {r4(o)}, v3, s[{S_OUT}:{S_OUT+3}], s{55+t} offen offset:{q*64}')
    if stamp: stamp_out(a, ws, S_W, 0x8300000, 256)
    a('s_endpgm')
    e2 = a.mark()
    a.label(f'{name}_sc')
    if stamp: a('s_memtime s[84:85]')
    a('s_waitcnt vmcnt(0)\ns_nop 4')
    for t in range(4): a(f'v_sub_f32 v{V_G+t}, 1.0, v{V_G+t}')
    for t in range(4):
        for r in range(16): a(f'v_mul_f32 v{ACC+16*t+r}, v{ACC+16*t+r}, v{V_G+t}')
    a(f's_branch {name}_b2')
    e3 = a.mark()
    body = a.ins[m0:m1]
    ib2 = [i for i, x in enumerate(body) if x.text == f'{name}_b2:'][0]
    tr = a.ins[st:l0] + a.ins[l1:m1] + body[:ib2] + a.ins[e2:e3] + body[ib2:] + a.ins[m1:e2]
    return list(dict.fromkeys(check_seq(tr, name) + check_seq(a.ins[st:lm1] + a.ins[lm0:l1], name + '_ld')))

def gen(name='k2_kernel', stamp=False, force_slow=False, prio_a=0, prio_g=0, only=None, exp=''):
    a = Asm()
    a(f'''
    s_cmp_ge_u32 s2, 512
    s_cbranch_scc1 {name}_end
    s_cmp_ge_u32 s2, 256
    s_cbranch_scc1 {name + ('_end' if only == 'a' else '_down')}
    ''')
    if only == 'g': a(f's_branch {name}_end')
    errs = attention(a, name, stamp, force_slow, prio_a, exp)
    a.label(f'{name}_down')
    errs += (down6 if '6' in exp else down5 if '5' in exp else down4 if '4' in exp else down)(a, name + '_d', stamp, prio_g, exp)
    a.label(f'{name}_end')
    a('s_endpgm')
    for e in errs[:20]: print('CHECK', e)
    return kernel_text(name, a, NV, 102, NV), LDS_BYTES
```
